```python
import torch

def _softmax(x, axis=-1):
    return torch.softmax(x, dim=axis)
def _gelu(x):
    return torch.nn.functional.gelu(x, approximate="tanh")
def _silu(x):
    return torch.nn.functional.silu(x)
def _sigmoid(x):
    return torch.sigmoid(x)
def _layernorm(x, axis=-1, eps=1e-5):
    m = x.mean(dim=axis, keepdim=True)
    v = x.var(dim=axis, keepdim=True, unbiased=False)
    return (x - m) / torch.sqrt(v + eps)
def _scatter_add(tgt, idx, src, axis=0):
    return tgt.clone().index_add_(axis, idx, src)
def _segment_sum(src, seg, n):
    out = torch.zeros((n,) + src.shape[1:], dtype=src.dtype)
    return out.index_add_(0, seg, src)
def _pad(x, pw):
    flat = tuple(v for pair in reversed(pw) for v in pair)
    return torch.nn.functional.pad(x, flat)

kernel_name = 'interleave_layers__grouped_kv_mqa__dense_activation_gelu__prompt'

def setup_inputs():

    _w = (lambda a: (lambda t: t.to(torch.bfloat16) if t.is_floating_point() else t)(torch.as_tensor(a)))
    def _A_setup():
        B, S, D, H = 1, 2048, 512, 32
        Dh = D // H
        return {
            "x": _w((lambda *s: torch.randn(*s, dtype=torch.bfloat16) * 0.05)(B, S, D)),
            "wq": _w((lambda *s: torch.randn(*s, dtype=torch.bfloat16) * 0.05)(D, H * Dh)),
            "wk": _w((lambda *s: torch.randn(*s, dtype=torch.bfloat16) * 0.05)(D, Dh)),
            "wv": _w((lambda *s: torch.randn(*s, dtype=torch.bfloat16) * 0.05)(D, Dh)),
            "wo": _w((lambda *s: torch.randn(*s, dtype=torch.bfloat16) * 0.05)(H * Dh, D)),
        }
    _A_in = _A_setup()

    def _B_setup():
        B, S, D, F = 1, 2048, 512, 1792
        return {
            "x": _w((lambda *s: torch.randn(*s, dtype=torch.bfloat16) * 0.05)(B, S, D)),
            "w1": _w((lambda *s: torch.randn(*s, dtype=torch.bfloat16) * 0.8)(D, F) * (D ** -0.5)),
            "b1": _w((lambda *s: torch.randn(*s, dtype=torch.bfloat16) * 12.8)(F) * 0.01),
            "w2": _w((lambda *s: torch.randn(*s, dtype=torch.bfloat16) * 0.2)(F, D) * (F ** -0.5)),
            "b2": _w((lambda *s: torch.randn(*s, dtype=torch.bfloat16) * 1.6)(D) * 0.01),
        }
    _B_in = _B_setup()

    return {
        "A_x": _A_in["x"],
        "A_wq": _A_in["wq"],
        "A_wk": _A_in["wk"],
        "A_wv": _A_in["wv"],
        "A_wo": _A_in["wo"],
        "B_x": _B_in["x"],
        "B_w1": _B_in["w1"],
        "B_b1": _B_in["b1"],
        "B_w2": _B_in["w2"],
        "B_b2": _B_in["b2"],
    }

def reference(A_x, A_wq, A_wk, A_wv, A_wo, B_x, B_w1, B_b1, B_w2, B_b2):
    def _A_ref(x, wq, wk, wv, wo):
        B, S, D = x.shape
        H = 32
        Dh = D // H
        q = (lambda x, *d: x.permute(*d))((x @ wq).reshape(B, S, H, Dh), 0, 2, 1, 3)
        k = x @ wk
        v = x @ wv
        scores = torch.einsum("bhqd,bkd->bhqk", q, k) * (Dh ** -0.5)
        p = _softmax(scores, axis=-1)
        o = torch.einsum("bhqk,bkd->bhqd", p, v)
        return (lambda x, *d: x.permute(*d))(o, 0, 2, 1, 3).reshape(B, S, H * Dh) @ wo

    def _B_ref(x, w1, b1, w2, b2):
        h = torch.einsum("bsd,df->bsf", x, w1) + b1
        h = _gelu(h)
        return torch.einsum("bsf,fd->bsd", h, w2) + b2

    x = A_x
    x = x + _A_ref(_layernorm(x, axis=-1), A_wq, A_wk, A_wv, A_wo)
    x = x + _B_ref(_layernorm(x, axis=-1), B_w1, B_b1, B_w2, B_b2)
    x = x + _A_ref(_layernorm(x, axis=-1), A_wq, A_wk, A_wv, A_wo)
    x = x + _B_ref(_layernorm(x, axis=-1), B_w1, B_b1, B_w2, B_b2)
    return x
```

```python
import re, copy

REG = re.compile(r'\b([vas])(\d+)\b|\b([vas])\[(\d+):(\d+)\]|\b(vcc|exec|m0|scc)\b')
TRANS = ('v_exp_', 'v_log_', 'v_rcp_', 'v_rsq_', 'v_sqrt_', 'v_sin_', 'v_cos_')

def regs_of(op):
    out = []
    for m in REG.finditer(op):
        if m.group(1): out.append((m.group(1), int(m.group(2))))
        elif m.group(3): out += [(m.group(3), i) for i in range(int(m.group(4)), int(m.group(5)) + 1)]
        else: out.append((m.group(6), 0))
    return out

def R(kind, lo, n=1):
    return f"{kind}{lo}" if n == 1 else f"{kind}[{lo}:{lo+n-1}]"
def V(lo, n=1): return R('v', lo, n)
def A(lo, n=1): return R('a', lo, n)
def S(lo, n=1): return R('s', lo, n)

class Tok:
    def __init__(self, regs=()):
        self.regs = set(regs); self.optional = False

class Em:
    def __init__(self):
        self.lines = []
        self.tail = []
        self.now = 0
        self.h = {k: {} for k in ('valu', 'trans', 'dot', 'mfma', 'mfmac', 'sval', 'store', 'm0', 'exv')}
        self.vmq = []; self.lgq = []
        self.nops = 0; self.nlab = 0
        self.stack = []
        self.nop_log = []
        self.und = set()
    def raw(self, t): self.lines.append(t)
    def c(self, t): self.lines.append("    ; " + t)
    def label(self, name): self.lines.append(name + ":")
    def newlab(self, p="L"):
        self.nlab += 1
        return f"{p}_{self.nlab}"
    def _emit(self, t, ws=1):
        self.lines.append("    " + t); self.now += ws
    def nop(self, n):
        while n > 0:
            k = min(n, 16); self._emit(f"s_nop {k-1}", k); n -= k
    def _wait(self, q, name, mx, idx):
        n = sum(1 for t in q[idx+1:] if not t.optional)
        n = min(n, mx)
        self._emit(f"s_waitcnt {name}({n})")
        del q[:idx+1]
    def wait(self, *toks):
        for q, name, mx in ((self.vmq, 'vmcnt', 63), (self.lgq, 'lgkmcnt', 15)):
            idx = max((i for i, t in enumerate(q) if any(t is x for x in toks)), default=-1)
            if idx >= 0: self._wait(q, name, mx, idx)
    def wait_vm0(self):
        self._emit("s_waitcnt vmcnt(0)"); self.vmq.clear()
    def wait_lg0(self, force=False):
        if self.lgq or force: self._emit("s_waitcnt lgkmcnt(0)")
        self.lgq.clear()
    def barrier(self): self._emit("s_barrier")
    def _autowait(self, regs):
        rs = set(regs)
        for q, name, mx in ((self.vmq, 'vmcnt', 63), (self.lgq, 'lgkmcnt', 15)):
            idx = max((i for i, t in enumerate(q) if t.regs & rs), default=-1)
            if idx >= 0: self._wait(q, name, mx, idx)
    def undef(self, kind, lo, n):
        self.und |= {(kind, i) for i in range(lo, lo + n)}
    def _du(self, rd, wr, text):
        bad = [r for r in rd if r in self.und]
        if bad: raise ValueError(f"read of undefined {bad} in {text}")
        self.und -= set(wr)
    def begin_opt(self):
        self.stack.append((self.now, copy.deepcopy(self.h), list(self.vmq), list(self.lgq)))
    def end_opt(self):
        t0, h0, vm0, lg0 = self.stack.pop()
        d = self.now - t0
        for k in h0:
            for r, v in h0[k].items():
                nv = (v[0] + d,) + tuple(v[1:])
                if r not in self.h[k] or self.h[k][r][0] <= nv[0]: self.h[k][r] = nv
        for q, q0 in ((self.vmq, vm0), (self.lgq, lg0)):
            new = [t for t in q if not any(t is x for x in q0)]
            for t in new: t.optional = True
            q[:] = q0 + new
    def I(self, text):
        text = text.strip()
        if text.startswith('!'):
            self._emit(text[1:]); tok = Tok(); self.vmq.append(tok); return tok
        mn, _, rest = text.partition(' ')
        ops = [o.strip() for o in rest.split(',')] if rest else []
        need = 0
        H = self.h
        def chk(kind, regs, ws):
            nonlocal need
            for r in regs:
                if r in H[kind]:
                    v = H[kind][r]
                    w = ws(v) if callable(ws) else ws
                    need = max(need, w - (self.now - v[0]))
        tok = None
        mD = lambda v: {4: 8, 8: 12}[v[1]]
        if mn.startswith('v_mfma') or mn.startswith('v_smfmac'):
            passes = 8 if '32x32' in mn else 4
            D = regs_of(ops[0]); Aa = regs_of(ops[1]); B = regs_of(ops[2]); C = regs_of(ops[3])
            if mn.startswith('v_smfmac'): idx = C; C = D; AB = Aa + B + idx
            else: AB = Aa + B
            self._autowait(D + AB + C); self._du(AB + C, D, text)
            chk('valu', AB + C, 2); chk('dot', AB + C + D, 3)
            chk('mfma', AB, mD)
            chk('mfma', C, lambda v: 0 if (v[2] == tuple(C) and v[1] == passes) else {4: 6, 8: 10}[v[1]])
            if not C or tuple(C) != tuple(D):
                chk('mfma', D, lambda v: 0 if v[1] <= passes else 6)
            chk('exv', [('exec', 0)], 4)
            self._pad(need, text); self._emit(text)
            for r in D: H['mfma'][r] = (self.now, passes, tuple(D))
            for r in C: H['mfmac'][r] = (self.now, passes)
            return None
        if mn.startswith('v_'):
            nd = 1
            if re.match(r'v_(add|sub|subrev|addc|subb)_co_', mn): nd = 2
            swap = mn.startswith('v_permlane') and 'swap' in mn
            W = []
            for o in ops[:nd]: W += regs_of(o)
            Rd = []
            for o in ops[nd:]: Rd += regs_of(o)
            if swap: W = W + Rd; Rd = list(W)
            if mn.startswith('v_fmac') or mn.startswith('v_dot2c') or mn.startswith('v_writelane') or 'dpp' in mn or 'row_' in text or 'sdwa' in mn: Rd += W
            self._autowait(W + Rd); self._du(Rd, W, text)
            vr = [r for r in Rd if r[0] in 'va' and len(r[0]) == 1]
            sr = [r for r in Rd if r[0] in ('s', 'vcc')]
            vw = [r for r in W if r[0] in 'va' and len(r[0]) == 1]
            sw = [r for r in W if r[0] in ('s', 'vcc', 'exec')]
            trans = mn.startswith(TRANS); dot = mn.startswith('v_dot')
            chk('mfma', vr + vw, mD)
            chk('mfmac', vw, lambda v: {4: 3, 8: 7}[v[1]])
            if not trans: chk('trans', vr, 1)
            if dot:
                srcc = regs_of(ops[3]) if len(ops) > 3 else W
                ab = regs_of(ops[1]) + regs_of(ops[2])
                chk('dot', ab, 3); chk('dot', srcc + vw, lambda v: 0 if v[1] == mn else 3)
            else: chk('dot', vr + vw, 3)
            chk('sval', sr, 2)
            if mn.startswith('v_readfirstlane') or mn.startswith('v_readlane'): chk('valu', vr, 1)
            if mn.startswith('v_permlane') or 'row_' in text or 'quad_perm' in text: chk('valu', vr, 2)
            chk('store', vw, 2)
            self._pad(need, text); self._emit(text)
            for r in vw:
                H['valu'][r] = (self.now,)
                H['trans'].pop(r, None); H['dot'].pop(r, None)
                if trans: H['trans'][r] = (self.now,)
                if dot: H['dot'][r] = (self.now, mn)
            for r in sw: H['sval'][r] = (self.now,)
            if mn.startswith('v_cmpx'): H['exv'][('exec', 0)] = (self.now,)
            return None
        if mn.startswith('buffer_') or mn.startswith('global_'):
            allr = []
            for o in ops: allr += regs_of(o)
            lds = re.search(r'\blds\b', text) is not None
            is_load = '_load' in mn
            W = regs_of(ops[0]) if (is_load and not lds) else []
            self._autowait(allr); self._du([r for r in allr if r not in W], W, text)
            vr = [r for r in allr if r[0] in 'va' and len(r[0]) == 1]
            chk('mfma', vr, mD); chk('dot', vr, 3)
            chk('sval', [r for r in allr if r[0] == 's'], 5)
            if lds: chk('m0', [('m0', 0)], 1)
            chk('store', W, 1)
            self._pad(need, text); self._emit(text)
            if '_store' in mn and ('x4' in mn or 'x3' in mn):
                d = regs_of(ops[0]) if mn.startswith('buffer_') else regs_of(ops[1])
                for r in d: H['store'][r] = (self.now,)
            tok = Tok(W); self.vmq.append(tok); return tok
        if mn.startswith('ds_'):
            allr = []
            for o in ops: allr += regs_of(o)
            W = regs_of(ops[0]) if ('read' in mn or 'permute' in mn or 'rtn' in mn) else []
            self._autowait(allr); self._du([r for r in allr if r not in W], W, text)
            chk('mfma', allr, mD); chk('dot', allr, 3)
            chk('store', W, 1)
            self._pad(need, text); self._emit(text)
            tok = Tok(W); self.lgq.append(tok); return tok
        if mn.startswith('s_'):
            if mn == 's_nop':
                self._emit(text, int(ops[0]) + 1); return None
            self._emit(text)
            if ops and ops[0] == 'm0' and not mn.startswith('s_cmp'): H['m0'][('m0', 0)] = (self.now,)
            return None
        raise ValueError(text)
    def _pad(self, need, text):
        if need > 0:
            self.nops += need; self.nop_log.append((need, text)); self.nop(need)
    def seq(self, items):
        for it in items:
            if callable(it): it()
            else: self.I(it)
    def text(self):
        return "\n".join(self.lines + self.tail) + "\n"

def cost(it):
    if isinstance(it, tuple): return it[1]
    if callable(it): return 4
    mn = it.split()[0]
    if mn.startswith(TRANS): return 8
    if mn.startswith('buffer_'): return 10
    if mn.startswith('ds_write'): return 16
    if mn.startswith('ds_'): return 5
    if mn.startswith('s_'): return 2
    return 4

def interleave(main, fill, budget=24, start=0):
    out = []; fi = 0; credit = 0
    for gi, grp in enumerate(main):
        out += grp
        if gi < start: continue
        used = sum(cost(x) for x in (main[gi+1][:-1] if gi + 1 < len(main) else []))
        credit = min(credit, 0) + budget - used
        while fi < len(fill) and credit > 0:
            it = fill[fi]; credit -= cost(it); out.append(it[0] if isinstance(it, tuple) else it); fi += 1
    rest = [(it[0] if isinstance(it, tuple) else it) for it in fill[fi:]]
    return out, rest
```

```python
import sys, os, math, struct
sys.path.insert(0, os.path.dirname(os.path.abspath(__file__)))
from em import *

NAME = "interleave_layers__grouped_kv_mqa__dense_activation_gelu__prompt"
def f2u(x): return struct.unpack('<I', struct.pack('<f', x))[0]
def hx(x): return hex(x & 0xffffffff)

GF = 0x10000; KVB = 0x40000; W1S = 0x100000; W2S = 0x300000; WOS = 0x500000; STAMP = 0x600000; GRP = 0x800000
WSLIM = 0x800000
G_O = 0; G_X1 = 0x10000; G_X2 = 0x20000; G_FL = 0x30000; G_H = 0x38000; G_SZ = 0x80000
BIG = 0x10000000
L_K = 0; L_V = 0x10000; L_KVR = 0x20000; L_ST = 0x20000; L_CSR = 0x20800; L_ONES = 0x21000; L_WKV = 0x24000
LDS_BYTES = 0x28000
sWS, sG, sKV, sWQ, sTA, sTB = 4, 8, 12, 16, 20, 24
pX, pWQ, pWK, pWV, pWO, pW1, pB1, pW2, pB2, pOUT, pDBG, pWS = 28, 30, 32, 34, 36, 40, 42, 44, 46, 48, 50, 52
sg, sj, sw, sLayer, sMode, sMyF = 54, 55, 56, 57, 58, 59
sN = 60
sT0, sT1, sT2, sT3, sT4, sT5, sT6, sT7 = 62, 63, 64, 65, 66, 67, 68, 69
sCnt = 70; sOnes = 71
sM = 72
sP1K = 74
sW8K = 75
sW1K = 76
sFlSt = 77
sFlPo = 78
sKVFs = 79
sKVFp = 80
sQ = 81
sW1o = 85
sWOo = 87
sW2o = 89
sHs = 91
sHl = 93
sRow = 94
sKVst = 95
sWQo = 96
sWQl = 98
sSwD = 99
sAug = 100
sSwF = 101
vL16, vL16x, vPoll, vN, vEW, vER, vIdx, vV = 1, 2, 3, 4, 6, 7, 10, 11
vCSKV, vCSQ, vB2, vAUG = 12, 16, 24, 28
vT = 36
vACC = 48
def RES(mt): return vACC + 32 * mt
vF0 = 56; vF1 = 88
vWO = 112
vS = 176; vO = 208; vQ = 240
vLane = 0
vSTAMP = 111 ; vSTAMP0 = 110
POLL_LIM = 1 << 17

C1 = -2.0 * math.sqrt(2.0 / math.pi) * math.log2(math.e)
C2 = 0.044715 * C1
QS = 0.25 * math.log2(math.e)


class Gen:
    def __init__(self, stamps=False, force_slow_attn=False, force_slow_mode=False, codepf=True):
        self.e = Em(); self.stamps = stamps; self.fsa = force_slow_attn; self.fsm = force_slow_mode
        self.codepf = codepf
        self.nst = 0; self.stnames = []
    def I(self, t): return self.e.I(t)
    def srd(self, d, p, n):
        I = self.I
        I(f"s_mov_b32 s{d}, s{p}"); I(f"s_mov_b32 s{d+1}, s{p+1}")
        I(f"s_mov_b32 s{d+2}, {hx(n)}"); I(f"s_mov_b32 s{d+3}, 0x20000")
    def stamp(self, name):
        if not self.stamps: return
        e = self.e
        e.I(f"s_memtime s[{sM}:{sM+1}]"); e.wait_lg0(force=True)
        e.I(f"v_writelane_b32 v47, s{sM}, {self.nst}")
        self.stnames.append(name); self.nst += 1
    def ld(self, dst, voff, srd, soff, imm=0, fl="", w=4):
        mn = {4: "dwordx4", 2: "dwordx2", 1: "dword"}[w]
        return f"buffer_load_{mn} {dst}, v{voff}, s[{srd}:{srd+3}], {soff} offen" + (f" offset:{imm}" if imm else "") + (" " + fl if fl else "")
    def dma(self, voff, srd, soff, imm=0, fl=""):
        return f"buffer_load_dwordx4 v{voff}, s[{srd}:{srd+3}], {soff} offen" + (f" offset:{imm}" if imm else "") + (" " + fl if fl else "") + " lds"
    def st(self, src, voff, srd, soff, imm=0, fl="", w=4):
        mn = {4: "dwordx4", 2: "dwordx2", 1: "dword"}[w]
        return f"buffer_store_{mn} {src}, v{voff}, s[{srd}:{srd+3}], {soff} offen" + (f" offset:{imm}" if imm else "") + (" " + fl if fl else "")
    def dual(self, stores):
        e = self.e
        lab = e.newlab("L_sl"); back = e.newlab("L_bk")
        regs = []
        for s in stores: regs += regs_of(s)
        e._autowait(regs)
        e.I(f"s_cmp_lg_u32 s{sMode}, 0"); e.I(f"s_cbranch_scc1 {lab}")
        toks = [e.I(s) for s in stores]
        e.label(back)
        e.tail += [lab + ":", "    s_nop 7", "    s_nop 7"]
        e.tail += ["    " + (s + " sc1" if s.startswith("buffer_") else s) for s in stores]
        e.tail += [f"    s_branch {back}"]
        return toks
    def publish(self, slot):
        e = self.e
        e.wait_vm0()
        e.I("s_mov_b64 exec, 1")
        self.dual([self.st(V(vN, 2), vPoll, sG, f"s{sFlSt}", slot * 8, w=2)])
        e.I("s_mov_b64 exec, -1")
    def poll(self, srd, soff, imm, nl, kv=False):
        e = self.e
        lab = e.newlab("L_poll")
        if nl < 64: e.I(f"s_mov_b64 exec, {hex((1 << nl) - 1)}")
        e.I(f"s_mov_b32 s{sCnt}, 0")
        e.label(lab)
        e.I(self.ld(V(vT, 2), vPoll, srd, soff, imm, "sc1", w=2))
        e.I(f"s_add_u32 s{sCnt}, s{sCnt}, 1"); e.I(f"s_cmp_gt_u32 s{sCnt}, {POLL_LIM}"); e.I("s_cbranch_scc1 L_end")
        e.wait_vm0()
        if kv: e.I(f"v_and_b32 v{vT}, -16, v{vT}")
        e.I(f"v_cmp_ne_u64 vcc, s[{sN}:{sN+1}], {V(vT, 2)}")
        e.I(f"s_cbranch_vccnz {lab}")
        if nl < 64: e.I("s_mov_b64 exec, -1")
    def gpoll(self, slot): self.poll(sG, f"s{sFlPo}", slot * 8, 8)
    def mf(self, d, a, b, c=None):
        return f"v_mfma_f32_32x32x16_bf16 {V(d,16)}, {a}, {b}, {V(d,16) if c is None else c}"
    def mf16(self, d, a, b, first):
        return f"v_mfma_f32_16x16x32_bf16 {V(d,4)}, {a}, {b}, {'0' if first else V(d,4)}"
    def exw(self, acc, area, ew=vEW):
        return [f"ds_write_b128 v{ew}, {V(acc+8*q+4*h,4)} offset:{area+(q-1)*2048+h*1024}" for q in (1, 2, 3) for h in (0, 1)]
    def exr(self, tmp, area, er=vER):
        return [f"ds_read_b128 {V(tmp+8*(q-1)+4*h,4)}, v{er+q-1} offset:{area+h*1024}" for q in (1, 2, 3) for h in (0, 1)]
    def exadd(self, dst, tmp, pk=True):
        if pk: return [f"v_pk_add_f32 {V(dst+i,2)}, {V(dst+i,2)}, {V(tmp+8*q+i,2)}" for q in range(3) for i in (0, 2, 4, 6)]
        return [f"v_add_f32 v{dst+i}, v{dst+i}, v{tmp+8*q+i}" for q in range(3) for i in range(8)]
    def pack(self, dst, src, n=4):
        return [f"v_cvt_pk_bf16_f32 v{dst+i}, v{src+2*i}, v{src+2*i+1}" for i in range(n)]
    def dots(self, s, q, x, n):
        out = []
        for i in range(n):
            out.append((f"v_dot2c_f32_bf16 v{s}, s{sOnes}, v{x+i}", 8))
            out.append((f"v_dot2c_f32_bf16 v{q}, v{x+i}, v{x+i}", 8))
        return out
    def stat_write(self, s, q, addr, mt):
        return [f"v_permlane32_swap_b32 v{s}, v{q}", f"v_add_f32 v{s}, v{s}, v{q}", f"ds_write_b32 v{addr}, v{s} offset:{mt*1024}"]
    def stat_fin(self, t, m, r, sd=None):
        o = [f"v_add_f32 v{t}, v{t}, v{t+1}", f"v_add_f32 v{t+2}, v{t+2}, v{t+3}", f"v_add_f32 v{t}, v{t}, v{t+2}",
             f"v_mul_f32 v{m}, {hx(f2u(1/512))}, v{t}", f"v_mul_f32 v{t}, {hx(f2u(1/512))}, v{t}",
             f"v_permlane32_swap_b32 v{m}, v{t}",
             f"v_fma_f32 v{t}, -v{m}, v{m}, v{t}", f"v_max_f32 v{t}, 0, v{t}", f"v_add_f32 v{t}, {hx(f2u(1e-5))}, v{t}",
             f"v_rsq_f32 v{r}, v{t}"]
        if sd is not None: o.append(f"v_mul_f32 v{sd}, v{t}, v{r}")
        return o

    def prologue(self):
        e = self.e; I = e.I
        I("s_cmp_ge_u32 s2, 256"); I("s_cbranch_scc1 L_end")
        I("s_load_dwordx16 s[28:43], s[0:1], 0"); I("s_load_dwordx8 s[44:51], s[0:1], 64"); I("s_load_dwordx2 s[52:53], s[0:1], 96")
        if self.stamps: I("v_mov_b32 v47, 0")
        I(f"v_lshrrev_b32 v{vT}, 6, v0"); I(f"v_and_b32 v{vLane}, 63, v0")
        I(f"v_readfirstlane_b32 s{sw}, v{vT}")
        I(f"s_and_b32 s{sg}, s2, 7"); I(f"s_lshl_b32 s{sg}, s{sg}, 2"); I(f"s_lshr_b32 s{sT0}, s2, 6"); I(f"s_add_u32 s{sg}, s{sg}, s{sT0}")
        I(f"s_lshr_b32 s{sj}, s2, 3"); I(f"s_and_b32 s{sj}, s{sj}, 7")
        I(f"s_and_b32 s{sw}, s{sw}, 3")
        I(f"v_lshlrev_b32 v{vL16}, 4, v{vLane}")
        I(f"v_lshrrev_b32 v{vT+4}, 4, v{vLane}"); I(f"v_and_b32 v{vT+5}, 15, v{vLane}")
        for qq in range(4):
            I(f"v_add_u32 v{vT+6}, {4*qq}, v{vT+4}")
            I(f"v_xor_b32 v{vT+7}, v{vT+6}, v{vT+5}")
            I(f"v_add_u32 v{vT+6}, {3*qq}, v{vT+4}")
            I(f"v_lshlrev_b32 v{vT+6}, 10, v{vT+6}")
            I(f"v_lshl_add_u32 v{vT+qq}, v{vT+7}, 4, v{vT+6}")
        I(f"s_lshl_b32 s{sW1K}, s{sw}, 10"); I(f"s_lshl_b32 s{sW8K}, s{sw}, 13")
        I(f"s_lshl_b32 s{sT1}, s{sw}, 12")
        I(f"s_add_u32 m0, s{sT1}, {hx(L_WKV)}")
        I(f"s_lshl_b32 s{sT2}, s{sg}, 16"); I(f"s_lshl_b32 s{sT3}, s{sw}, 8"); I(f"s_add_u32 s{sT2}, s{sT2}, s{sT3}")
        I(f"s_lshl_b32 s{sT3}, s{sw}, 14")
        I(f"s_lshr_b32 s{sT4}, s{sj}, 1")
        e.wait_lg0(force=True)
        self.stamp("start")
        I(f"s_load_dwordx2 s[{sN}:{sN+1}], s[{pWS}:{pWS+1}], 0")
        I(f"s_bitcmp1_b32 s{sj}, 0"); I(f"s_cselect_b64 s[{sTB}:{sTB+1}], s[{pWV}:{pWV+1}], s[{pWK}:{pWK+1}]")
        I(f"s_mov_b32 s{sTB+2}, 16384"); I(f"s_mov_b32 s{sTB+3}, 0x20000")
        self.srd(sTA, pX, 0x200000)
        self.tk_wkv = [I(self.dma(vL16, sTB, f"s{sT1}", q * 1024)) for q in range(4)]
        self.tk_x = []
        for i in range(4):
            I(f"s_xor_b32 s{sT5}, s{sT4}, {i}")
            I(f"s_lshl_b32 s{sT6}, s{sT5}, 12"); I(f"s_add_u32 m0, s{sT6}, s{sT3}")
            I(f"s_lshl_b32 s{sT5}, s{sT5}, 14"); I(f"s_add_u32 s{sT5}, s{sT5}, s{sT2}")
            self.tk_x.append([I(self.dma(vT + qq, sTA, f"s{sT5}", qq * 1024)) for qq in range(4)])
        self.srd(sWQ, pWQ, 0x80000)
        I(f"s_add_u32 s{sWQl}, s{sT3}, {hx(L_V)}")
        I(f"s_lshl_b32 s{sT5}, s{sw}, 17"); I(f"s_lshl_b32 s{sT6}, s{sj}, 7"); I(f"s_add_u32 s{sT5}, s{sT5}, s{sT6}")
        I(f"s_lshr_b32 s{sT6}, s{sw}, 1"); I(f"s_lshl_b32 s{sT6}, s{sT6}, 6")
        I(f"s_add_u32 s{sWQo}, s{sT5}, s{sT6}"); I(f"s_xor_b32 s{sT6}, s{sT6}, 64"); I(f"s_add_u32 s{sWQo+1}, s{sT5}, s{sT6}")
        self.tk_wq = [t for t in (I(x) for x in self.wq_dma(vT + 4)) if t]
        I(f"s_lshl_b32 s{sP1K}, s{sj}, 2"); I(f"s_add_u32 s{sP1K}, s{sP1K}, s{sw}")
        I(f"s_lshl_b32 s{sT5}, s{sP1K}, 5")
        I(f"s_lshl_b32 s{sRow}, s{sg}, 16"); I(f"s_add_u32 s{sRow}, s{sRow}, s{sT5}")
        e.seq(self.rowaddr(vT + 5, vT + 6))
        I(f"s_add_u32 s{sT6}, s{sRow}, 0x8000")
        I(self.ld(V(vF0 + 16, 4), vT + 5, sTA, f"s{sRow}")); I(self.ld(V(vF0 + 20, 4), vT + 5, sTA, f"s{sT6}"))
        self.srd(sTB, pB2, 1024)
        I(self.ld(V(vB2, 4), vT + 6, sTB, f"s{sT5}"))
        if self.codepf:
            I(f"s_getpc_b64 s[{sT6}:{sT7}]")
            I(f"s_lshl_b32 s{sT5}, s{sP1K}, 11")
            I(f"s_add_u32 s{sT6}, s{sT6}, s{sT5}"); I(f"s_addc_u32 s{sT7}, s{sT7}, 0")
            I(f"v_and_b32 v{vT+8}, 15, v{vLane}"); I(f"v_lshlrev_b32 v{vT+8}, 7, v{vT+8}")
            I(f"v_mov_b32 v{vT+9}, s{sT7}"); I(f"v_add_co_u32 v{vT+8}, vcc, s{sT6}, v{vT+8}"); I(f"v_addc_co_u32 v{vT+9}, vcc, 0, v{vT+9}, vcc")
            I(f"s_cmp_ge_u32 s{sT5}, CODE_SPAN"); I("s_cbranch_scc1 L_nopf")
            e.begin_opt(); I(f"global_load_dword v{vAUG+1}, v[{vT+8}:{vT+9}], off"); e.end_opt()
            e.label("L_nopf")
        I(f"s_lshl_b32 s{sFlSt}, s{sP1K}, 7"); I(f"s_add_u32 s{sFlSt}, s{sFlSt}, {hx(G_FL)}")
        I(f"s_add_u32 s{sFlPo}, s{sW1K}, {hx(G_FL)}")
        I(f"s_lshl_b32 s{sP1K}, s{sP1K}, 10")
        self.srd(sWS, pWS, WSLIM)
        I(f"s_lshl_b32 s{sT5}, s{sg}, 20"); I(f"s_add_u32 s{sT5}, s{sT5}, {hx(GRP)}")
        I(f"s_add_u32 s{sG}, s{pWS}, s{sT5}"); I(f"s_addc_u32 s{sG+1}, s{pWS+1}, 0"); I(f"s_mov_b32 s{sG+2}, {hx(G_SZ)}"); I(f"s_mov_b32 s{sG+3}, 0x20000")
        I(f"s_add_u32 s{sKV}, s{pWS}, {hx(KVB)}"); I(f"s_addc_u32 s{sKV+1}, s{pWS+1}, 0"); I(f"s_mov_b32 s{sKV+2}, 0x20000"); I(f"s_mov_b32 s{sKV+3}, 0x20000")
        I(f"s_mov_b32 s{sLayer}, 0"); I(f"s_mov_b32 s{sMode}, 1"); I(f"s_mov_b32 s{sOnes}, 0x3f803f80")
        I(f"s_lshr_b32 s{sT5}, s{sg}, 3"); I(f"s_and_b32 s{sT6}, s{sg}, 7")
        I(f"s_lshl_b32 s{sKVFs}, s{sT5}, 6"); I(f"s_lshl_b32 s{sT7}, s{sT6}, 2"); I(f"s_add_u32 s{sKVFs}, s{sKVFs}, s{sT7}")
        I(f"s_add_u32 s{sKVst}, s{sT7}, s{sT5}")
        I(f"s_lshr_b32 s{sT7}, s{sj}, 2"); I(f"s_lshl_b32 s{sT7}, s{sT7}, 5")
        I(f"s_add_u32 s{sKVFs}, s{sKVFs}, s{sT7}"); I(f"s_add_u32 s{sKVst}, s{sKVst}, s{sT7}")
        I(f"s_and_b32 s{sT7}, s{sj}, 3"); I(f"s_add_u32 s{sKVFs}, s{sKVFs}, s{sT7}")
        I(f"s_lshl_b32 s{sKVFs}, s{sKVFs}, 7"); I(f"s_add_u32 s{sKVFs}, s{sKVFs}, {hx(GF)}")
        I(f"s_add_u32 s{sKVFp}, s{sW8K}, {hx(GF)}")
        I(f"s_lshl_b32 s{sKVst}, s{sKVst}, 10")
        I(f"s_and_b32 s{sT5}, s{sT4}, 1"); I(f"s_lshl_b32 s{sT5}, s{sT5}, 8"); I(f"s_and_b32 s{sT6}, s{sj}, 1")
        I(f"s_lshl_b32 s{sT5}, s{sT5}, s{sT6}"); I(f"s_lshl_b32 s{sT6}, s{sT6}, 16")
        I(f"s_add_u32 s{sKVst}, s{sKVst}, s{sT5}"); I(f"s_add_u32 s{sKVst}, s{sKVst}, s{sT6}")
        for q in range(4): I(f"s_xor_b32 s{sQ+q}, s{sW8K}, {q*8192}")
        I(f"s_mul_i32 s{sT5}, s{sj}, 7"); I(f"s_lshl_b32 s{sT6}, s{sw}, 1"); I(f"s_add_u32 s{sT5}, s{sT5}, s{sT6}")
        I(f"s_mul_i32 s{sW1o}, s{sT5}, {33*1024}"); I(f"s_add_u32 s{sW1o}, s{sW1o}, {hx(W1S)}")
        I(f"s_lshl_b32 s{sHs}, s{sT5}, 11"); I(f"s_add_u32 s{sHs}, s{sHs}, {hx(G_H)}")
        I(f"s_cmp_eq_u32 s{sw}, 3"); I(f"s_cselect_b32 s{sT6}, {hx(BIG)}, 0")
        I(f"s_add_u32 s{sW1o+1}, s{sW1o}, {33*1024}"); I(f"s_add_u32 s{sW1o+1}, s{sW1o+1}, s{sT6}")
        I(f"s_add_u32 s{sHs+1}, s{sHs}, 2048"); I(f"s_add_u32 s{sHs+1}, s{sHs+1}, s{sT6}")
        I(f"s_mul_i32 s{sHl}, s{sw}, {28*1024}")
        I(f"s_lshr_b32 s{sT6}, s{sw}, 1"); I(f"s_lshl_b32 s{sT5}, s{sj}, 1"); I(f"s_add_u32 s{sT5}, s{sT5}, s{sT6}")
        for n in range(2):
            if n: I(f"s_xor_b32 s{sT5}, s{sT5}, 1")
            I(f"s_lshl_b32 s{sWOo+n}, s{sT5}, 15"); I(f"s_add_u32 s{sWOo+n}, s{sWOo+n}, s{sW8K}"); I(f"s_add_u32 s{sWOo+n}, s{sWOo+n}, {hx(WOS)}")
            I(f"s_mul_i32 s{sW2o+n}, s{sT5}, {112*1024}"); I(f"s_add_u32 s{sW2o+n}, s{sW2o+n}, s{sHl}"); I(f"s_add_u32 s{sW2o+n}, s{sW2o+n}, {hx(W2S)}")
        I(f"s_add_u32 s{sHl}, s{sHl}, {hx(G_H)}")
        I(f"s_and_b32 s{sT5}, s{sw}, 1"); I(f"s_lshl_b32 s{sT5}, s{sT5}, 8"); I(f"v_xor_b32 v{vL16x}, s{sT5}, v{vL16}")
        I(f"v_lshlrev_b32 v{vPoll}, 7, v{vLane}")
        I(f"v_add_u32 v{vEW}, s{sT3}, v{vL16}")
        for q in (1, 2, 3):
            I(f"v_xor_b32 v{vER+q-1}, {hx(q*0x4000)}, v{vEW}")
            if q > 1: I(f"v_add_u32 v{vER+q-1}, {(q-1)*2048}, v{vER+q-1}")
        I(f"v_mov_b32 v{vIdx}, 0xdddddddd")
        e.wait_lg0(force=True)
        I(f"s_add_u32 s{sN}, s{sN}, 16"); I(f"s_addc_u32 s{sN+1}, s{sN+1}, 0"); I(f"s_and_b32 s{sN}, s{sN}, -16")
        I(f"s_getreg_b32 s{sT5}, hwreg(HW_REG_XCC_ID, 0, 4)"); I(f"s_or_b32 s{sMyF}, s{sN}, s{sT5}")
        I(f"v_mov_b32 v{vN}, s{sN}"); I(f"v_mov_b32 v{vN+1}, s{sN+1}")

    def rowaddr(self, d, hh16):
        return [f"v_lshrrev_b32 v{hh16}, 5, v{vLane}", f"v_lshlrev_b32 v{hh16}, 4, v{hh16}", f"v_and_b32 v{d}, 31, v{vLane}",
                f"v_lshl_add_u32 v{d}, v{d}, 10, v{hh16}"]
    def wq_dma(self, va):
        o = [f"v_lshrrev_b32 v{va}, 2, v{vLane}", f"v_lshlrev_b32 v{va}, 10, v{va}", f"v_and_or_b32 v{va}, v{vL16}, 48, v{va}"]
        for ks in range(8):
            for n in range(2):
                o += [f"s_add_u32 m0, s{sWQl}, {(2*ks+n)*1024}", f"s_add_u32 s{sT7}, s{sWQo+n}, {ks*16384}", self.dma(va, sWQ, f"s{sT7}")]
        return o
    def traddr(self, d, t, swapw):
        o = [f"v_lshrrev_b32 v{d}, 5, v{vLane}", f"v_lshlrev_b32 v{d}, 9, v{d}",
             f"v_bfe_u32 v{t}, v{vLane}, 2, 2", f"v_lshl_or_b32 v{d}, v{t}, 6, v{d}",
             f"v_bfe_u32 v{t}, v{vL16x if swapw else vL16}, 8, 1", f"v_lshl_or_b32 v{d}, v{t}, 5, v{d}",
             f"v_and_b32 v{t}, 1, v{vLane}", f"v_lshl_or_b32 v{d}, v{t}, 4, v{d}",
             f"v_bfe_u32 v{t}, v{vLane}, 1, 1", f"v_lshl_or_b32 v{d}, v{t}, 3, v{d}",
             f"v_add_u32 v{d}, s{sWQl}, v{d}"]
        return o
    def wkv_reads(self, W):
        a = vT + 6; t = vT + 7
        o = [f"v_lshrrev_b32 v{a}, 4, v{vLane}", f"v_lshlrev_b32 v{a}, 8, v{a}", f"v_and_b32 v{t}, 15, v{vLane}",
             f"v_lshl_or_b32 v{a}, v{t}, 3, v{a}", f"s_lshl_b32 s{sT5}, s{sw}, 12", f"s_add_u32 s{sT5}, s{sT5}, {hx(L_WKV)}",
             f"v_add_u32 v{a}, s{sT5}, v{a}"]
        for s in range(4):
            for h in range(2): o.append(f"ds_read_b64_tr_b16 {V(W+4*s+2*h,2)}, v{a} offset:{s*1024+h*128}")
        return o
    def wq_reads(self):
        a = vT + 6
        o = self.traddr(a, vT + 7, True)
        for f in range(16):
            for h in range(2): o.append(f"ds_read_b64_tr_b16 {A(4*f+2*h,2)}, v{a} offset:{f*1024+h*256}")
        return o

    def qkv(self, first):
        e = self.e; I = e.I
        W = vF0; XK = 240; X = 176; AQ = 112; ONE = vF1 + 16
        acc, sm, cs, gr = vF1, vF1 + 4, vF1 + 8, vF1 + 12
        for i in range(4): I(f"v_mov_b32 v{ONE+i}, s{sOnes}")
        I(f"s_lshr_b32 s{sT4}, s{sj}, 1")
        if first:
            a = vT + 8
            I(f"v_and_b32 v{vT+4}, 15, v{vLane}"); I(f"v_lshrrev_b32 v{vT+5}, 4, v{vLane}")
            I(f"v_xor_b32 v{vT+5}, v{vT+5}, v{vT+4}"); I(f"v_lshlrev_b32 v{vT+5}, 4, v{vT+5}")
            I(f"v_lshl_or_b32 v{a}, v{vT+4}, 8, v{vT+5}")
            I(f"s_lshl_b32 s{sT5}, s{sT4}, 12"); I(f"s_lshl_b32 s{sT6}, s{sw}, 14"); I(f"s_add_u32 s{sT5}, s{sT5}, s{sT6}")
            I(f"v_add_u32 v{a}, s{sT5}, v{a}")
            o = self.wkv_reads(W)
            e.seq(o[:7]); e.wait(*self.tk_wkv); e.seq(o[7:])
            e.wait(*self.tk_x[0])
            for s in range(4):
                if s: I(f"v_xor_b32 v{a+1}, {s*64}, v{a}")
                I(f"ds_read_b128 {V(XK+4*s,4)}, v{a+(1 if s else 0)}")
            e.wait_lg0()
        else:
            e.seq(self.wkv_reads(W)); e.seq(self.wq_reads())
            a = vT + 8
            I(f"v_lshrrev_b32 v{a}, 4, v{vLane}"); I(f"v_lshlrev_b32 v{a}, 9, v{a}"); I(f"v_and_b32 v{a+1}, 0xf0, v{vL16}"); I(f"v_or_b32 v{a}, v{a}, v{a+1}")
            I(f"s_lshr_b32 s{sT5}, s{sT4}, 1"); I(f"s_lshl_b32 s{sT5}, s{sT5}, 15"); I(f"s_and_b32 s{sT6}, s{sT4}, 1"); I(f"s_lshl_b32 s{sT6}, s{sT6}, 8")
            I(f"s_add_u32 s{sT5}, s{sT5}, s{sT6}"); I(f"s_add_u32 s{sT0}, s{sW8K}, {hx(G_X2)}"); I(f"s_add_u32 s{sT5}, s{sT5}, s{sT0}")
            I(f"s_add_u32 s{sT6}, s{sT5}, 4096")
            e.wait_lg0()
            self.gpoll(6)
            self.stamp("x2poll")
            tk = [I(self.ld(V(XK + 4 * s, 4), a, sG, f"s{sT5 + (s >> 1)}", (s & 1) * 2048, "sc1")) for s in range(4)]
            for mt in range(2):
                for ks in range(8):
                    if ks % 4 == 0: I(f"s_add_u32 s{sT1}, s{sT0}, {mt*0x8000 + ks*1024}")
                    I(self.ld(V(X + (mt * 8 + ks) * 4, 4), vL16, sG, f"s{sT1}", (ks % 4) * 1024, "sc1"))
            I(f"s_add_u32 s{sG}, s{sG}, {hx(G_SZ)}"); I(f"s_addc_u32 s{sG+1}, s{sG+1}, 0")
            I(f"s_add_u32 s{sKV}, s{sKV}, 0x20000"); I(f"s_addc_u32 s{sKV+1}, s{sKV+1}, 0")
            I(f"s_add_u32 s{sKVFs}, s{sKVFs}, 0x8000"); I(f"s_add_u32 s{sKVFp}, s{sKVFp}, 0x8000")
            I(f"s_mov_b32 s{sLayer}, 1")
            e.wait(*tk)
        self.stamp("kvx")
        lv = e.newlab("L_kvv"); lj = e.newlab("L_kvj")
        I(f"s_bitcmp1_b32 s{sj}, 0"); I(f"s_cbranch_scc1 {lv}")
        for typ in range(2):
            e.begin_opt()
            for s in range(4):
                x = V(XK + 4 * s, 4); w = V(W + 4 * s, 4); one = V(ONE, 4)
                pr = (lambda a, b: (a, b)) if typ == 0 else (lambda a, b: (b, a))
                I(self.mf16(acc, *pr(w, x), s == 0)); I(self.mf16(sm, *pr(one, x), s == 0)); I(self.mf16(gr, x, x, s == 0))
                if first: I(self.mf16(cs, *pr(w, one), s == 0))
            if typ == 0: I(f"s_branch {lj}")
            e.end_opt()
            if typ == 0: e.label(lv)
        e.label(lj)
        ah = vT + 4
        I(f"v_add_u32 v{ah}, {hx(L_KVR)}, v{vL16}")
        I(f"s_lshl_b32 s{sT5}, s{sw}, 12"); I(f"v_add_u32 v{ah+1}, s{sT5}, v{ah}")
        I(f"ds_write_b128 v{ah+1}, {V(gr,4)} offset:{0xC00}")
        l0 = e.newlab("L_kvw")
        I(f"s_cmp_eq_u32 s{sw}, 0"); I(f"s_cbranch_scc1 {l0}")
        e.begin_opt()
        I(f"ds_write_b128 v{ah+1}, {V(acc,4)}"); I(f"ds_write_b128 v{ah+1}, {V(sm,4)} offset:{0x400}")
        if first: I(f"ds_write_b128 v{ah+1}, {V(cs,4)} offset:{0x800}")
        e.end_opt(); e.label(l0)
        ga = vT + 6; gs = sT6; sa = vT + 7; n16 = vT + 8; q = vT + 9; t = vT + 10
        I(f"v_and_b32 v{n16}, 15, v{vLane}"); I(f"v_lshrrev_b32 v{q}, 4, v{vLane}")
        lv = e.newlab("L_kvv"); lj = e.newlab("L_kvj")
        I(f"s_bitcmp1_b32 s{sj}, 0"); I(f"s_cbranch_scc1 {lv}")
        e.begin_opt()
        I(f"v_lshrrev_b32 v{ga}, 2, v{n16}"); I(f"v_lshlrev_b32 v{ga}, 8, v{ga}"); I(f"v_lshl_or_b32 v{ga}, v{n16}, 4, v{ga}")
        I(f"v_and_b32 v{t}, 3, v{n16}"); I(f"v_lshl_or_b32 v{ga}, v{t}, 2, v{ga}"); I(f"s_mov_b32 s{gs}, 0")
        I(f"v_lshrrev_b32 v{sa}, 1, v{q}"); I(f"v_lshlrev_b32 v{sa}, 9, v{sa}"); I(f"v_lshl_or_b32 v{sa}, v{n16}, 4, v{sa}")
        I(f"s_branch {lj}")
        e.end_opt(); e.label(lv); e.begin_opt()
        I(f"v_mul_u32_u24 v{ga}, 0x140, v{q}"); I(f"s_mov_b32 s{gs}, 20")
        I(f"v_lshrrev_b32 v{sa}, 1, v{q}"); I(f"v_lshlrev_b32 v{sa}, 8, v{sa}")
        I(f"v_and_b32 v{t}, 3, v{n16}"); I(f"v_lshl_or_b32 v{sa}, v{t}, 4, v{sa}")
        I(f"v_bfe_u32 v{t}, v{n16}, 2, 1"); I(f"v_lshl_or_b32 v{sa}, v{t}, 7, v{sa}")
        I(f"v_bfe_u32 v{t}, v{n16}, 3, 1"); I(f"v_lshl_or_b32 v{sa}, v{t}, 6, v{sa}")
        e.end_opt(); e.label(lj)
        I(f"v_and_b32 v{t}, 1, v{q}"); I(f"v_lshl_or_b32 v{sa}, v{t}, 3, v{sa}")
        I(f"v_add_u32 v{ga}, {hx(L_KVR + 0xC00)}, v{ga}")
        g1 = vT + 8
        I(f"v_add_u32 v{g1}, s{gs}, v{ga}"); I(f"v_add_u32 v{g1+1}, s{gs}, v{g1}"); I(f"v_add_u32 v{g1+2}, s{gs}, v{g1+1}")
        gaddr = [ga, g1, g1 + 1, g1 + 2]
        e.wait_lg0(force=True); e.barrier()
        lf = e.newlab("L_kvf")
        I(f"s_cmp_lg_u32 s{sw}, 0"); I(f"s_cbranch_scc1 {lf}")
        e.begin_opt()
        tg = AQ; ts = AQ + 16; ta = AQ + 28; tc = AQ + 40
        for w2 in range(4):
            for r in range(4): I(f"ds_read_b32 v{tg+4*w2+r}, v{gaddr[r]} offset:{w2*0x1000}")
            if w2: I(f"ds_read_b128 {V(ts+4*(w2-1),4)}, v{ah} offset:{w2*0x1000+0x400}")
        for w2 in range(1, 4):
            I(f"ds_read_b128 {V(ta+4*(w2-1),4)}, v{ah} offset:{w2*0x1000}")
            if first: I(f"ds_read_b128 {V(tc+4*(w2-1),4)}, v{ah} offset:{w2*0x1000+0x800}")
        def padd(d, s): I(f"v_pk_add_f32 {V(d,2)}, {V(d,2)}, {V(s,2)}"); I(f"v_pk_add_f32 {V(d+2,2)}, {V(d+2,2)}, {V(s+2,2)}")
        for w2 in range(1, 4): padd(tg, tg + 4 * w2); padd(sm, ts + 4 * (w2 - 1))
        k = hx(f2u(1 / 512))
        for r in range(4): I(f"v_mul_f32 v{sm+r}, {k}, v{sm+r}")
        for r in range(4): I(f"v_mul_f32 v{tg+r}, {k}, v{tg+r}")
        for r in range(4): I(f"v_fma_f32 v{tg+r}, -v{sm+r}, v{sm+r}, v{tg+r}")
        for r in range(4): I(f"v_max_f32 v{tg+r}, 0, v{tg+r}")
        for r in range(4): I(f"v_add_f32 v{tg+r}, {hx(f2u(1e-5))}, v{tg+r}")
        for r in range(4): I(f"v_rsq_f32 v{tg+r}, v{tg+r}")
        for w2 in range(1, 4):
            padd(acc, ta + 4 * (w2 - 1))
            if first: padd(cs, tc + 4 * (w2 - 1))
        if first:
            for r in range(4): I(f"v_mov_b32 v{vCSKV+r}, v{cs+r}")
        for r in range(4): I(f"v_fma_f32 v{acc+r}, -v{sm+r}, v{vCSKV+r}, v{acc+r}")
        for r in range(4): I(f"v_mul_f32 v{acc+r}, v{acc+r}, v{tg+r}")
        e.seq(self.pack(acc, acc, 2))
        I(self.st(V(acc, 2), sa, sKV, f"s{sKVst}", 0, "sc1", w=2))
        I(f"v_mov_b32 v{tg}, s{sMyF}"); I(f"v_mov_b32 v{tg+1}, s{sN+1}")
        e.wait_vm0()
        I("s_mov_b64 exec, 1"); I(self.st(V(tg, 2), vPoll, sWS, f"s{sKVFs}", 0, "sc1", w=2)); I("s_mov_b64 exec, -1")
        e.end_opt(); e.label(lf)
        self.stamp("kvdone")
        sd = [vF1, vF1 + 1, vF1 + 2, vF1 + 3]
        if first:
            a = vT + 8
            I(f"v_and_b32 v{a+1}, 31, v{vLane}"); I(f"v_lshrrev_b32 v{a}, 5, v{vLane}"); I(f"v_xor_b32 v{a}, v{a}, v{a+1}")
            I(f"v_and_b32 v{a}, 15, v{a}"); I(f"v_lshlrev_b32 v{a}, 4, v{a}"); I(f"v_lshl_or_b32 v{a}, v{a+1}, 8, v{a}")
            I(f"s_lshl_b32 s{sT6}, s{sw}, 14"); I(f"v_add_u32 v{a}, s{sT6}, v{a}")
            e.wait(*self.tk_x[3])
            for ks in range(8):
                if ks: I(f"v_xor_b32 v{a+1}, {ks*32}, v{a}")
                for mt in range(2): I(f"ds_read_b128 {V(X+(mt*8+ks)*4,4)}, v{a+(1 if ks else 0)} offset:{mt*8192}")
            o = self.wq_reads()
            e.seq(o[:11]); e.wait(*self.tk_wq); e.seq(o[11:])
            self.swz_setup()
            for mt in range(2):
                for i in range(4):
                    I(f"v_lshlrev_b32 v{RES(mt)+2*i}, 16, v{vF0+16+4*mt+i}"); I(f"v_and_b32 v{RES(mt)+2*i+1}, 0xffff0000, v{vF0+16+4*mt+i}")
            e.wait_lg0()
            self.swz_dma()
            self.stamp("wqrd")
            c = AQ + 32
            for ks in range(8):
                for n in range(2): I(self.mf(c + 16 * n, A((2 * ks + n) * 4, 4), V(ONE, 4), '0' if ks == 0 else None))
        for r in sd: I(f"v_mov_b32 v{r}, 0")
        main = []
        for mt in range(2):
            for ks in range(8):
                for n in range(2): main.append([self.mf(AQ + 32 * mt + 16 * n, A((2 * ks + n) * 4, 4), V(X + (mt * 8 + ks) * 4, 4), '0' if ks == 0 else None)])
        fill0 = []
        if first:
            fill0 = [f"v_add_u32 v{vT+8}, 0x10000, v{vEW}"] + self.exw(AQ + 32, 0, vT + 8) + [f"v_mov_b32 v{vCSQ+i}, v{AQ+32+i}" for i in range(8)]
        d0 = self.dots(sd[0], sd[1], X, 32); d1 = self.dots(sd[2], sd[3], X + 32, 32)
        a, r0 = interleave(main[:16], d0[:24] + fill0 + d0[24:], 24)
        e.seq(a); e.seq(r0)
        a, r1 = interleave(main[16:], d1[:12] + self.exw(AQ, 0) + d1[12:], 24)
        e.seq(a); e.seq(r1)
        e.seq(self.exw(AQ + 32, 0x1800))
        I(f"s_lshl_b32 s{sT5}, s{sw}, 2"); I(f"v_add_u32 v{ah+1}, s{sT5}, v{ah}")
        for mt in range(2): e.seq(self.stat_write(sd[2 * mt], sd[2 * mt + 1], ah + 1, mt))
        e.wait_lg0(); e.barrier()
        t0 = vF1 + 4
        for mt in range(2): I(f"ds_read_b128 {V(t0+4*mt,4)}, v{ah} offset:{mt*1024}")
        if first:
            for q in range(3): I(f"v_add_u32 v{vT+8+q}, 0x10000, v{vER+q}")
            e.seq(self.exr(vF0, 0, vT + 8))
        for mt in range(2): e.seq(self.exr(X + 24 * mt, 0x1800 * mt))
        I(f"v_add_u32 v{ah+1}, s{sW1K}, v{ah}")
        I(f"ds_write_b128 v{ah+1}, {V(ONE,4)} offset:{L_ONES-L_KVR}")
        for mt in range(2):
            e.seq(self.stat_fin(t0 + 4 * mt, sd[2 * mt], sd[2 * mt + 1]))
        if first: e.seq(self.exadd(vCSQ, vF0))
        for mt in range(2):
            m, r = sd[2 * mt], sd[2 * mt + 1]; ac = AQ + 32 * mt
            I(f"v_mul_f32 v{r}, {hx(f2u(QS))}, v{r}")
            e.seq(self.exadd(ac, X + 24 * mt))
            for i in range(8): I(f"v_fma_f32 v{ac+i}, -v{m}, v{vCSQ+i}, v{ac+i}")
            for i in range(8): I(f"v_mul_f32 v{ac+i}, v{ac+i}, v{r}")
            e.seq(self.pack(vQ + 4 * mt, ac))
        self.stamp("qdone")
        if first: self.swz_do(ah)
        else: e.wait_lg0(); e.barrier()

    def swz_setup(self):
        e = self.e; I = e.I
        l2 = e.newlab("L_sw2"); lo = e.newlab("L_swo"); lj = e.newlab("L_swj")
        I(f"s_mov_b32 s{sAug}, {hx(BIG)}"); I(f"s_mov_b32 s{sTA+3}, 0x20000")
        I(f"s_cmp_ge_u32 s{sg}, 14"); I(f"s_cbranch_scc1 {l2}")
        I(f"s_mov_b64 s[{sTA}:{sTA+1}], s[{pW1}:{pW1+1}]"); I(f"s_mov_b32 s{sTA+2}, {512*1792*2}")
        I(f"s_mov_b32 s{sT0}, 3584"); I(f"s_and_b32 s{sT1}, s{sg}, 1")
        I(f"s_mul_i32 s{sT2}, s{sj}, 7"); I(f"s_lshr_b32 s{sT3}, s{sg}, 1"); I(f"s_add_u32 s{sT2}, s{sT2}, s{sT3}")
        I(f"s_mul_i32 s{sSwD}, s{sT2}, {33*1024}"); I(f"s_add_u32 s{sSwD}, s{sSwD}, {hx(W1S)}")
        I(f"s_lshl_b32 s{sT3}, s{sT1}, 3"); I(f"s_add_u32 s{sT3}, s{sT3}, s{sSwD}"); I(f"s_add_u32 s{sT3}, s{sT3}, {32*1024}")
        I(f"s_cmp_eq_u32 s{sw}, 0"); I(f"s_cselect_b32 s{sAug}, s{sT3}, s{sAug}")
        I(f"s_branch {lj}")
        e.label(l2)
        I(f"s_mov_b32 s{sT0}, 1024"); I(f"s_lshl_b32 s{sT2}, s{sj}, 1")
        I(f"s_cmp_ge_u32 s{sg}, 28"); I(f"s_cbranch_scc1 {lo}")
        I(f"s_mov_b64 s[{sTA}:{sTA+1}], s[{pW2}:{pW2+1}]"); I(f"s_mov_b32 s{sTA+2}, {512*1792*2}")
        I(f"s_cmp_ge_u32 s{sg}, 21"); I(f"s_cselect_b32 s{sT3}, 21, 14"); I(f"s_addc_u32 s{sT2}, s{sT2}, 0")
        I(f"s_sub_u32 s{sT1}, s{sg}, s{sT3}")
        I(f"s_mul_i32 s{sSwD}, s{sT2}, {112*1024}"); I(f"s_add_u32 s{sSwD}, s{sSwD}, {hx(W2S)}")
        I(f"s_branch {lj}")
        e.label(lo)
        I(f"s_mov_b64 s[{sTA}:{sTA+1}], s[{pWO}:{pWO+1}]"); I(f"s_mov_b32 s{sTA+2}, 0x80000")
        I(f"s_and_b32 s{sT1}, s{sg}, 1"); I(f"s_bitcmp1_b32 s{sg}, 1"); I(f"s_addc_u32 s{sT2}, s{sT2}, 0")
        I(f"s_lshl_b32 s{sSwD}, s{sT2}, 15"); I(f"s_add_u32 s{sSwD}, s{sSwD}, {hx(WOS)}")
        e.label(lj)
        I(f"s_lshl_b32 s{sT1}, s{sT1}, 2"); I(f"s_add_u32 s{sT1}, s{sT1}, s{sw}")
        I(f"s_lshl_b32 s{sT3}, s{sT1}, 12"); I(f"s_add_u32 s{sSwD}, s{sSwD}, s{sT3}")
        I(f"s_lshl_b32 s{sT1}, s{sT1}, 6"); I(f"s_mul_i32 s{sT1}, s{sT1}, s{sT0}")
        I(f"s_lshl_b32 s{sT2}, s{sT2}, 6"); I(f"s_add_u32 s{sT1}, s{sT1}, s{sT2}")
        a = vT + 9
        I(f"v_lshrrev_b32 v{a}, 2, v{vLane}"); I(f"v_mul_lo_u32 v{a}, v{a}, s{sT0}"); I(f"v_and_or_b32 v{a}, v{vL16}, 48, v{a}")
        I(f"s_lshl_b32 s{sT0}, s{sT0}, 4")
        b = vT + 10; t = vT + 8
        I(f"v_and_b32 v{b}, 0x13, v{vLane}"); I(f"v_bfe_u32 v{t}, v{vLane}, 2, 1"); I(f"v_lshl_or_b32 v{b}, v{t}, 3, v{b}")
        I(f"v_bfe_u32 v{t}, v{vLane}, 3, 1"); I(f"v_lshl_or_b32 v{b}, v{t}, 2, v{b}")
        I(f"v_lshrrev_b32 v{t}, 5, v{vLane}"); I(f"v_lshl_or_b32 v{b}, v{t}, 15, v{b}"); I(f"v_lshlrev_b32 v{b}, 1, v{b}")
        self.srd(sTB, pB1, 3584)
        I(f"buffer_load_ushort v{vAUG}, v{b}, s[{sTB}:{sTB+3}], s{sT2} offen")
        I(f"s_lshl_b32 s{sSwF}, s{sj}, 12"); I(f"s_add_u32 s{sSwF}, s{sSwF}, {hx(GF + 0x10000)}")
    def swz_dma(self):
        I = self.I
        self.tk_sw = []
        for f in range(4):
            I(f"s_add_u32 m0, s{sWQl}, {0x2000 + f*1024}")
            if f: I(f"s_add_u32 s{sT1}, s{sT1}, s{sT0}")
            self.tk_sw.append(I(self.dma(vT + 9, sTA, f"s{sT1}")))
    def swz_do(self, ah):
        e = self.e; I = e.I
        a = vT + 6; F = 112; c = vT + 8
        e.seq(self.traddr(a, vT + 7, False)); I(f"v_mov_b32 v{c}, 0")
        e.wait(*self.tk_sw)
        for f in range(4):
            for h in range(2): I(f"ds_read_b64_tr_b16 {V(F+4*f+2*h,2)}, v{a} offset:{0x2000+f*1024+h*256}")
        for f in range(4): I(self.st(V(F + 4 * f, 4), vL16, sWS, f"s{sSwD}", f * 1024, "sc1"))
        for i in range(16): I(f"v_dot2c_f32_bf16 v{c}, s{sOnes}, v{F+i}")
        I(f"s_lshl_b32 s{sT5}, s{sw}, 2"); I(f"v_add_u32 v{ah+1}, s{sT5}, v{ah}")
        I(f"ds_write_b32 v{ah+1}, v{c} offset:{L_CSR-L_KVR}")
        e.wait_lg0(); e.barrier()
        t = F + 16
        I(f"ds_read_b128 {V(t,4)}, v{ah} offset:{L_CSR-L_KVR}")
        I(f"v_add_f32 v{t}, v{t}, v{t+1}"); I(f"v_add_f32 v{t+2}, v{t+2}, v{t+3}"); I(f"v_add_f32 v{t}, v{t}, v{t+2}")
        I(f"v_cvt_pk_bf16_f32 v{t+1}, v{t}, v{t}"); I(f"v_lshlrev_b32 v{t+2}, 16, v{t+1}"); I(f"v_sub_f32 v{t}, v{t}, v{t+2}")
        I(f"v_cvt_pk_bf16_f32 v{t}, v{t+2}, v{t}"); I(f"v_and_b32 v{t+1}, 0xffff, v{t+1}"); I(f"v_lshl_or_b32 v{t+1}, v{vAUG}, 16, v{t+1}")
        I(self.st(V(t, 2), vL16, sWS, f"s{sAug}", 0, "sc1", w=2))
        self.stamp("swz")

    def attention(self):
        e = self.e; I = e.I
        Kf = [vF0, vF0 + 4]; Vf = [vF0 + 8, vF0 + 16]
        vInc = vF1; vPW = vF1 + 1; vMA = vF1 + 3; vSA = vF1 + 4; vMD = vF1 + 5; vSD = vF1 + 6; vJ = vF1 + 8; t = vF1 + 9
        S_ = [vS, vS + 16]; O_ = [vO, vO + 16]
        I(f"v_and_b32 v{t}, 16, v{vLane}"); I(f"v_cmp_eq_u32 vcc, 0, v{t}")
        I(f"v_lshrrev_b32 v{t}, 5, v{vLane}"); I(f"v_lshlrev_b32 v{t}, 8, v{t}"); I(f"v_add_u32 v{t}, {hx(L_V)}, v{t}")
        I(f"v_mov_b32 v{t+1}, {hx(L_ONES)}"); I(f"v_cndmask_b32 v{vV}, v{t+1}, v{t}, vcc")
        I(f"v_and_b32 v{t}, 0xf0, v{vL16}"); I(f"v_or_b32 v{vV}, v{vV}, v{t}")
        I(f"v_mov_b32 v{t}, 0x1000"); I(f"v_cndmask_b32 v{vInc}, 0, v{t}, vcc")
        I(f"v_and_b32 v{t}, 0x380, v{vPoll}")
        I(f"s_cmp_eq_u32 s{sw}, 3"); I(f"s_cselect_b32 s{sT5}, 1, 3")
        I(f"v_lshrrev_b32 v{t+1}, 3, v{vLane}"); I(f"v_and_b32 v{vPW}, s{sT5}, v{t+1}"); I(f"v_lshl_or_b32 v{vPW}, v{vPW}, 10, v{t}")
        I(f"v_lshrrev_b32 v{t+2}, 5, v{vLane}"); I(f"v_mul_u32_u24 v{t+2}, 0x1c000, v{t+2}"); I(f"v_add_u32 v{vPW}, v{vPW}, v{t+2}")
        I(f"v_lshl_or_b32 v{t}, v{t+1}, 15, v{t}"); I(f"v_add_u32 v{t}, s{sP1K}, v{t}")
        I(f"v_mov_b32 v{t+1}, s{sFlSt}"); I(f"v_cmp_gt_u32 vcc, 48, v{vLane}"); I(f"v_cndmask_b32 v{vPW+1}, v{t+1}, v{t}, vcc")
        I(f"v_and_b32 v{vMA}, 0x180, v{vPoll}"); I(f"v_bfe_u32 v{t}, v{vLane}, 2, 1"); I(f"v_lshl_or_b32 v{vMA}, v{t}, 12, v{vMA}")
        I(f"v_and_b32 v{vSA}, 0xf80, v{vPoll}")
        for i in range(32): I(f"v_mov_b32 v{vO+i}, 0")
        self.poll(sWS, f"s{sKVFp}", 0, 64, kv=True)
        self.stamp("kvpoll")
        def kvdma(i, v): return ([f"s_add_u32 m0, s{sW1K}, {hx(i*4096 + v*0x10000)}"], self.dma(vL16, sKV, "m0", 0, "sc1"))
        tk = []
        for i in range(4):
            for v in range(2):
                p, o = kvdma(i, v); e.seq(p); tk.append(I(o))
        e.wait(tk[1]); e.barrier()
        l1 = e.newlab("L_nosw")
        I(f"s_or_b32 s{sT5}, s{sLayer}, s{sw}"); I(f"s_cbranch_scc1 {l1}")
        e.begin_opt()
        I(f"s_lshl_b32 s{sT5}, s{sg}, 7"); I(f"s_add_u32 s{sT5}, s{sT5}, s{sSwF}")
        I(f"s_cmp_eq_u32 s2, 0"); I(f"s_cselect_b32 s{sT6}, 0, {hx(BIG)}")
        I("s_mov_b64 exec, 1")
        I(self.st(V(vN, 2), vPoll, sWS, f"s{sT5}", 0, "sc1", w=2)); I(self.st(V(vN, 2), vPoll, sWS, f"s{sT6}", 0, "sc1", w=2))
        I("s_mov_b64 exec, -1")
        e.end_opt(); e.label(l1)
        vm = [[] for _ in range(64)]
        lst = [kvdma(i, v) for i in range(4, 16) for v in range(2)]
        for n, it in enumerate(lst): vm[n // 2].append(it)
        vm[12] = [([f"s_andn2_b32 s{sT5}, s{sKVFs}, 0x1180"], self.ld(V(vMD), vMA, sWS, f"s{sT5}", 0, "sc1", w=1)),
                  ([], self.ld(V(vSD, 2), vSA, sWS, f"s{sSwF}", 0, "sc1", w=2))]
        lst = [([], self.ld(V(vJ), vPW + 1, sG, "0", 0, "sc1", w=1)), ([], self.ld(V(vJ + 6), vPW, sG, f"s{sHs}", 0, "sc1", w=1))]
        for n in range(2):
            for ks in range(8):
                pre = [f"s_add_u32 s{sT5}, s{sWOo+n}, {ks*1024}"] if ks % 4 == 0 else []
                lst.append((pre, self.ld(V(vWO + (2 * ks + n) * 4, 4), vL16x, sWS, f"s{sT5}", (ks % 4) * 1024, "sc1")))
        for n in range(2):
            for i in range(32):
                pre = []
                if i % 8 == 0: pre = [f"s_add_u32 s{sT5}, s{sW1o+n}, s{sQ+i//8}"]
                elif i % 4 == 0: pre = [f"s_add_u32 s{sT5}, s{sT5}, 4096"]
                lst.append((pre, self.ld(A((2 * i + n) * 4, 4), vL16, sWS, f"s{sT5}", (i % 4) * 1024, "sc1")))
            lst.append(([f"s_add_u32 s{sT5}, s{sW1o+n}, {32*1024}"], self.ld(V(vAUG + 4 * n, 4), vL16, sWS, f"s{sT5}", 0, "sc1")))
        for n, it in enumerate(lst): vm[16 + n // 2].append(it)
        def rdK(t_): return I(f"ds_read_b128 {V(Kf[t_&1],4)}, v{vL16} offset:{t_*1024}")
        def rdV(t_, s): return I(f"ds_read_b128 {V(Vf[t_&1]+4*s,4)}, v{vV} offset:{(t_&3)*1024+s*512}")
        def smf(mt, t_, s): I(f"v_smfmac_f32_32x32x32_bf16 {V(O_[mt],16)}, {V(Vf[t_&1]+4*s,4)}, {V(S_[mt]+8*s,8)}, v{vIdx}")
        def qk(mt, t_): I(self.mf(S_[mt], V(Kf[t_&1], 4), V(vQ + 4 * mt, 4), '0'))
        def ex(mt, a, b):
            for r in range(a, b): I(f"v_exp_f32 v{S_[mt]+r}, v{S_[mt]+r}")
        rdK(0); rdV(0, 0); rdV(0, 1)
        qk(0, 0)
        self.stamp("attn0")
        lasttk = None
        for t_ in range(64):
            nx = t_ + 1 < 64
            ex(0, 0, 2)
            if t_: smf(1, t_ - 1, 1)
            if nx:
                tkK = rdK(t_ + 1)
                if (t_ + 1) % 4 == 0: I(f"v_add_u32 v{vV}, v{vInc}, v{vV}")
            ex(0, 2, 5); qk(1, t_)
            if nx: rdV(t_ + 1, 0)
            ex(0, 5, 10); smf(0, t_, 0)
            if vm[t_]: e.seq(vm[t_][0][0])
            if nx: tkV = rdV(t_ + 1, 1)
            ex(0, 10, 16)
            ex(1, 0, 2); smf(0, t_, 1)
            if nx: e.wait(tkK)
            if vm[t_]: lasttk = I(vm[t_][0][1])
            ex(1, 2, 5)
            if nx: qk(0, t_ + 1)
            if len(vm[t_]) > 1: e.seq(vm[t_][1][0])
            ex(1, 5, 10); smf(1, t_, 0)
            if nx: e.wait(tkV)
            if t_ == 2: e.wait(tk[7]); e.barrier()
            if t_ == 14:
                e.wait(lasttk); e.barrier()
                I(f"v_cmp_ne_u32 vcc, s{sMyF}, v{vMD}"); I("s_cmp_lg_u64 vcc, 0")
                I(f"s_cselect_b32 s{sMode}, 1, {1 if self.fsm else 0}")
                I(f"v_cmp_ne_u64 vcc, s[{sN}:{sN+1}], {V(vSD,2)}"); I("s_cbranch_vccnz L_swpoll"); e.label("L_swback")
                e.tail += ["L_swpoll:", f"    s_mov_b32 s{sCnt}, 0", "L_swp2:", "    " + self.ld(V(vSD, 2), vSA, sWS, f"s{sSwF}", 0, "sc1", w=2),
                           f"    s_add_u32 s{sCnt}, s{sCnt}, 1", f"    s_cmp_gt_u32 s{sCnt}, {POLL_LIM}", "    s_cbranch_scc1 L_end",
                           "    s_waitcnt vmcnt(0)", f"    v_cmp_ne_u64 vcc, s[{sN}:{sN+1}], {V(vSD,2)}", "    s_cbranch_vccnz L_swp2", "    s_branch L_swback"]
            if len(vm[t_]) > 1: lasttk = I(vm[t_][1][1])
            ex(1, 10, 16)
        lo, hi = (2.0 ** -64, 2.0 ** 64) if not self.fsa else (2.0 ** 64, 2.0 ** -64)
        I(f"s_mov_b32 s{sT0}, {hx(f2u(lo))}"); I(f"s_mov_b32 s{sT1}, {hx(f2u(hi))}")
        smf(1, 63, 1)
        I(f"v_cmp_lt_f32 s[{sT2}:{sT3}], s{sT0}, v{O_[0]+8}"); I(f"v_cmp_gt_f32 s[{sT4}:{sT5}], s{sT1}, v{O_[0]+8}")
        I(f"s_and_b64 s[{sT2}:{sT3}], s[{sT2}:{sT3}], s[{sT4}:{sT5}]")
        I(f"v_cmp_lt_f32 vcc, s{sT0}, v{O_[1]+8}"); I(f"v_cmp_gt_f32 s[{sT4}:{sT5}], s{sT1}, v{O_[1]+8}")
        I(f"s_and_b64 s[{sT2}:{sT3}], s[{sT2}:{sT3}], vcc"); I(f"s_and_b64 s[{sT2}:{sT3}], s[{sT2}:{sT3}], s[{sT4}:{sT5}]")
        I(f"s_andn2_b64 s[{sT2}:{sT3}], exec, s[{sT2}:{sT3}]"); I("s_cbranch_scc1 L_slowattn"); e.label("L_slowback")
        self.slow_attn(Kf, Vf, vInc, S_, O_)
        self.stamp("attn1")
        for mt in range(2): I(f"v_rcp_f32 v{O_[mt]+8}, v{O_[mt]+8}")
        I(f"s_add_u32 s{sT0}, s{sP1K}, 0x8000")
        for mt in range(2):
            for i in range(8): I(f"v_mul_f32 v{O_[mt]+i}, v{O_[mt]+i}, v{O_[mt]+8}")
            e.seq(self.pack(vQ + 4 * mt, O_[mt]))
        self.dual([self.st(V(vQ, 4), vL16, sG, f"s{sP1K}"), self.st(V(vQ + 4, 4), vL16, sG, f"s{sT0}")])
        for mt in range(2):
            for i in range(8): I(f"v_mov_b32 v{RES(mt)+8+i}, 0")
        self.publish(0)
        e.barrier()

    def slow_attn(self, Kf, Vf, vInc, S_, O_):
        x = Em(); I = x.I
        x.label("L_slowattn"); x.nop(16)
        M = vF1 + 9; ka = vF1 + 11; va = vF1 + 12; inc = vF1 + 13
        I(f"v_lshrrev_b32 v{inc}, 2, v{vInc}")
        for mt in range(2):
            Sx = S_[0]; C = S_[1]
            I(f"v_mov_b32 v{M}, 0xff800000"); I(f"v_mov_b32 v{ka}, v{vL16}"); I(f"s_mov_b32 s{sCnt}, 0")
            x.label(f"L_sa1_{mt}")
            I(f"ds_read_b128 {V(Kf[0],4)}, v{ka}"); I(f"v_add_u32 v{ka}, 1024, v{ka}")
            I(self.mf(Sx, V(Kf[0], 4), V(vQ + 4 * mt, 4), '0'))
            for i in range(8): I(f"v_max3_f32 v{M}, v{Sx+2*i}, v{Sx+2*i+1}, v{M}")
            I(f"s_add_u32 s{sCnt}, s{sCnt}, 1"); I(f"s_cmp_lt_u32 s{sCnt}, 64"); I(f"s_cbranch_scc1 L_sa1_{mt}")
            I(f"v_mov_b32 v{M+1}, v{M}"); I(f"v_permlane32_swap_b32 v{M}, v{M+1}"); I(f"v_max_f32 v{M}, v{M}, v{M+1}")
            for i in range(16): I(f"v_sub_f32 v{C+i}, 0, v{M}")
            for i in range(16): I(f"v_mov_b32 v{O_[mt]+i}, 0")
            I(f"v_mul_u32_u24 v{va}, 15, v{vInc}"); I(f"v_sub_u32 v{va}, v{vV}, v{va}")
            I(f"v_mov_b32 v{ka}, v{vL16}"); I(f"s_mov_b32 s{sCnt}, 0")
            x.label(f"L_sa2_{mt}")
            I(f"ds_read_b128 {V(Kf[0],4)}, v{ka}"); I(f"ds_read_b128 {V(Vf[0],4)}, v{va}"); I(f"ds_read_b128 {V(Vf[0]+4,4)}, v{va} offset:512")
            I(f"v_add_u32 v{ka}, 1024, v{ka}"); I(f"v_add_u32 v{va}, v{inc}, v{va}")
            I(self.mf(Sx, V(Kf[0], 4), V(vQ + 4 * mt, 4), V(C, 16)))
            for i in range(16): I(f"v_exp_f32 v{Sx+i}, v{Sx+i}")
            for s in range(2): I(f"v_smfmac_f32_32x32x32_bf16 {V(O_[mt],16)}, {V(Vf[0]+4*s,4)}, {V(Sx+8*s,8)}, v{vIdx}")
            x.nop(16)
            I(f"s_add_u32 s{sCnt}, s{sCnt}, 1"); I(f"s_cmp_lt_u32 s{sCnt}, 64"); I(f"s_cbranch_scc1 L_sa2_{mt}")
        I("s_branch L_slowback")
        self.e.tail += x.lines

    def wo(self):
        e = self.e; I = e.I
        X = 176
        self.gpoll(0)
        self.stamp("opoll")
        for mt in range(2):
            for ks in range(8):
                if ks % 4 == 0: I(f"s_add_u32 s{sT1}, s{sW8K}, {G_O + mt*0x8000 + ks*1024}")
                I(self.ld(V(X + (mt * 8 + ks) * 4, 4), vL16, sG, f"s{sT1}", (ks % 4) * 1024, "sc1"))
        main = []
        for mt in range(2):
            for ks in range(8):
                for n in range(2):
                    main.append([self.mf(vACC + 32 * mt + 16 * n, V(vWO + (2 * ks + n) * 4, 4), V(X + (mt * 8 + ks) * 4, 4), '0' if (ks == 0 and n == 1) else None)])
        for g_ in main[:16]: e.seq(g_)
        a, r = interleave(main[16:], self.exw(vACC, 0), 16, start=6)
        e.seq(a); e.seq(r)
        I(f"s_add_u32 s{sT0}, s{sP1K}, {hx(G_X1)}"); I(f"s_add_u32 s{sT1}, s{sP1K}, {hx(G_X1 + 0x8000)}")
        e.seq(self.exw(vACC + 32, 0x1800))
        e.wait_lg0(); e.barrier()
        for mt in range(2): e.seq(self.exr(X + 24 * mt, 0x1800 * mt))
        for mt in range(2):
            e.seq(self.exadd(RES(mt), X + 24 * mt)); e.seq(self.pack(vQ + 4 * mt, RES(mt)))
            self.dual([self.st(V(vQ + 4 * mt, 4), vL16, sG, f"s{sT0+mt}")])
        for i in range(4):
            I(f"v_lshlrev_b32 v{vT+2}, 16, v{vB2+i}"); I(f"v_and_b32 v{vT+3}, 0xffff0000, v{vB2+i}")
            for mt in range(2): I(f"v_pk_add_f32 {V(RES(mt)+2*i,2)}, {V(RES(mt)+2*i,2)}, {V(vT+2,2)}")
        self.stamp("wodone")
        self.publish(2)

    def gelu(self, acc, k1, k2, sd, T, P, stores):
        o = []
        for b in range(4):
            a = acc + 4 * b; t = T + 4 * (b & 1)
            o += [f"v_mul_f32 v{t+i}, v{a+i}, v{a+i}" for i in range(4)]
            o += [f"v_fma_f32 v{t+i}, v{t+i}, v{k2}, v{k1}" for i in range(4)]
            o += [f"v_mul_f32 v{t+i}, v{t+i}, v{a+i}" for i in range(4)]
            o += [f"v_exp_f32 v{t+i}, v{t+i}" for i in range(4)]
            o += [f"v_fma_f32 v{t+i}, v{t+i}, v{sd}, v{sd}" for i in range(4)]
            o += [f"v_rcp_f32 v{t+i}, v{t+i}" for i in range(4)]
            o += [f"v_mul_f32 v{a+i}, v{a+i}, v{t+i}" for i in range(4)]
            o += self.pack(P + 2 * b, a, 2)
            if b & 1: o.append(stores(b >> 1, P + 4 * (b >> 1)))
        return o
    def ffn1(self):
        e = self.e; I = e.I
        AC = 112; XA = 176; XB = 208; RG = 240
        XQ = vT + 2; ah = vT + 6
        sd4 = [vF1, vF1 + 1, vF1 + 2, vF1 + 3]; t0 = vF1 + 4
        BA = [vF1 + 12, vF1 + 16]; SD = [vF1 + 20, vT + 8]
        for q in range(4):
            I(f"s_add_u32 s{sT5}, s{sQ+q}, {hx(L_V)}"); I(f"v_add_u32 v{XQ+q}, s{sT5}, v{vL16}")
        I(f"v_add_u32 v{ah}, {hx(L_ST)}, v{vL16}"); I(f"s_lshl_b32 s{sT5}, s{sw}, 2"); I(f"v_add_u32 v{ah+1}, s{sT5}, v{ah}")
        for r in sd4: I(f"v_mov_b32 v{r}, 0")
        e.undef('v', 112, 144); e.undef('v', t0, 17)
        self.gpoll(2)
        self.stamp("x1poll")
        tk = []
        for mt in range(2):
            for h in range(2):
                I(f"s_add_u32 m0, s{sW8K}, {hx(G_X1 + mt*0x8000 + h*4096)}")
                tk += [I(self.dma(vL16, sG, "m0", i * 1024, "sc1")) for i in range(4)]
        def rd(mt, i, dst): return f"ds_read_b128 {V(dst,4)}, v{XQ+i//8} offset:{mt*0x8000+(i%8)*1024}"
        def B(mt, i): return (XA if mt == 0 else XB) + 4 * i if i < 8 else RG + 4 * (i % 4)
        def mm(mt, i, n): return self.mf(AC + 32 * mt + 16 * n, A((2 * i + n) * 4, 4), V(B(mt, i), 4), '0' if i == 0 else None)
        for h in range(2):
            e.wait(tk[4 * h + 3])
            for i in range(4): I(rd(0, 4 * h + i, XA + 16 * h + 4 * i))
        def bar1(): e.wait(tk[15]); e.barrier()
        def bar2(): e.wait_lg0(); e.barrier()
        main = []
        for i in range(32):
            pre = []
            if i == 5: pre.append((bar1, 8))
            if 8 <= i + 3 < 32: pre.append(rd(0, i + 3, B(0, i + 3)))
            main.append(pre + [mm(0, i, 0)])
            pre = []
            if 6 <= i < 14: pre.append(rd(1, i - 6, XB + 4 * (i - 6)))
            main.append(pre + [mm(0, i, 1)])
        fin = []
        for mt in range(2): fin += self.stat_write(sd4[2 * mt], sd4[2 * mt + 1], ah + 1, mt)
        fin.append((bar2, 8))
        for mt in range(2): fin.append(f"ds_read_b128 {V(t0+4*mt,4)}, v{ah} offset:{mt*1024}")
        for mt in range(2):
            m, r = sd4[2 * mt], sd4[2 * mt + 1]; t = t0 + 4 * mt; b = BA[mt]; s = SD[mt]
            fin += self.stat_fin(t, m, r, s)
            fin += [f"v_cvt_pk_bf16_f32 v{b}, -v{m}, -v{m}", f"v_lshlrev_b32 v{t}, 16, v{b}", f"v_add_f32 v{t}, v{t}, v{m}",
                    f"v_cvt_pk_bf16_f32 v{b+1}, -v{t}, v{s}", f"v_and_b32 v{t+1}, 0xffff0000, v{b+1}", f"v_sub_f32 v{t+1}, v{s}, v{t+1}",
                    f"v_cvt_pk_bf16_f32 v{b+3}, -v{t}, v{t+1}", f"v_mov_b32 v{b+2}, v{b}",
                    f"v_mul_f32 v{t}, v{r}, v{r}", f"v_mul_f32 v{m}, {hx(f2u(C1))}, v{r}", f"v_mul_f32 v{t}, {hx(f2u(0.044715))}, v{t}",
                    f"v_mul_f32 v{r}, v{t}, v{m}"]
        fill = self.dots(sd4[0], sd4[1], XA, 32) + self.dots(sd4[2], sd4[3], XB, 32) + fin
        main = [[(x[0] if isinstance(x, tuple) else x) for x in g_] for g_ in main]
        a, r = interleave(main, fill, 24, start=1)
        e.seq(a); e.seq(r)
        for n in range(2): I(self.mf(AC + 16 * n, V(vAUG + 4 * n, 4), V(BA[0], 4)))
        self.stamp("f1p0")
        def hst(mt, n):
            def f(half, reg):
                def g_():
                    if mt and half == 0: I(f"s_add_u32 s{sT2}, s{sHs+n}, 0x1c000")
                    self.dual([self.st(V(reg, 4), vL16, sG, f"s{sT2 if mt else sHs+n}", half * 1024)])
                return (g_, 14)
            return f
        def w2(i, n):
            o = []
            if i % 4 == 0: o.append(f"s_add_u32 s{sT0+n}, s{sW2o+n}, {i*1024}")
            o.append(self.ld(A((2 * i + n) * 4, 4), vL16x, sWS, f"s{sT0+n}", (i % 4) * 1024, "sc1"))
            return o
        main = []
        for i in range(32):
            pre = []
            if 1 <= i <= 28: pre += w2(i - 1, 1)
            if 8 <= i + 3 < 32: pre.append(rd(1, i + 3, B(1, i + 3)))
            main.append(pre + [mm(1, i, 0)])
            pre = []
            if i < 28: pre += w2(i, 0)
            main.append(pre + [mm(1, i, 1)])
        for n in range(2): main.append([self.mf(AC + 32 + 16 * n, V(vAUG + 4 * n, 4), V(BA[1], 4))])
        fill = []
        for n in range(2): fill += self.gelu(AC + 16 * n, sd4[0], sd4[1], SD[0], vF0, vF0 + 8 + 8 * n, hst(0, n))
        a, r = interleave(main, fill, 34, start=4)
        e.seq(a); e.seq(r)
        self.stamp("f1p1")
        for n in range(2):
            e.seq([(x[0] if isinstance(x, tuple) else x) for x in self.gelu(AC + 32 + 16 * n, sd4[2], sd4[3], SD[1], vF0, vF0 + 8 + 8 * n, hst(1, n))])
        self.stamp("f1done")
        self.publish(4)
    def ffn2(self):
        e = self.e; I = e.I
        RG = 112; TM = 224; PK = 248
        for mt in range(2):
            for i in range(8): I(f"v_mov_b32 v{RES(mt)+8+i}, 0")
        self.gpoll(4)
        self.stamp("hpoll")
        def hl(mt, i):
            o = []
            if i % 4 == 0: o.append(f"s_add_u32 s{sT0}, s{sHl}, {mt*0x1c000 + i*1024}")
            o.append(self.ld(V(RG + 4 * i, 4), vL16, sG, f"s{sT0}", (i % 4) * 1024, "sc1"))
            return o
        def mm(mt, i, n): return self.mf(vACC + 32 * mt + 16 * n, A((2 * i + n) * 4, 4), V(RG + 4 * i, 4), '0' if (i == 0 and n == 1) else None)
        for i in range(28): e.seq(hl(0, i))
        for i in range(28):
            I(mm(0, i, 0)); I(mm(0, i, 1)); e.seq(hl(1, i))
        self.stamp("f2p0")
        main = [[mm(1, i, n)] for i in range(28) for n in range(2)]
        def bar(): e.wait_lg0(); e.barrier()
        fill = self.exw(vACC, 0) + [(bar, 24)] + self.exr(TM, 0)
        fill += [f"s_cmp_eq_u32 s{sLayer}, 0", f"s_cselect_b32 s{sWQ+2}, 0x80000, 0"] + self.wq_dma(vT + 4)
        fill += self.exadd(RES(0), TM, pk=False) + self.pack(PK, RES(0))
        a, r = interleave(main, fill, 20, start=10)
        e.seq(a); e.seq(r)
        e.seq(self.exw(vACC + 32, 0x1800))
        e.wait_lg0(); e.barrier()
        e.seq(self.exr(TM, 0x1800))
        I(f"s_add_u32 s{sT0}, s{sP1K}, {hx(G_X2)}"); I(f"s_add_u32 s{sT1}, s{sP1K}, {hx(G_X2 + 0x8000)}")
        e.seq(self.exadd(RES(1), TM)); e.seq(self.pack(PK + 4, RES(1)))
        self.stamp("f2done")
        I(f"s_cmp_lg_u32 s{sLayer}, 0"); I("s_cbranch_scc1 L_final")
        self.dual([self.st(V(PK + 4 * mt, 4), vL16, sG, f"s{sT0+mt}") for mt in range(2)])
        self.publish(6)
        return PK
    def final(self, PK):
        e = self.e; I = e.I
        e.label("L_final")
        self.srd(sTA, pOUT, 0x200000)
        e.seq(self.rowaddr(vT + 5, vT + 6))
        I(f"s_add_u32 s{sT6}, s{sRow}, 0x8000")
        I(self.st(V(PK, 4), vT + 5, sTA, f"s{sRow}")); I(self.st(V(PK + 4, 4), vT + 5, sTA, f"s{sT6}"))
        if self.stamps: self.dump_stamps(256)
        e.wait_vm0()
        e.label("L_end")
        I("s_endpgm")
    def dump_stamps(self, off):
        I = self.I
        I(f"s_lshl_b32 s{sT5}, s2, 2"); I(f"s_add_u32 s{sT5}, s{sT5}, s{sw}"); I(f"s_lshl_b32 s{sT5}, s{sT5}, 9"); I(f"s_add_u32 s{sT5}, s{sT5}, {hx(STAMP)}")
        I(f"v_lshlrev_b32 v{vT+2}, 2, v{vLane}")
        I(self.st("v47", vT + 2, sWS, f"s{sT5}", off, w=1))

    def build(self):
        e = self.e
        self.prologue()
        self.qkv(True)
        e.label("L_loop")
        self.attention(); self.wo(); self.ffn1(); PK = self.ffn2()
        if self.stamps: self.dump_stamps(0)
        self.qkv(False)
        e.nop(4)
        e.I("s_branch L_loop")
        self.final(PK)
        ref = open(f"cdna_kernels/{NAME}.s.ref").read()
        head = ref[:ref.index("; @launch")]
        out = head + f"; @launch grid=(256,1,1) block=(256,1,1) lds={LDS_BYTES}\n"
        out += f""".amdgcn_target "amdgcn-amd-amdhsa--gfx950"
.text
.globl {NAME}_kernel
.p2align 8
.type {NAME}_kernel,@function
{NAME}_kernel:
"""
        body = e.text()
        out += body + "L_codeend:\n    s_endpgm\n"
        out += f""".section .rodata,"a"
.p2align 6
.amdhsa_kernel {NAME}_kernel
  .amdhsa_next_free_vgpr 512
  .amdhsa_next_free_sgpr 102
  .amdhsa_accum_offset 256
  .amdhsa_group_segment_fixed_size 0
  .amdhsa_kernarg_size 104
  .amdhsa_user_sgpr_count 2
  .amdhsa_user_sgpr_kernarg_segment_ptr 1
  .amdhsa_system_sgpr_workgroup_id_x 1
.end_amdhsa_kernel
"""
        out = out.replace("CODE_SPAN", "(L_end-L_nopf-2048)")
        return out

if __name__ == "__main__":
    import argparse
    ap = argparse.ArgumentParser()
    ap.add_argument("-o", default=f"cdna_kernels/{NAME}.s")
    ap.add_argument("--stamps", action="store_true"); ap.add_argument("--fsa", action="store_true"); ap.add_argument("--fsm", action="store_true")
    ap.add_argument("--nopf", action="store_true"); ap.add_argument("--nops", action="store_true")
    a = ap.parse_args()
    g = Gen(stamps=a.stamps, force_slow_attn=a.fsa, force_slow_mode=a.fsm, codepf=not a.nopf)
    txt = g.build()
    if a.stamps: txt = txt.replace("; @launch", "; stamps: " + ",".join(g.stnames) + "\n; @launch", 1)
    open(a.o, "w").write(txt)
    print("written", a.o, len(txt), "bytes; nops", g.e.nops)
    if a.nops:
        for n, t in g.e.nop_log: print(n, t)
```

```python
import sys, os, math, struct
sys.path.insert(0, os.path.dirname(os.path.abspath(__file__)))
from em import *

NAME = "interleave_layers__grouped_kv_mqa__dense_activation_gelu__prompt"
def f2u(x): return struct.unpack('<I', struct.pack('<f', x))[0]
def hx(x): return hex(x & 0xffffffff)

GF = 0x10000; KVB = 0x40000; W1S = 0x100000; W2S = 0x300000; WOS = 0x500000; STAMP = 0x600000; GRP = 0x800000
WSLIM = 0x800000
G_FL = 0; G_ST = 0x1000; G_X1 = 0x10000; G_X2 = 0x10000; G_O = 0x20000; G_H = 0x20000; G_SZ = 0x58000; G_STR = 0x60000
BIG = 0x10000000
L_K = 0; L_V = 0x10000; L_KVR = 0x20000; L_ST = 0x20000; L_CSR = 0x20800; L_ONES = 0x21000; L_WKV = 0x24000
LDS_BYTES = 0x28000
sWS, sG, sKV, sWQ, sTA, sTB = 4, 8, 12, 16, 20, 24
pX, pWQ, pWK, pWV, pWO, pW1, pB1, pW2, pB2, pOUT, pDBG, pWS = 28, 30, 32, 34, 36, 40, 42, 44, 46, 48, 50, 52
sg, sj, sw, sLayer, sMode, sMyF = 54, 55, 56, 57, 58, 59
sN = 60
sT0, sT1, sT2, sT3, sT4, sT5, sT6, sT7 = 62, 63, 64, 65, 66, 67, 68, 69
sCnt = 70; sOnes = 71
sM = 72
sP1K = 74
sW8K = 75
sW1K = 76
sFlSt = 77
sFlPo = 78
sKVFs = 79
sKVFp = 80
sQ = 81
sW1o = 85
sWOo = 87
sW2o = 89
sHs = 91
sHl = 93
sRow = 94
sKVst = 95
sWQo = 96
sWQl = 98
sSwD = 99
sAug = 100
sSwF = 101
vL16, vL16x, vPoll, vN, vEW, vER, vIdx, vV = 1, 2, 3, 4, 6, 7, 10, 11
vCSKV, vCSQ, vB2, vAUG = 12, 16, 24, 28
vT = 36
vACC = 48
def RES(mt): return vACC + 32 * mt
vF0 = 56; vF1 = 88
vWO = 112
vS = 176; vO = 208; vQ = 240
vLane = 0
vSTAMP = 111 ; vSTAMP0 = 110
POLL_LIM = 1 << 17
RTL = {'attn0': 59, 'attn1': 60, 'f2done': 61}

C1 = -2.0 * math.sqrt(2.0 / math.pi) * math.log2(math.e)
C2 = 0.044715 * C1
QS = 0.25 * math.log2(math.e)


class Gen:
    def __init__(self, stamps=False, force_slow_attn=False, force_slow_mode=False, codepf=True, opt=None):
        self.opt = opt or {}
        self.e = Em(); self.stamps = stamps; self.fsa = force_slow_attn; self.fsm = force_slow_mode
        self.codepf = codepf
        self.nst = 0; self.stnames = []
    def I(self, t): return self.e.I(t)
    def srd(self, d, p, n):
        I = self.I
        I(f"s_mov_b32 s{d}, s{p}"); I(f"s_mov_b32 s{d+1}, s{p+1}")
        I(f"s_mov_b32 s{d+2}, {hx(n)}"); I(f"s_mov_b32 s{d+3}, 0x20000")
    def stamp(self, name):
        if not self.stamps: return
        e = self.e
        e.I(f"s_memtime s[{sM}:{sM+1}]"); e.wait_lg0(force=True)
        e.I(f"v_writelane_b32 v47, s{sM}, {self.nst}")
        self.stnames.append(name); self.nst += 1
        if name in RTL: self.rt(RTL[name])
    def rt(self, lane):
        if not self.stamps: return
        e = self.e
        e.I(f"s_memrealtime s[{sM}:{sM+1}]"); e.wait_lg0(force=True)
        e.I(f"v_writelane_b32 v47, s{sM}, {lane}")
    def ld(self, dst, voff, srd, soff, imm=0, fl="", w=4):
        mn = {4: "dwordx4", 2: "dwordx2", 1: "dword"}[w]
        return f"buffer_load_{mn} {dst}, v{voff}, s[{srd}:{srd+3}], {soff} offen" + (f" offset:{imm}" if imm else "") + (" " + fl if fl else "")
    def dma(self, voff, srd, soff, imm=0, fl=""):
        return f"buffer_load_dwordx4 v{voff}, s[{srd}:{srd+3}], {soff} offen" + (f" offset:{imm}" if imm else "") + (" " + fl if fl else "") + " lds"
    def st(self, src, voff, srd, soff, imm=0, fl="", w=4):
        mn = {4: "dwordx4", 2: "dwordx2", 1: "dword"}[w]
        return f"buffer_store_{mn} {src}, v{voff}, s[{srd}:{srd+3}], {soff} offen" + (f" offset:{imm}" if imm else "") + (" " + fl if fl else "")
    def dual(self, stores):
        e = self.e
        lab = e.newlab("L_sl"); back = e.newlab("L_bk")
        regs = []
        for s in stores: regs += regs_of(s)
        e._autowait(regs)
        e.I(f"s_cmp_lg_u32 s{sMode}, 0"); e.I(f"s_cbranch_scc1 {lab}")
        toks = [e.I(s) for s in stores]
        e.label(back)
        e.tail += [lab + ":", "    s_nop 7", "    s_nop 7"]
        e.tail += ["    " + (s + " sc1" if s.startswith("buffer_") else s) for s in stores]
        e.tail += [f"    s_branch {back}"]
        return toks
    def publish(self, slot):
        e = self.e
        e.wait_vm0()
        e.I("s_mov_b64 exec, 1")
        self.dual([self.st(V(vN, 2), vPoll, sG, f"s{sFlSt}", slot * 8, w=2)])
        e.I("s_mov_b64 exec, -1")
    def poll(self, srd, soff, imm, nl, kv=False):
        e = self.e
        lab = e.newlab("L_poll")
        if nl < 64: e.I(f"s_mov_b64 exec, {hex((1 << nl) - 1)}")
        e.I(f"s_mov_b32 s{sCnt}, 0")
        e.label(lab)
        e.I(self.ld(V(vT, 2), vPoll, srd, soff, imm, "sc1", w=2))
        e.I(f"s_add_u32 s{sCnt}, s{sCnt}, 1"); e.I(f"s_cmp_gt_u32 s{sCnt}, {POLL_LIM}"); e.I("s_cbranch_scc1 L_end")
        e.wait_vm0()
        if kv: e.I(f"v_and_b32 v{vT}, -16, v{vT}")
        e.I(f"v_cmp_ne_u64 vcc, s[{sN}:{sN+1}], {V(vT, 2)}")
        e.I(f"s_cbranch_vccnz {lab}")
        if nl < 64: e.I("s_mov_b64 exec, -1")
    def gpoll(self, slot): self.poll(sG, f"s{sFlPo}", slot * 8, 8)
    def mf(self, d, a, b, c=None):
        return f"v_mfma_f32_32x32x16_bf16 {V(d,16)}, {a}, {b}, {V(d,16) if c is None else c}"
    def mf16(self, d, a, b, first):
        return f"v_mfma_f32_16x16x32_bf16 {V(d,4)}, {a}, {b}, {'0' if first else V(d,4)}"
    def exw(self, acc, area, ew=vEW):
        return [f"ds_write_b128 v{ew}, {V(acc+8*q+4*h,4)} offset:{area+(q-1)*2048+h*1024}" for q in (1, 2, 3) for h in (0, 1)]
    def exr(self, tmp, area, er=vER):
        return [f"ds_read_b128 {V(tmp+8*(q-1)+4*h,4)}, v{er+q-1} offset:{area+h*1024}" for q in (1, 2, 3) for h in (0, 1)]
    def exadd(self, dst, tmp, pk=True):
        if pk: return [f"v_pk_add_f32 {V(dst+i,2)}, {V(dst+i,2)}, {V(tmp+8*q+i,2)}" for q in range(3) for i in (0, 2, 4, 6)]
        return [f"v_add_f32 v{dst+i}, v{dst+i}, v{tmp+8*q+i}" for q in range(3) for i in range(8)]
    def pack(self, dst, src, n=4):
        return [f"v_cvt_pk_bf16_f32 v{dst+i}, v{src+2*i}, v{src+2*i+1}" for i in range(n)]
    def dots(self, s, q, x, n):
        out = []
        for i in range(n):
            out.append((f"v_dot2c_f32_bf16 v{s}, s{sOnes}, v{x+i}", 8))
            out.append((f"v_dot2c_f32_bf16 v{q}, v{x+i}, v{x+i}", 8))
        return out
    def stat_write(self, s, q, addr, mt):
        return [f"v_permlane32_swap_b32 v{s}, v{q}", f"v_add_f32 v{s}, v{s}, v{q}", f"ds_write_b32 v{addr}, v{s} offset:{mt*1024}"]
    def stat_fin(self, t, m, r, sd=None):
        o = [f"v_add_f32 v{t}, v{t}, v{t+1}", f"v_add_f32 v{t+2}, v{t+2}, v{t+3}", f"v_add_f32 v{t}, v{t}, v{t+2}",
             f"v_mul_f32 v{m}, {hx(f2u(1/512))}, v{t}", f"v_mul_f32 v{t}, {hx(f2u(1/512))}, v{t}",
             f"v_permlane32_swap_b32 v{m}, v{t}",
             f"v_fma_f32 v{t}, -v{m}, v{m}, v{t}", f"v_max_f32 v{t}, 0, v{t}", f"v_add_f32 v{t}, {hx(f2u(1e-5))}, v{t}",
             f"v_rsq_f32 v{r}, v{t}"]
        if sd is not None: o.append(f"v_mul_f32 v{sd}, v{t}, v{r}")
        return o

    def prologue(self):
        e = self.e; I = e.I
        I("s_cmp_ge_u32 s2, 256"); I("s_cbranch_scc1 L_end")
        I("s_load_dwordx16 s[28:43], s[0:1], 0"); I("s_load_dwordx8 s[44:51], s[0:1], 64"); I("s_load_dwordx2 s[52:53], s[0:1], 96")
        if self.stamps: I("v_mov_b32 v47, 0")
        I(f"v_lshrrev_b32 v{vT}, 6, v0"); I(f"v_and_b32 v{vLane}, 63, v0")
        I(f"v_readfirstlane_b32 s{sw}, v{vT}")
        I(f"s_and_b32 s{sg}, s2, 7"); I(f"s_lshl_b32 s{sg}, s{sg}, 2"); I(f"s_lshr_b32 s{sT0}, s2, 6"); I(f"s_add_u32 s{sg}, s{sg}, s{sT0}")
        I(f"s_lshr_b32 s{sj}, s2, 3"); I(f"s_and_b32 s{sj}, s{sj}, 7")
        I(f"s_and_b32 s{sw}, s{sw}, 3")
        I(f"v_lshlrev_b32 v{vL16}, 4, v{vLane}")
        I(f"v_lshrrev_b32 v{vT+4}, 4, v{vLane}"); I(f"v_and_b32 v{vT+5}, 15, v{vLane}")
        for qq in range(4):
            I(f"v_add_u32 v{vT+6}, {4*qq}, v{vT+4}")
            I(f"v_xor_b32 v{vT+7}, v{vT+6}, v{vT+5}")
            I(f"v_add_u32 v{vT+6}, {3*qq}, v{vT+4}")
            I(f"v_lshlrev_b32 v{vT+6}, 10, v{vT+6}")
            I(f"v_lshl_add_u32 v{vT+qq}, v{vT+7}, 4, v{vT+6}")
        I(f"s_lshl_b32 s{sW1K}, s{sw}, 10"); I(f"s_lshl_b32 s{sW8K}, s{sw}, 13")
        I(f"s_lshl_b32 s{sT1}, s{sw}, 12")
        I(f"s_add_u32 m0, s{sT1}, {hx(L_WKV)}")
        I(f"s_lshl_b32 s{sT2}, s{sg}, 16"); I(f"s_lshl_b32 s{sT3}, s{sw}, 8"); I(f"s_add_u32 s{sT2}, s{sT2}, s{sT3}")
        I(f"s_lshl_b32 s{sT3}, s{sw}, 14")
        I(f"s_lshr_b32 s{sT4}, s{sj}, 1")
        e.wait_lg0(force=True)
        self.stamp("start"); self.rt(62)
        I(f"s_load_dwordx2 s[{sN}:{sN+1}], s[{pWS}:{pWS+1}], 0")
        I(f"s_bitcmp1_b32 s{sj}, 0"); I(f"s_cselect_b64 s[{sTB}:{sTB+1}], s[{pWV}:{pWV+1}], s[{pWK}:{pWK+1}]")
        I(f"s_mov_b32 s{sTB+2}, 16384"); I(f"s_mov_b32 s{sTB+3}, 0x20000")
        self.srd(sTA, pX, 0x200000)
        self.tk_wkv = [I(self.dma(vL16, sTB, f"s{sT1}", q * 1024)) for q in range(4)]
        self.tk_x = []
        for i in range(4):
            I(f"s_xor_b32 s{sT5}, s{sT4}, {i}")
            I(f"s_lshl_b32 s{sT6}, s{sT5}, 12"); I(f"s_add_u32 m0, s{sT6}, s{sT3}")
            I(f"s_lshl_b32 s{sT5}, s{sT5}, 14"); I(f"s_add_u32 s{sT5}, s{sT5}, s{sT2}")
            self.tk_x.append([I(self.dma(vT + qq, sTA, f"s{sT5}", qq * 1024)) for qq in range(4)])
        self.srd(sWQ, pWQ, 0x80000)
        I(f"s_add_u32 s{sWQl}, s{sT3}, {hx(L_V)}")
        I(f"s_lshl_b32 s{sT5}, s{sw}, 17"); I(f"s_lshl_b32 s{sT6}, s{sj}, 7"); I(f"s_add_u32 s{sT5}, s{sT5}, s{sT6}")
        I(f"s_lshr_b32 s{sT6}, s{sw}, 1"); I(f"s_lshl_b32 s{sT6}, s{sT6}, 6")
        I(f"s_add_u32 s{sWQo}, s{sT5}, s{sT6}"); I(f"s_xor_b32 s{sT6}, s{sT6}, 64"); I(f"s_add_u32 s{sWQo+1}, s{sT5}, s{sT6}")
        self.tk_wq = [t for t in (I(x) for x in self.wq_dma(vT + 4)) if t]
        I(f"s_lshl_b32 s{sP1K}, s{sj}, 2"); I(f"s_add_u32 s{sP1K}, s{sP1K}, s{sw}")
        I(f"s_lshl_b32 s{sT5}, s{sP1K}, 5")
        I(f"s_lshl_b32 s{sRow}, s{sg}, 16"); I(f"s_add_u32 s{sRow}, s{sRow}, s{sT5}")
        e.seq(self.rowaddr(vT + 5, vT + 6))
        I(f"s_add_u32 s{sT6}, s{sRow}, 0x8000")
        I(self.ld(V(vF0 + 16, 4), vT + 5, sTA, f"s{sRow}")); I(self.ld(V(vF0 + 20, 4), vT + 5, sTA, f"s{sT6}"))
        self.srd(sTB, pB2, 1024)
        I(self.ld(V(vB2, 4), vT + 6, sTB, f"s{sT5}"))
        if self.codepf:
            I(f"s_getpc_b64 s[{sT6}:{sT7}]")
            I(f"s_lshl_b32 s{sT5}, s{sP1K}, 11")
            I(f"s_add_u32 s{sT6}, s{sT6}, s{sT5}"); I(f"s_addc_u32 s{sT7}, s{sT7}, 0")
            I(f"v_and_b32 v{vT+8}, 15, v{vLane}"); I(f"v_lshlrev_b32 v{vT+8}, 7, v{vT+8}")
            I(f"v_mov_b32 v{vT+9}, s{sT7}"); I(f"v_add_co_u32 v{vT+8}, vcc, s{sT6}, v{vT+8}"); I(f"v_addc_co_u32 v{vT+9}, vcc, 0, v{vT+9}, vcc")
            I(f"s_cmp_ge_u32 s{sT5}, CODE_SPAN"); I("s_cbranch_scc1 L_nopf")
            e.begin_opt(); I(f"global_load_dword v{vAUG+1}, v[{vT+8}:{vT+9}], off"); e.end_opt()
            e.label("L_nopf")
        I(f"s_lshl_b32 s{sFlSt}, s{sP1K}, 7"); I(f"s_add_u32 s{sFlSt}, s{sFlSt}, {hx(G_FL)}")
        I(f"s_add_u32 s{sFlPo}, s{sW1K}, {hx(G_FL)}")
        I(f"s_lshl_b32 s{sP1K}, s{sP1K}, 10")
        self.srd(sWS, pWS, WSLIM)
        I(f"s_mul_i32 s{sT5}, s{sg}, {hx(G_STR)}"); I(f"s_add_u32 s{sT5}, s{sT5}, {hx(GRP)}")
        I(f"s_add_u32 s{sG}, s{pWS}, s{sT5}"); I(f"s_addc_u32 s{sG+1}, s{pWS+1}, 0"); I(f"s_mov_b32 s{sG+2}, {hx(G_SZ)}"); I(f"s_mov_b32 s{sG+3}, 0x20000")
        I(f"s_add_u32 s{sKV}, s{pWS}, {hx(KVB)}"); I(f"s_addc_u32 s{sKV+1}, s{pWS+1}, 0"); I(f"s_mov_b32 s{sKV+2}, 0x20000"); I(f"s_mov_b32 s{sKV+3}, 0x20000")
        I(f"s_mov_b32 s{sLayer}, 0"); I(f"s_mov_b32 s{sMode}, 1"); I(f"s_mov_b32 s{sOnes}, 0x3f803f80")
        I(f"s_lshr_b32 s{sT5}, s{sg}, 3"); I(f"s_and_b32 s{sT6}, s{sg}, 7")
        I(f"s_lshl_b32 s{sKVFs}, s{sT5}, 6"); I(f"s_lshl_b32 s{sT7}, s{sT6}, 2"); I(f"s_add_u32 s{sKVFs}, s{sKVFs}, s{sT7}")
        I(f"s_add_u32 s{sKVst}, s{sT7}, s{sT5}")
        I(f"s_lshr_b32 s{sT7}, s{sj}, 2"); I(f"s_lshl_b32 s{sT7}, s{sT7}, 5")
        I(f"s_add_u32 s{sKVFs}, s{sKVFs}, s{sT7}"); I(f"s_add_u32 s{sKVst}, s{sKVst}, s{sT7}")
        I(f"s_and_b32 s{sT7}, s{sj}, 3"); I(f"s_add_u32 s{sKVFs}, s{sKVFs}, s{sT7}")
        I(f"s_lshl_b32 s{sKVFs}, s{sKVFs}, 7"); I(f"s_add_u32 s{sKVFs}, s{sKVFs}, {hx(GF)}")
        I(f"s_add_u32 s{sKVFp}, s{sW8K}, {hx(GF)}")
        I(f"s_lshl_b32 s{sKVst}, s{sKVst}, 10")
        I(f"s_and_b32 s{sT5}, s{sT4}, 1"); I(f"s_lshl_b32 s{sT5}, s{sT5}, 8"); I(f"s_and_b32 s{sT6}, s{sj}, 1")
        I(f"s_lshl_b32 s{sT5}, s{sT5}, s{sT6}"); I(f"s_lshl_b32 s{sT6}, s{sT6}, 16")
        I(f"s_add_u32 s{sKVst}, s{sKVst}, s{sT5}"); I(f"s_add_u32 s{sKVst}, s{sKVst}, s{sT6}")
        for q in range(4): I(f"s_xor_b32 s{sQ+q}, s{sW8K}, {q*8192}")
        I(f"s_mul_i32 s{sT5}, s{sj}, 7"); I(f"s_lshl_b32 s{sT6}, s{sw}, 1"); I(f"s_add_u32 s{sT5}, s{sT5}, s{sT6}")
        I(f"s_mul_i32 s{sW1o}, s{sT5}, {33*1024}"); I(f"s_add_u32 s{sW1o}, s{sW1o}, {hx(W1S)}")
        I(f"s_lshl_b32 s{sHs}, s{sT5}, 11"); I(f"s_add_u32 s{sHs}, s{sHs}, {hx(G_H)}")
        I(f"s_cmp_eq_u32 s{sw}, 3"); I(f"s_cselect_b32 s{sT6}, {hx(BIG)}, 0")
        I(f"s_add_u32 s{sW1o+1}, s{sW1o}, {33*1024}"); I(f"s_add_u32 s{sW1o+1}, s{sW1o+1}, s{sT6}")
        I(f"s_add_u32 s{sHs+1}, s{sHs}, 2048"); I(f"s_add_u32 s{sHs+1}, s{sHs+1}, s{sT6}")
        I(f"s_mul_i32 s{sHl}, s{sw}, {28*1024}")
        I(f"s_lshr_b32 s{sT6}, s{sw}, 1"); I(f"s_lshl_b32 s{sT5}, s{sj}, 1"); I(f"s_add_u32 s{sT5}, s{sT5}, s{sT6}")
        for n in range(2):
            if n: I(f"s_xor_b32 s{sT5}, s{sT5}, 1")
            I(f"s_lshl_b32 s{sWOo+n}, s{sT5}, 15"); I(f"s_add_u32 s{sWOo+n}, s{sWOo+n}, s{sW8K}"); I(f"s_add_u32 s{sWOo+n}, s{sWOo+n}, {hx(WOS)}")
            I(f"s_mul_i32 s{sW2o+n}, s{sT5}, {112*1024}"); I(f"s_add_u32 s{sW2o+n}, s{sW2o+n}, s{sHl}"); I(f"s_add_u32 s{sW2o+n}, s{sW2o+n}, {hx(W2S)}")
        I(f"s_add_u32 s{sHl}, s{sHl}, {hx(G_H)}")
        I(f"s_and_b32 s{sT5}, s{sw}, 1"); I(f"s_lshl_b32 s{sT5}, s{sT5}, 8"); I(f"v_xor_b32 v{vL16x}, s{sT5}, v{vL16}")
        I(f"v_lshlrev_b32 v{vPoll}, 7, v{vLane}")
        I(f"v_add_u32 v{vEW}, s{sT3}, v{vL16}")
        for q in (1, 2, 3):
            I(f"v_xor_b32 v{vER+q-1}, {hx(q*0x4000)}, v{vEW}")
            if q > 1: I(f"v_add_u32 v{vER+q-1}, {(q-1)*2048}, v{vER+q-1}")
        I(f"v_mov_b32 v{vIdx}, 0xdddddddd")
        e.wait_lg0(force=True)
        I(f"s_add_u32 s{sN}, s{sN}, 16"); I(f"s_addc_u32 s{sN+1}, s{sN+1}, 0"); I(f"s_and_b32 s{sN}, s{sN}, -16")
        I(f"s_getreg_b32 s{sT5}, hwreg(HW_REG_XCC_ID, 0, 4)"); I(f"s_or_b32 s{sMyF}, s{sN}, s{sT5}")
        I(f"v_mov_b32 v{vN}, s{sN}"); I(f"v_mov_b32 v{vN+1}, s{sN+1}")

    def rowaddr(self, d, hh16):
        return [f"v_lshrrev_b32 v{hh16}, 5, v{vLane}", f"v_lshlrev_b32 v{hh16}, 4, v{hh16}", f"v_and_b32 v{d}, 31, v{vLane}",
                f"v_lshl_add_u32 v{d}, v{d}, 10, v{hh16}"]
    def wq_dma(self, va):
        o = [f"v_lshrrev_b32 v{va}, 2, v{vLane}", f"v_lshlrev_b32 v{va}, 10, v{va}", f"v_and_or_b32 v{va}, v{vL16}, 48, v{va}"]
        for ks in range(8):
            for n in range(2):
                o += [f"s_add_u32 m0, s{sWQl}, {(2*ks+n)*1024}", f"s_add_u32 s{sT7}, s{sWQo+n}, {ks*16384}", self.dma(va, sWQ, f"s{sT7}")]
        return o
    def traddr(self, d, t, swapw):
        o = [f"v_lshrrev_b32 v{d}, 5, v{vLane}", f"v_lshlrev_b32 v{d}, 9, v{d}",
             f"v_bfe_u32 v{t}, v{vLane}, 2, 2", f"v_lshl_or_b32 v{d}, v{t}, 6, v{d}",
             f"v_bfe_u32 v{t}, v{vL16x if swapw else vL16}, 8, 1", f"v_lshl_or_b32 v{d}, v{t}, 5, v{d}",
             f"v_and_b32 v{t}, 1, v{vLane}", f"v_lshl_or_b32 v{d}, v{t}, 4, v{d}",
             f"v_bfe_u32 v{t}, v{vLane}, 1, 1", f"v_lshl_or_b32 v{d}, v{t}, 3, v{d}",
             f"v_add_u32 v{d}, s{sWQl}, v{d}"]
        return o
    def wkv_reads(self, W):
        a = vT + 6; t = vT + 7
        o = [f"v_lshrrev_b32 v{a}, 4, v{vLane}", f"v_lshlrev_b32 v{a}, 8, v{a}", f"v_and_b32 v{t}, 15, v{vLane}",
             f"v_lshl_or_b32 v{a}, v{t}, 3, v{a}", f"s_lshl_b32 s{sT5}, s{sw}, 12", f"s_add_u32 s{sT5}, s{sT5}, {hx(L_WKV)}",
             f"v_add_u32 v{a}, s{sT5}, v{a}"]
        for s in range(4):
            for h in range(2): o.append(f"ds_read_b64_tr_b16 {V(W+4*s+2*h,2)}, v{a} offset:{s*1024+h*128}")
        return o
    def wq_reads(self):
        a = vT + 6
        o = self.traddr(a, vT + 7, True)
        for f in range(16):
            for h in range(2): o.append(f"ds_read_b64_tr_b16 {A(4*f+2*h,2)}, v{a} offset:{f*1024+h*256}")
        return o

    def qkv(self, first):
        e = self.e; I = e.I
        W = vF0; XK = 240; X = 176; AQ = 112; ONE = vF1 + 16
        acc, sm, cs, gr = vF1, vF1 + 4, vF1 + 8, vF1 + 12
        for i in range(4): I(f"v_mov_b32 v{ONE+i}, s{sOnes}")
        I(f"s_lshr_b32 s{sT4}, s{sj}, 1")
        if first:
            a = vT + 8
            I(f"v_and_b32 v{vT+4}, 15, v{vLane}"); I(f"v_lshrrev_b32 v{vT+5}, 4, v{vLane}")
            I(f"v_xor_b32 v{vT+5}, v{vT+5}, v{vT+4}"); I(f"v_lshlrev_b32 v{vT+5}, 4, v{vT+5}")
            I(f"v_lshl_or_b32 v{a}, v{vT+4}, 8, v{vT+5}")
            I(f"s_lshl_b32 s{sT5}, s{sT4}, 12"); I(f"s_lshl_b32 s{sT6}, s{sw}, 14"); I(f"s_add_u32 s{sT5}, s{sT5}, s{sT6}")
            I(f"v_add_u32 v{a}, s{sT5}, v{a}")
            o = self.wkv_reads(W)
            e.seq(o[:7]); e.wait(*self.tk_wkv); e.seq(o[7:])
            e.wait(*self.tk_x[0])
            for s in range(4):
                if s: I(f"v_xor_b32 v{a+1}, {s*64}, v{a}")
                I(f"ds_read_b128 {V(XK+4*s,4)}, v{a+(1 if s else 0)}")
            e.wait_lg0()
        else:
            e.seq(self.wkv_reads(W)); e.seq(self.wq_reads())
            a = vT + 8
            I(f"v_lshrrev_b32 v{a}, 4, v{vLane}"); I(f"v_lshlrev_b32 v{a}, 9, v{a}"); I(f"v_and_b32 v{a+1}, 0xf0, v{vL16}"); I(f"v_or_b32 v{a}, v{a}, v{a+1}")
            I(f"s_lshr_b32 s{sT5}, s{sT4}, 1"); I(f"s_lshl_b32 s{sT5}, s{sT5}, 15"); I(f"s_and_b32 s{sT6}, s{sT4}, 1"); I(f"s_lshl_b32 s{sT6}, s{sT6}, 8")
            I(f"s_add_u32 s{sT5}, s{sT5}, s{sT6}"); I(f"s_add_u32 s{sT0}, s{sW8K}, {hx(G_X2)}"); I(f"s_add_u32 s{sT5}, s{sT5}, s{sT0}")
            I(f"s_add_u32 s{sT6}, s{sT5}, 4096")
            e.wait_lg0()
            self.gpoll(6)
            self.stamp("x2poll")
            tk = [I(self.ld(V(XK + 4 * s, 4), a, sG, f"s{sT5 + (s >> 1)}", (s & 1) * 2048, "sc1")) for s in range(4)]
            for mt in range(2):
                for ks in range(8):
                    if ks % 4 == 0: I(f"s_add_u32 s{sT1}, s{sT0}, {mt*0x8000 + ks*1024}")
                    I(self.ld(V(X + (mt * 8 + ks) * 4, 4), vL16, sG, f"s{sT1}", (ks % 4) * 1024, "sc1"))
            I(f"s_add_u32 s{sFlSt}, s{sFlSt}, 64"); I(f"s_add_u32 s{sFlPo}, s{sFlPo}, 64")
            I(f"s_add_u32 s{sKV}, s{sKV}, 0x20000"); I(f"s_addc_u32 s{sKV+1}, s{sKV+1}, 0")
            I(f"s_add_u32 s{sKVFs}, s{sKVFs}, 0x8000"); I(f"s_add_u32 s{sKVFp}, s{sKVFp}, 0x8000")
            I(f"s_mov_b32 s{sLayer}, 1")
            e.wait(*tk)
        self.stamp("kvx")
        lv = e.newlab("L_kvv"); lj = e.newlab("L_kvj")
        I(f"s_bitcmp1_b32 s{sj}, 0"); I(f"s_cbranch_scc1 {lv}")
        for typ in range(2):
            e.begin_opt()
            for s in range(4):
                x = V(XK + 4 * s, 4); w = V(W + 4 * s, 4); one = V(ONE, 4)
                pr = (lambda a, b: (a, b)) if typ == 0 else (lambda a, b: (b, a))
                I(self.mf16(acc, *pr(w, x), s == 0)); I(self.mf16(sm, *pr(one, x), s == 0)); I(self.mf16(gr, x, x, s == 0))
                if first: I(self.mf16(cs, *pr(w, one), s == 0))
            if typ == 0: I(f"s_branch {lj}")
            e.end_opt()
            if typ == 0: e.label(lv)
        e.label(lj)
        ah = vT + 4
        I(f"v_add_u32 v{ah}, {hx(L_KVR)}, v{vL16}")
        I(f"s_lshl_b32 s{sT5}, s{sw}, 12"); I(f"v_add_u32 v{ah+1}, s{sT5}, v{ah}")
        I(f"ds_write_b128 v{ah+1}, {V(gr,4)} offset:{0xC00}")
        l0 = e.newlab("L_kvw")
        I(f"s_cmp_eq_u32 s{sw}, 0"); I(f"s_cbranch_scc1 {l0}")
        e.begin_opt()
        I(f"ds_write_b128 v{ah+1}, {V(acc,4)}"); I(f"ds_write_b128 v{ah+1}, {V(sm,4)} offset:{0x400}")
        if first: I(f"ds_write_b128 v{ah+1}, {V(cs,4)} offset:{0x800}")
        e.end_opt(); e.label(l0)
        ga = vT + 6; gs = sT6; sa = vT + 7; n16 = vT + 8; q = vT + 9; t = vT + 10
        I(f"v_and_b32 v{n16}, 15, v{vLane}"); I(f"v_lshrrev_b32 v{q}, 4, v{vLane}")
        lv = e.newlab("L_kvv"); lj = e.newlab("L_kvj")
        I(f"s_bitcmp1_b32 s{sj}, 0"); I(f"s_cbranch_scc1 {lv}")
        e.begin_opt()
        I(f"v_lshrrev_b32 v{ga}, 2, v{n16}"); I(f"v_lshlrev_b32 v{ga}, 8, v{ga}"); I(f"v_lshl_or_b32 v{ga}, v{n16}, 4, v{ga}")
        I(f"v_and_b32 v{t}, 3, v{n16}"); I(f"v_lshl_or_b32 v{ga}, v{t}, 2, v{ga}"); I(f"s_mov_b32 s{gs}, 0")
        I(f"v_lshrrev_b32 v{sa}, 1, v{q}"); I(f"v_lshlrev_b32 v{sa}, 9, v{sa}"); I(f"v_lshl_or_b32 v{sa}, v{n16}, 4, v{sa}")
        I(f"s_branch {lj}")
        e.end_opt(); e.label(lv); e.begin_opt()
        I(f"v_mul_u32_u24 v{ga}, 0x140, v{q}"); I(f"s_mov_b32 s{gs}, 20")
        I(f"v_lshrrev_b32 v{sa}, 1, v{q}"); I(f"v_lshlrev_b32 v{sa}, 8, v{sa}")
        I(f"v_and_b32 v{t}, 3, v{n16}"); I(f"v_lshl_or_b32 v{sa}, v{t}, 4, v{sa}")
        I(f"v_bfe_u32 v{t}, v{n16}, 2, 1"); I(f"v_lshl_or_b32 v{sa}, v{t}, 7, v{sa}")
        I(f"v_bfe_u32 v{t}, v{n16}, 3, 1"); I(f"v_lshl_or_b32 v{sa}, v{t}, 6, v{sa}")
        e.end_opt(); e.label(lj)
        I(f"v_and_b32 v{t}, 1, v{q}"); I(f"v_lshl_or_b32 v{sa}, v{t}, 3, v{sa}")
        I(f"v_add_u32 v{ga}, {hx(L_KVR + 0xC00)}, v{ga}")
        g1 = vT + 8
        I(f"v_add_u32 v{g1}, s{gs}, v{ga}"); I(f"v_add_u32 v{g1+1}, s{gs}, v{g1}"); I(f"v_add_u32 v{g1+2}, s{gs}, v{g1+1}")
        gaddr = [ga, g1, g1 + 1, g1 + 2]
        e.wait_lg0(force=True); e.barrier()
        lf = e.newlab("L_kvf")
        I(f"s_cmp_lg_u32 s{sw}, 0"); I(f"s_cbranch_scc1 {lf}")
        e.begin_opt()
        tg = AQ; ts = AQ + 16; ta = AQ + 28; tc = AQ + 40
        for w2 in range(4):
            for r in range(4): I(f"ds_read_b32 v{tg+4*w2+r}, v{gaddr[r]} offset:{w2*0x1000}")
            if w2: I(f"ds_read_b128 {V(ts+4*(w2-1),4)}, v{ah} offset:{w2*0x1000+0x400}")
        for w2 in range(1, 4):
            I(f"ds_read_b128 {V(ta+4*(w2-1),4)}, v{ah} offset:{w2*0x1000}")
            if first: I(f"ds_read_b128 {V(tc+4*(w2-1),4)}, v{ah} offset:{w2*0x1000+0x800}")
        def padd(d, s): I(f"v_pk_add_f32 {V(d,2)}, {V(d,2)}, {V(s,2)}"); I(f"v_pk_add_f32 {V(d+2,2)}, {V(d+2,2)}, {V(s+2,2)}")
        for w2 in range(1, 4): padd(tg, tg + 4 * w2); padd(sm, ts + 4 * (w2 - 1))
        k = hx(f2u(1 / 512))
        for r in range(4): I(f"v_mul_f32 v{sm+r}, {k}, v{sm+r}")
        for r in range(4): I(f"v_mul_f32 v{tg+r}, {k}, v{tg+r}")
        for r in range(4): I(f"v_fma_f32 v{tg+r}, -v{sm+r}, v{sm+r}, v{tg+r}")
        for r in range(4): I(f"v_max_f32 v{tg+r}, 0, v{tg+r}")
        for r in range(4): I(f"v_add_f32 v{tg+r}, {hx(f2u(1e-5))}, v{tg+r}")
        for r in range(4): I(f"v_rsq_f32 v{tg+r}, v{tg+r}")
        for w2 in range(1, 4):
            padd(acc, ta + 4 * (w2 - 1))
            if first: padd(cs, tc + 4 * (w2 - 1))
        if first:
            for r in range(4): I(f"v_mov_b32 v{vCSKV+r}, v{cs+r}")
        for r in range(4): I(f"v_fma_f32 v{acc+r}, -v{sm+r}, v{vCSKV+r}, v{acc+r}")
        for r in range(4): I(f"v_mul_f32 v{acc+r}, v{acc+r}, v{tg+r}")
        e.seq(self.pack(acc, acc, 2))
        I(self.st(V(acc, 2), sa, sKV, f"s{sKVst}", 0, "sc1", w=2))
        I(f"v_mov_b32 v{tg}, s{sMyF}"); I(f"v_mov_b32 v{tg+1}, s{sN+1}")
        e.wait_vm0()
        I("s_mov_b64 exec, 1"); I(self.st(V(tg, 2), vPoll, sWS, f"s{sKVFs}", 0, "sc1", w=2)); I("s_mov_b64 exec, -1")
        e.end_opt(); e.label(lf)
        self.stamp("kvdone")
        sd = [vF1, vF1 + 1, vF1 + 2, vF1 + 3]
        if first:
            a = vT + 8
            I(f"v_and_b32 v{a+1}, 31, v{vLane}"); I(f"v_lshrrev_b32 v{a}, 5, v{vLane}"); I(f"v_xor_b32 v{a}, v{a}, v{a+1}")
            I(f"v_and_b32 v{a}, 15, v{a}"); I(f"v_lshlrev_b32 v{a}, 4, v{a}"); I(f"v_lshl_or_b32 v{a}, v{a+1}, 8, v{a}")
            I(f"s_lshl_b32 s{sT6}, s{sw}, 14"); I(f"v_add_u32 v{a}, s{sT6}, v{a}")
            e.wait(*self.tk_x[3])
            for ks in range(8):
                if ks: I(f"v_xor_b32 v{a+1}, {ks*32}, v{a}")
                for mt in range(2): I(f"ds_read_b128 {V(X+(mt*8+ks)*4,4)}, v{a+(1 if ks else 0)} offset:{mt*8192}")
            o = self.wq_reads()
            e.seq(o[:11]); e.wait(*self.tk_wq); e.seq(o[11:])
            self.swz_setup()
            for mt in range(2):
                for i in range(4):
                    I(f"v_lshlrev_b32 v{RES(mt)+2*i}, 16, v{vF0+16+4*mt+i}"); I(f"v_and_b32 v{RES(mt)+2*i+1}, 0xffff0000, v{vF0+16+4*mt+i}")
            e.wait_lg0()
            self.swz_dma()
            self.stamp("wqrd")
            c = AQ + 32
            for ks in range(8):
                for n in range(2): I(self.mf(c + 16 * n, A((2 * ks + n) * 4, 4), V(ONE, 4), '0' if ks == 0 else None))
        for r in sd: I(f"v_mov_b32 v{r}, 0")
        main = []
        for mt in range(2):
            for ks in range(8):
                for n in range(2): main.append([self.mf(AQ + 32 * mt + 16 * n, A((2 * ks + n) * 4, 4), V(X + (mt * 8 + ks) * 4, 4), '0' if ks == 0 else None)])
        fill0 = []
        if first:
            fill0 = [f"v_add_u32 v{vT+8}, 0x10000, v{vEW}"] + self.exw(AQ + 32, 0, vT + 8) + [f"v_mov_b32 v{vCSQ+i}, v{AQ+32+i}" for i in range(8)]
        d0 = self.dots(sd[0], sd[1], X, 32); d1 = self.dots(sd[2], sd[3], X + 32, 32)
        a, r0 = interleave(main[:16], d0[:24] + fill0 + d0[24:], 24)
        e.seq(a); e.seq(r0)
        a, r1 = interleave(main[16:], d1[:12] + self.exw(AQ, 0) + d1[12:], 24)
        e.seq(a); e.seq(r1)
        e.seq(self.exw(AQ + 32, 0x1800))
        I(f"s_lshl_b32 s{sT5}, s{sw}, 2"); I(f"v_add_u32 v{ah+1}, s{sT5}, v{ah}")
        for mt in range(2): e.seq(self.stat_write(sd[2 * mt], sd[2 * mt + 1], ah + 1, mt))
        e.wait_lg0(); e.barrier()
        t0 = vF1 + 4
        for mt in range(2): I(f"ds_read_b128 {V(t0+4*mt,4)}, v{ah} offset:{mt*1024}")
        if first:
            for q in range(3): I(f"v_add_u32 v{vT+8+q}, 0x10000, v{vER+q}")
            e.seq(self.exr(vF0, 0, vT + 8))
        for mt in range(2): e.seq(self.exr(X + 24 * mt, 0x1800 * mt))
        I(f"v_add_u32 v{ah+1}, s{sW1K}, v{ah}")
        if not self.opt.get('allones'):
            I(f"v_and_b32 v{ONE+1}, 11, v{vLane}"); I(f"v_cmp_eq_u32 vcc, 0, v{ONE+1}")
            for i in (1, 2, 3, 0): I(f"v_cndmask_b32 v{ONE+i}, 0, v{ONE}, vcc")
        I(f"ds_write_b128 v{ah+1}, {V(ONE,4)} offset:{L_ONES-L_KVR}")
        for mt in range(2):
            e.seq(self.stat_fin(t0 + 4 * mt, sd[2 * mt], sd[2 * mt + 1]))
        if first: e.seq(self.exadd(vCSQ, vF0))
        for mt in range(2):
            m, r = sd[2 * mt], sd[2 * mt + 1]; ac = AQ + 32 * mt
            I(f"v_mul_f32 v{r}, {hx(f2u(QS))}, v{r}")
            e.seq(self.exadd(ac, X + 24 * mt))
            for i in range(8): I(f"v_fma_f32 v{ac+i}, -v{m}, v{vCSQ+i}, v{ac+i}")
            for i in range(8): I(f"v_mul_f32 v{ac+i}, v{ac+i}, v{r}")
            e.seq(self.pack(vQ + 4 * mt, ac))
        self.stamp("qdone")
        if first: self.swz_do(ah)
        else: e.wait_lg0(); e.barrier()

    def swz_setup(self):
        e = self.e; I = e.I
        l2 = e.newlab("L_sw2"); lo = e.newlab("L_swo"); lj = e.newlab("L_swj")
        I(f"s_mov_b32 s{sAug}, {hx(BIG)}"); I(f"s_mov_b32 s{sTA+3}, 0x20000")
        I(f"s_cmp_ge_u32 s{sg}, 14"); I(f"s_cbranch_scc1 {l2}")
        I(f"s_mov_b64 s[{sTA}:{sTA+1}], s[{pW1}:{pW1+1}]"); I(f"s_mov_b32 s{sTA+2}, {512*1792*2}")
        I(f"s_mov_b32 s{sT0}, 3584"); I(f"s_and_b32 s{sT1}, s{sg}, 1")
        I(f"s_mul_i32 s{sT2}, s{sj}, 7"); I(f"s_lshr_b32 s{sT3}, s{sg}, 1"); I(f"s_add_u32 s{sT2}, s{sT2}, s{sT3}")
        I(f"s_mul_i32 s{sSwD}, s{sT2}, {33*1024}"); I(f"s_add_u32 s{sSwD}, s{sSwD}, {hx(W1S)}")
        I(f"s_lshl_b32 s{sT3}, s{sT1}, 3"); I(f"s_add_u32 s{sT3}, s{sT3}, s{sSwD}"); I(f"s_add_u32 s{sT3}, s{sT3}, {32*1024}")
        I(f"s_cmp_eq_u32 s{sw}, 0"); I(f"s_cselect_b32 s{sAug}, s{sT3}, s{sAug}")
        I(f"s_branch {lj}")
        e.label(l2)
        I(f"s_mov_b32 s{sT0}, 1024"); I(f"s_lshl_b32 s{sT2}, s{sj}, 1")
        I(f"s_cmp_ge_u32 s{sg}, 28"); I(f"s_cbranch_scc1 {lo}")
        I(f"s_mov_b64 s[{sTA}:{sTA+1}], s[{pW2}:{pW2+1}]"); I(f"s_mov_b32 s{sTA+2}, {512*1792*2}")
        I(f"s_cmp_ge_u32 s{sg}, 21"); I(f"s_cselect_b32 s{sT3}, 21, 14"); I(f"s_addc_u32 s{sT2}, s{sT2}, 0")
        I(f"s_sub_u32 s{sT1}, s{sg}, s{sT3}")
        I(f"s_mul_i32 s{sSwD}, s{sT2}, {112*1024}"); I(f"s_add_u32 s{sSwD}, s{sSwD}, {hx(W2S)}")
        I(f"s_branch {lj}")
        e.label(lo)
        I(f"s_mov_b64 s[{sTA}:{sTA+1}], s[{pWO}:{pWO+1}]"); I(f"s_mov_b32 s{sTA+2}, 0x80000")
        I(f"s_and_b32 s{sT1}, s{sg}, 1"); I(f"s_bitcmp1_b32 s{sg}, 1"); I(f"s_addc_u32 s{sT2}, s{sT2}, 0")
        I(f"s_lshl_b32 s{sSwD}, s{sT2}, 15"); I(f"s_add_u32 s{sSwD}, s{sSwD}, {hx(WOS)}")
        e.label(lj)
        I(f"s_lshl_b32 s{sT1}, s{sT1}, 2"); I(f"s_add_u32 s{sT1}, s{sT1}, s{sw}")
        I(f"s_lshl_b32 s{sT3}, s{sT1}, 12"); I(f"s_add_u32 s{sSwD}, s{sSwD}, s{sT3}")
        I(f"s_lshl_b32 s{sT1}, s{sT1}, 6"); I(f"s_mul_i32 s{sT1}, s{sT1}, s{sT0}")
        I(f"s_lshl_b32 s{sT2}, s{sT2}, 6"); I(f"s_add_u32 s{sT1}, s{sT1}, s{sT2}")
        a = vT + 9
        I(f"v_lshrrev_b32 v{a}, 2, v{vLane}"); I(f"v_mul_lo_u32 v{a}, v{a}, s{sT0}"); I(f"v_and_or_b32 v{a}, v{vL16}, 48, v{a}")
        I(f"s_lshl_b32 s{sT0}, s{sT0}, 4")
        b = vT + 10; t = vT + 8
        I(f"v_and_b32 v{b}, 0x13, v{vLane}"); I(f"v_bfe_u32 v{t}, v{vLane}, 2, 1"); I(f"v_lshl_or_b32 v{b}, v{t}, 3, v{b}")
        I(f"v_bfe_u32 v{t}, v{vLane}, 3, 1"); I(f"v_lshl_or_b32 v{b}, v{t}, 2, v{b}")
        I(f"v_lshrrev_b32 v{t}, 5, v{vLane}"); I(f"v_lshl_or_b32 v{b}, v{t}, 15, v{b}"); I(f"v_lshlrev_b32 v{b}, 1, v{b}")
        self.srd(sTB, pB1, 3584)
        I(f"buffer_load_ushort v{vAUG}, v{b}, s[{sTB}:{sTB+3}], s{sT2} offen")
        I(f"s_lshl_b32 s{sSwF}, s{sj}, 12"); I(f"s_add_u32 s{sSwF}, s{sSwF}, {hx(GF + 0x10000)}")
    def swz_dma(self):
        I = self.I
        self.tk_sw = []
        for f in range(4):
            I(f"s_add_u32 m0, s{sWQl}, {0x2000 + f*1024}")
            if f: I(f"s_add_u32 s{sT1}, s{sT1}, s{sT0}")
            self.tk_sw.append(I(self.dma(vT + 9, sTA, f"s{sT1}")))
    def swz_do(self, ah):
        e = self.e; I = e.I
        a = vT + 6; F = 112; c = vT + 8
        e.seq(self.traddr(a, vT + 7, False)); I(f"v_mov_b32 v{c}, 0")
        e.wait(*self.tk_sw)
        for f in range(4):
            for h in range(2): I(f"ds_read_b64_tr_b16 {V(F+4*f+2*h,2)}, v{a} offset:{0x2000+f*1024+h*256}")
        for f in range(4): I(self.st(V(F + 4 * f, 4), vL16, sWS, f"s{sSwD}", f * 1024, "sc1"))
        for i in range(16): I(f"v_dot2c_f32_bf16 v{c}, s{sOnes}, v{F+i}")
        I(f"s_lshl_b32 s{sT5}, s{sw}, 2"); I(f"v_add_u32 v{ah+1}, s{sT5}, v{ah}")
        I(f"ds_write_b32 v{ah+1}, v{c} offset:{L_CSR-L_KVR}")
        e.wait_lg0(); e.barrier()
        t = F + 16
        I(f"ds_read_b128 {V(t,4)}, v{ah} offset:{L_CSR-L_KVR}")
        I(f"v_add_f32 v{t}, v{t}, v{t+1}"); I(f"v_add_f32 v{t+2}, v{t+2}, v{t+3}"); I(f"v_add_f32 v{t}, v{t}, v{t+2}")
        I(f"v_cvt_pk_bf16_f32 v{t+1}, v{t}, v{t}"); I(f"v_lshlrev_b32 v{t+2}, 16, v{t+1}"); I(f"v_sub_f32 v{t}, v{t}, v{t+2}")
        I(f"v_cvt_pk_bf16_f32 v{t}, v{t+2}, v{t}"); I(f"v_and_b32 v{t+1}, 0xffff, v{t+1}"); I(f"v_lshl_or_b32 v{t+1}, v{vAUG}, 16, v{t+1}")
        I(self.st(V(t, 2), vL16, sWS, f"s{sAug}", 0, "sc1", w=2))
        self.stamp("swz")

    def attention(self):
        e = self.e; I = e.I
        Kf = [vF0, vF0 + 4]; Vf = [vF0 + 8, vF0 + 16]
        vInc = vF1; vPW = vF1 + 1; vMA = vF1 + 3; vSA = vF1 + 4; vMD = vF1 + 5; vSD = vF1 + 6; vJ = vF1 + 8; t = vF1 + 9
        S_ = [vS, vS + 16]; O_ = [vO, vO + 16]
        I(f"v_and_b32 v{t}, 16, v{vLane}"); I(f"v_cmp_eq_u32 vcc, 0, v{t}")
        I(f"v_lshrrev_b32 v{t}, 5, v{vLane}"); I(f"v_lshlrev_b32 v{t}, 8, v{t}"); I(f"v_add_u32 v{t}, {hx(L_V)}, v{t}")
        I(f"v_mov_b32 v{t+1}, {hx(L_ONES)}"); I(f"v_cndmask_b32 v{vV}, v{t+1}, v{t}, vcc")
        I(f"v_and_b32 v{t}, 0xf0, v{vL16}"); I(f"v_or_b32 v{vV}, v{vV}, v{t}")
        I(f"v_mov_b32 v{t}, 0x1000"); I(f"v_cndmask_b32 v{vInc}, 0, v{t}, vcc")
        I(f"v_and_b32 v{vMA}, 0x180, v{vPoll}"); I(f"v_bfe_u32 v{t}, v{vLane}, 2, 1"); I(f"v_lshl_or_b32 v{vMA}, v{t}, 12, v{vMA}")
        I(f"v_and_b32 v{vSA}, 0xf80, v{vPoll}")
        for i in range(32): I(f"v_mov_b32 v{vO+i}, 0")
        self.poll(sWS, f"s{sKVFp}", 0, 64, kv=True)
        self.stamp("kvpoll")
        def kvdma(i, v): return ([f"s_add_u32 m0, s{sW1K}, {hx(i*4096 + v*0x10000)}"], self.dma(vL16, sKV, "m0", 0, "sc1"))
        tk = []
        for i in range(4):
            for v in range(2):
                p, o = kvdma(i, v); e.seq(p); tk.append(I(o))
        e.wait(tk[1]); e.barrier()
        l1 = e.newlab("L_nosw")
        I(f"s_or_b32 s{sT5}, s{sLayer}, s{sw}"); I(f"s_cbranch_scc1 {l1}")
        e.begin_opt()
        I(f"s_lshl_b32 s{sT5}, s{sg}, 7"); I(f"s_add_u32 s{sT5}, s{sT5}, s{sSwF}")
        I(f"s_cmp_eq_u32 s2, 0"); I(f"s_cselect_b32 s{sT6}, 0, {hx(BIG)}")
        I("s_mov_b64 exec, 1")
        I(self.st(V(vN, 2), vPoll, sWS, f"s{sT5}", 0, "sc1", w=2)); I(self.st(V(vN, 2), vPoll, sWS, f"s{sT6}", 0, "sc1", w=2))
        I("s_mov_b64 exec, -1")
        e.end_opt(); e.label(l1)
        vm = [[] for _ in range(64)]
        lst = [kvdma(i, v) for i in range(4, 16) for v in range(2)]
        for n, it in enumerate(lst): vm[n // 2].append(it)
        vm[12] = [([f"s_andn2_b32 s{sT5}, s{sKVFs}, 0x1180"], self.ld(V(vMD), vMA, sWS, f"s{sT5}", 0, "sc1", w=1)),
                  ([], self.ld(V(vSD, 2), vSA, sWS, f"s{sSwF}", 0, "sc1", w=2))]
        lst = []
        pw = [([f"s_lshl_b32 s{sT1}, s{sLayer}, 28", f"s_add_u32 s{sT1}, s{sT1}, s{sP1K}"], "!" + self.ld(V(vJ), vL16, sG, f"s{sT1}", 0, "sc1", w=1))]
        for i in (2, 3, 0, 1, 4, 5, 6, 7, 8):
            pw.append(([f"s_add_u32 s{sT0}, s{sT1}, {hx(G_X1 + i * 0x8000)}"], "!" + self.ld(V(vJ), vL16, sG, f"s{sT0}", 0, "sc1", w=1)))
        if self.opt.get('nopw'): pw = []
        wfl = self.opt.get('wfl', 'sc1')
        for n in range(2):
            for ks in range(8):
                pre = [f"s_add_u32 s{sT5}, s{sWOo+n}, {ks*1024}"] if ks % 4 == 0 else []
                lst.append((pre, self.ld(V(vWO + (2 * ks + n) * 4, 4), vL16x, sWS, f"s{sT5}", (ks % 4) * 1024, wfl)))
        for n in range(2):
            for i in range(32):
                pre = []
                if i % 8 == 0: pre = [f"s_add_u32 s{sT5}, s{sW1o+n}, s{sQ+i//8}"]
                elif i % 4 == 0: pre = [f"s_add_u32 s{sT5}, s{sT5}, 4096"]
                lst.append((pre, self.ld(A((2 * i + n) * 4, 4), vL16, sWS, f"s{sT5}", (i % 4) * 1024, wfl)))
            lst.append(([f"s_add_u32 s{sT5}, s{sW1o+n}, {32*1024}"], self.ld(V(vAUG + 4 * n, 4), vL16, sWS, f"s{sT5}", 0, "sc1")))
        if self.opt.get('now'): lst = []
        stp = self.opt.get('pwstep', 9)
        for n, it in enumerate(pw): lst.insert(n * stp, it)
        for n, it in enumerate(lst): vm[16 + n // 2].append(it)
        def rdK(t_): return I(f"ds_read_b128 {V(Kf[t_&1],4)}, v{vL16} offset:{t_*1024}")
        def rdV(t_, s): return I(f"ds_read_b128 {V(Vf[t_&1]+4*s,4)}, v{vV} offset:{(t_&3)*1024+s*512}")
        def smf(mt, t_, s): I(f"v_smfmac_f32_32x32x32_bf16 {V(O_[mt],16)}, {V(Vf[t_&1]+4*s,4)}, {V(S_[mt]+8*s,8)}, v{vIdx}")
        def qk(mt, t_): I(self.mf(S_[mt], V(Kf[t_&1], 4), V(vQ + 4 * mt, 4), '0'))
        def ex(mt, a, b):
            for r in range(a, b): I(f"v_exp_f32 v{S_[mt]+r}, v{S_[mt]+r}")
        rdK(0); rdV(0, 0); rdV(0, 1)
        qk(0, 0)
        self.stamp("attn0")
        lasttk = None
        for t_ in range(64):
            nx = t_ + 1 < 64
            ex(0, 0, 2)
            if t_: smf(1, t_ - 1, 1)
            if nx:
                tkK = rdK(t_ + 1)
                if (t_ + 1) % 4 == 0: I(f"v_add_u32 v{vV}, v{vInc}, v{vV}")
            ex(0, 2, 5); qk(1, t_)
            if nx: rdV(t_ + 1, 0)
            ex(0, 5, 10); smf(0, t_, 0)
            if vm[t_]: e.seq(vm[t_][0][0])
            if nx: tkV = rdV(t_ + 1, 1)
            ex(0, 10, 16)
            ex(1, 0, 2); smf(0, t_, 1)
            if nx: e.wait(tkK)
            if vm[t_]: lasttk = I(vm[t_][0][1])
            ex(1, 2, 5)
            if nx: qk(0, t_ + 1)
            if len(vm[t_]) > 1: e.seq(vm[t_][1][0])
            ex(1, 5, 10); smf(1, t_, 0)
            if nx: e.wait(tkV)
            if t_ in self.opt.get('ast', ()): self.stamp(f"a{t_}")
            if t_ == 2: e.wait(tk[7]); e.barrier()
            if t_ == 14:
                e.wait(lasttk); e.barrier()
                I(f"v_cmp_ne_u32 vcc, s{sMyF}, v{vMD}"); I("s_cmp_lg_u64 vcc, 0")
                I(f"s_cselect_b32 s{sMode}, 1, {1 if self.fsm else 0}")
                I(f"v_cmp_ne_u64 vcc, s[{sN}:{sN+1}], {V(vSD,2)}"); I("s_cbranch_vccnz L_swpoll"); e.label("L_swback")
                e.tail += ["L_swpoll:", f"    s_mov_b32 s{sCnt}, 0", "L_swp2:", "    " + self.ld(V(vSD, 2), vSA, sWS, f"s{sSwF}", 0, "sc1", w=2),
                           f"    s_add_u32 s{sCnt}, s{sCnt}, 1", f"    s_cmp_gt_u32 s{sCnt}, {POLL_LIM}", "    s_cbranch_scc1 L_end",
                           "    s_waitcnt vmcnt(0)", f"    v_cmp_ne_u64 vcc, s[{sN}:{sN+1}], {V(vSD,2)}", "    s_cbranch_vccnz L_swp2", "    s_branch L_swback"]
            if len(vm[t_]) > 1: lasttk = I(vm[t_][1][1])
            ex(1, 10, 16)
        lo, hi = (2.0 ** -64, 2.0 ** 64) if not self.fsa else (2.0 ** 64, 2.0 ** -64)
        I(f"s_mov_b32 s{sT0}, {hx(f2u(lo))}"); I(f"s_mov_b32 s{sT1}, {hx(f2u(hi))}")
        smf(1, 63, 1)
        I(f"v_cmp_lt_f32 s[{sT2}:{sT3}], s{sT0}, v{O_[0]+8}"); I(f"v_cmp_gt_f32 s[{sT4}:{sT5}], s{sT1}, v{O_[0]+8}")
        I(f"s_and_b64 s[{sT2}:{sT3}], s[{sT2}:{sT3}], s[{sT4}:{sT5}]")
        I(f"v_cmp_lt_f32 vcc, s{sT0}, v{O_[1]+8}"); I(f"v_cmp_gt_f32 s[{sT4}:{sT5}], s{sT1}, v{O_[1]+8}")
        I(f"s_and_b64 s[{sT2}:{sT3}], s[{sT2}:{sT3}], vcc"); I(f"s_and_b64 s[{sT2}:{sT3}], s[{sT2}:{sT3}], s[{sT4}:{sT5}]")
        I(f"s_andn2_b64 s[{sT2}:{sT3}], exec, s[{sT2}:{sT3}]"); I("s_cbranch_scc1 L_slowattn"); e.label("L_slowback")
        self.slow_attn(Kf, Vf, vInc, S_, O_)
        self.stamp("attn1")
        for mt in range(2): I(f"v_rcp_f32 v{O_[mt]+8}, v{O_[mt]+8}")
        I(f"s_add_u32 s{sT0}, s{sP1K}, {hx(G_O)}"); I(f"s_add_u32 s{sT1}, s{sP1K}, {hx(G_O + 0x8000)}")
        for mt in range(2):
            for i in range(8): I(f"v_mul_f32 v{O_[mt]+i}, v{O_[mt]+i}, v{O_[mt]+8}")
            e.seq(self.pack(vQ + 4 * mt, O_[mt]))
        self.dual([self.st(V(vQ, 4), vL16, sG, f"s{sT0}"), self.st(V(vQ + 4, 4), vL16, sG, f"s{sT1}")])
        for mt in range(2):
            for i in range(8): I(f"v_mov_b32 v{RES(mt)+8+i}, 0")
        self.publish(0)
        e.barrier()

    def slow_attn(self, Kf, Vf, vInc, S_, O_):
        x = Em(); I = x.I
        x.label("L_slowattn"); x.nop(16)
        M = vF1 + 9; ka = vF1 + 11; va = vF1 + 12; inc = vF1 + 13
        I(f"v_lshrrev_b32 v{inc}, 2, v{vInc}")
        for mt in range(2):
            Sx = S_[0]; C = S_[1]
            I(f"v_mov_b32 v{M}, 0xff800000"); I(f"v_mov_b32 v{ka}, v{vL16}"); I(f"s_mov_b32 s{sCnt}, 0")
            x.label(f"L_sa1_{mt}")
            I(f"ds_read_b128 {V(Kf[0],4)}, v{ka}"); I(f"v_add_u32 v{ka}, 1024, v{ka}")
            I(self.mf(Sx, V(Kf[0], 4), V(vQ + 4 * mt, 4), '0'))
            for i in range(8): I(f"v_max3_f32 v{M}, v{Sx+2*i}, v{Sx+2*i+1}, v{M}")
            I(f"s_add_u32 s{sCnt}, s{sCnt}, 1"); I(f"s_cmp_lt_u32 s{sCnt}, 64"); I(f"s_cbranch_scc1 L_sa1_{mt}")
            I(f"v_mov_b32 v{M+1}, v{M}"); I(f"v_permlane32_swap_b32 v{M}, v{M+1}"); I(f"v_max_f32 v{M}, v{M}, v{M+1}")
            for i in range(16): I(f"v_sub_f32 v{C+i}, 0, v{M}")
            for i in range(16): I(f"v_mov_b32 v{O_[mt]+i}, 0")
            I(f"v_mul_u32_u24 v{va}, 15, v{vInc}"); I(f"v_sub_u32 v{va}, v{vV}, v{va}")
            I(f"v_mov_b32 v{ka}, v{vL16}"); I(f"s_mov_b32 s{sCnt}, 0")
            x.label(f"L_sa2_{mt}")
            I(f"ds_read_b128 {V(Kf[0],4)}, v{ka}"); I(f"ds_read_b128 {V(Vf[0],4)}, v{va}"); I(f"ds_read_b128 {V(Vf[0]+4,4)}, v{va} offset:512")
            I(f"v_add_u32 v{ka}, 1024, v{ka}"); I(f"v_add_u32 v{va}, v{inc}, v{va}")
            I(self.mf(Sx, V(Kf[0], 4), V(vQ + 4 * mt, 4), V(C, 16)))
            for i in range(16): I(f"v_exp_f32 v{Sx+i}, v{Sx+i}")
            for s in range(2): I(f"v_smfmac_f32_32x32x32_bf16 {V(O_[mt],16)}, {V(Vf[0]+4*s,4)}, {V(Sx+8*s,8)}, v{vIdx}")
            x.nop(16)
            I(f"s_add_u32 s{sCnt}, s{sCnt}, 1"); I(f"s_cmp_lt_u32 s{sCnt}, 64"); I(f"s_cbranch_scc1 L_sa2_{mt}")
        I("s_branch L_slowback")
        self.e.tail += x.lines

    def wo(self):
        e = self.e; I = e.I
        X = 176
        self.gpoll(0)
        self.stamp("opoll")
        for mt in range(2):
            for ks in range(8):
                if ks % 4 == 0: I(f"s_add_u32 s{sT1}, s{sW8K}, {G_O + mt*0x8000 + ks*1024}")
                I(self.ld(V(X + (mt * 8 + ks) * 4, 4), vL16, sG, f"s{sT1}", (ks % 4) * 1024, "sc1"))
        main = []
        for mt in range(2):
            for ks in range(8):
                for n in range(2):
                    main.append([self.mf(vACC + 32 * mt + 16 * n, V(vWO + (2 * ks + n) * 4, 4), V(X + (mt * 8 + ks) * 4, 4), '0' if (ks == 0 and n == 1) else None)])
        for g_ in main[:16]: e.seq(g_)
        a, r = interleave(main[16:], self.exw(vACC, 0), 16, start=6)
        e.seq(a); e.seq(r)
        I(f"s_add_u32 s{sT0}, s{sP1K}, {hx(G_X1)}"); I(f"s_add_u32 s{sT1}, s{sP1K}, {hx(G_X1 + 0x8000)}")
        e.seq(self.exw(vACC + 32, 0x1800))
        e.wait_lg0(); e.barrier()
        for mt in range(2): e.seq(self.exr(X + 24 * mt, 0x1800 * mt))
        for mt in range(2):
            e.seq(self.exadd(RES(mt), X + 24 * mt)); e.seq(self.pack(vQ + 4 * mt, RES(mt)))
            self.dual([self.st(V(vQ + 4 * mt, 4), vL16, sG, f"s{sT0+mt}")])
        for i in range(4):
            I(f"v_lshlrev_b32 v{vT+2}, 16, v{vB2+i}"); I(f"v_and_b32 v{vT+3}, 0xffff0000, v{vB2+i}")
            for mt in range(2): I(f"v_pk_add_f32 {V(RES(mt)+2*i,2)}, {V(RES(mt)+2*i,2)}, {V(vT+2,2)}")
        self.stamp("wodone")
        self.publish(2)

    def gelu(self, acc, k1, k2, sd, T, P, stores):
        o = []
        for b in range(4):
            a = acc + 4 * b; t = T + 4 * (b & 1)
            o += [f"v_mul_f32 v{t+i}, v{a+i}, v{a+i}" for i in range(4)]
            o += [f"v_fma_f32 v{t+i}, v{t+i}, v{k2}, v{k1}" for i in range(4)]
            o += [f"v_mul_f32 v{t+i}, v{t+i}, v{a+i}" for i in range(4)]
            o += [f"v_exp_f32 v{t+i}, v{t+i}" for i in range(4)]
            o += [f"v_fma_f32 v{t+i}, v{t+i}, v{sd}, v{sd}" for i in range(4)]
            o += [f"v_rcp_f32 v{t+i}, v{t+i}" for i in range(4)]
            o += [f"v_mul_f32 v{a+i}, v{a+i}, v{t+i}" for i in range(4)]
            o += self.pack(P + 2 * b, a, 2)
            if b & 1: o.append(stores(b >> 1, P + 4 * (b >> 1)))
        return o
    def ffn1(self):
        e = self.e; I = e.I
        AC = 112; XA = 176; XB = 208; RG = 240
        XQ = vT + 2; ah = vT + 6
        sd4 = [vF1, vF1 + 1, vF1 + 2, vF1 + 3]; t0 = vF1 + 4
        BA = [vF1 + 12, vF1 + 16]; SD = [vF1 + 20, vT + 8]
        for q in range(4):
            I(f"s_add_u32 s{sT5}, s{sQ+q}, {hx(L_V)}"); I(f"v_add_u32 v{XQ+q}, s{sT5}, v{vL16}")
        I(f"v_add_u32 v{ah}, {hx(L_ST)}, v{vL16}"); I(f"s_lshl_b32 s{sT5}, s{sw}, 2"); I(f"v_add_u32 v{ah+1}, s{sT5}, v{ah}")
        for r in sd4: I(f"v_mov_b32 v{r}, 0")
        e.undef('v', 112, 144); e.undef('v', t0, 17)
        self.gpoll(2)
        self.stamp("x1poll")
        tk = []
        for mt in range(2):
            for h in range(2):
                I(f"s_add_u32 m0, s{sW8K}, {hx(G_X1 + mt*0x8000 + h*4096)}")
                tk += [I(self.dma(vL16, sG, "m0", i * 1024, "sc1")) for i in range(4)]
        def rd(mt, i, dst): return f"ds_read_b128 {V(dst,4)}, v{XQ+i//8} offset:{mt*0x8000+(i%8)*1024}"
        def B(mt, i): return (XA if mt == 0 else XB) + 4 * i if i < 8 else RG + 4 * (i % 4)
        def mm(mt, i, n): return self.mf(AC + 32 * mt + 16 * n, A((2 * i + n) * 4, 4), V(B(mt, i), 4), '0' if i == 0 else None)
        for h in range(2):
            e.wait(tk[4 * h + 3])
            for i in range(4): I(rd(0, 4 * h + i, XA + 16 * h + 4 * i))
        def bar1(): e.wait(tk[15]); e.barrier()
        def bar2(): e.wait_lg0(); e.barrier()
        main = []
        for i in range(32):
            pre = []
            if i == 5: pre.append((bar1, 8))
            if 8 <= i + 3 < 32: pre.append(rd(0, i + 3, B(0, i + 3)))
            main.append(pre + [mm(0, i, 0)])
            pre = []
            if 6 <= i < 14: pre.append(rd(1, i - 6, XB + 4 * (i - 6)))
            main.append(pre + [mm(0, i, 1)])
        fin = []
        for mt in range(2): fin += self.stat_write(sd4[2 * mt], sd4[2 * mt + 1], ah + 1, mt)
        fin.append((bar2, 8))
        for mt in range(2): fin.append(f"ds_read_b128 {V(t0+4*mt,4)}, v{ah} offset:{mt*1024}")
        for mt in range(2):
            m, r = sd4[2 * mt], sd4[2 * mt + 1]; t = t0 + 4 * mt; b = BA[mt]; s = SD[mt]
            fin += self.stat_fin(t, m, r, s)
            fin += [f"v_cvt_pk_bf16_f32 v{b}, -v{m}, -v{m}", f"v_lshlrev_b32 v{t}, 16, v{b}", f"v_add_f32 v{t}, v{t}, v{m}",
                    f"v_cvt_pk_bf16_f32 v{b+1}, -v{t}, v{s}", f"v_and_b32 v{t+1}, 0xffff0000, v{b+1}", f"v_sub_f32 v{t+1}, v{s}, v{t+1}",
                    f"v_cvt_pk_bf16_f32 v{b+3}, -v{t}, v{t+1}", f"v_mov_b32 v{b+2}, v{b}",
                    f"v_mul_f32 v{t}, v{r}, v{r}", f"v_mul_f32 v{m}, {hx(f2u(C1))}, v{r}", f"v_mul_f32 v{t}, {hx(f2u(0.044715))}, v{t}",
                    f"v_mul_f32 v{r}, v{t}, v{m}"]
        fill = self.dots(sd4[0], sd4[1], XA, 32) + self.dots(sd4[2], sd4[3], XB, 32) + fin
        main = [[(x[0] if isinstance(x, tuple) else x) for x in g_] for g_ in main]
        a, r = interleave(main, fill, 24, start=1)
        e.seq(a); e.seq(r)
        for n in range(2): I(self.mf(AC + 16 * n, V(vAUG + 4 * n, 4), V(BA[0], 4)))
        self.stamp("f1p0")
        def hst(mt, n):
            def f(half, reg):
                def g_():
                    if mt and half == 0: I(f"s_add_u32 s{sT2}, s{sHs+n}, 0x1c000")
                    self.dual([self.st(V(reg, 4), vL16, sG, f"s{sT2 if mt else sHs+n}", half * 1024)])
                return (g_, 14)
            return f
        def w2(i, n):
            o = []
            if i % 4 == 0: o.append(f"s_add_u32 s{sT0+n}, s{sW2o+n}, {i*1024}")
            o.append(self.ld(A((2 * i + n) * 4, 4), vL16x, sWS, f"s{sT0+n}", (i % 4) * 1024, "sc1"))
            return o
        main = []
        for i in range(32):
            pre = []
            if 1 <= i <= 28: pre += w2(i - 1, 1)
            if 8 <= i + 3 < 32: pre.append(rd(1, i + 3, B(1, i + 3)))
            main.append(pre + [mm(1, i, 0)])
            pre = []
            if i < 28: pre += w2(i, 0)
            main.append(pre + [mm(1, i, 1)])
        for n in range(2): main.append([self.mf(AC + 32 + 16 * n, V(vAUG + 4 * n, 4), V(BA[1], 4))])
        fill = []
        for n in range(2): fill += self.gelu(AC + 16 * n, sd4[0], sd4[1], SD[0], vF0, vF0 + 8 + 8 * n, hst(0, n))
        a, r = interleave(main, fill, 34, start=4)
        e.seq(a); e.seq(r)
        self.stamp("f1p1")
        for n in range(2):
            e.seq([(x[0] if isinstance(x, tuple) else x) for x in self.gelu(AC + 32 + 16 * n, sd4[2], sd4[3], SD[1], vF0, vF0 + 8 + 8 * n, hst(1, n))])
        self.stamp("f1done")
        self.publish(4)
    def ffn2(self):
        e = self.e; I = e.I
        RG = 112; TM = 224; PK = 248
        for mt in range(2):
            for i in range(8): I(f"v_mov_b32 v{RES(mt)+8+i}, 0")
        self.gpoll(4)
        self.stamp("hpoll")
        def hl(mt, i):
            o = []
            if i % 4 == 0: o.append(f"s_add_u32 s{sT0}, s{sHl}, {mt*0x1c000 + i*1024}")
            o.append(self.ld(V(RG + 4 * i, 4), vL16, sG, f"s{sT0}", (i % 4) * 1024, "sc1"))
            return o
        def mm(mt, i, n): return self.mf(vACC + 32 * mt + 16 * n, A((2 * i + n) * 4, 4), V(RG + 4 * i, 4), '0' if (i == 0 and n == 1) else None)
        for i in range(28): e.seq(hl(0, i))
        for i in range(28):
            I(mm(0, i, 0)); I(mm(0, i, 1)); e.seq(hl(1, i))
        self.stamp("f2p0")
        main = [[mm(1, i, n)] for i in range(28) for n in range(2)]
        def bar(): e.wait_lg0(); e.barrier()
        fill = self.exw(vACC, 0) + [(bar, 24)] + self.exr(TM, 0)
        fill += [f"s_cmp_eq_u32 s{sLayer}, 0", f"s_cselect_b32 s{sWQ+2}, 0x80000, 0"] + self.wq_dma(vT + 4)
        fill += self.exadd(RES(0), TM, pk=False) + self.pack(PK, RES(0))
        a, r = interleave(main, fill, 20, start=10)
        e.seq(a); e.seq(r)
        e.seq(self.exw(vACC + 32, 0x1800))
        e.wait_lg0(); e.barrier()
        e.seq(self.exr(TM, 0x1800))
        I(f"s_add_u32 s{sT0}, s{sP1K}, {hx(G_X2)}"); I(f"s_add_u32 s{sT1}, s{sP1K}, {hx(G_X2 + 0x8000)}")
        e.seq(self.exadd(RES(1), TM)); e.seq(self.pack(PK + 4, RES(1)))
        self.stamp("f2done")
        I(f"s_cmp_lg_u32 s{sLayer}, 0"); I("s_cbranch_scc1 L_final")
        self.dual([self.st(V(PK + 4 * mt, 4), vL16, sG, f"s{sT0+mt}") for mt in range(2)])
        self.publish(6)
        return PK
    def final(self, PK):
        e = self.e; I = e.I
        e.label("L_final")
        self.srd(sTA, pOUT, 0x200000)
        e.seq(self.rowaddr(vT + 5, vT + 6))
        I(f"s_add_u32 s{sT6}, s{sRow}, 0x8000")
        I(self.st(V(PK, 4), vT + 5, sTA, f"s{sRow}")); I(self.st(V(PK + 4, 4), vT + 5, sTA, f"s{sT6}"))
        if self.stamps: self.rt(63); self.dump_stamps(256)
        e.wait_vm0()
        e.label("L_end")
        I("s_endpgm")
    def dump_stamps(self, off):
        I = self.I
        I(f"s_lshl_b32 s{sT5}, s2, 2"); I(f"s_add_u32 s{sT5}, s{sT5}, s{sw}"); I(f"s_lshl_b32 s{sT5}, s{sT5}, 9"); I(f"s_add_u32 s{sT5}, s{sT5}, {hx(STAMP)}")
        I(f"v_lshlrev_b32 v{vT+2}, 2, v{vLane}")
        I(self.st("v47", vT + 2, sWS, f"s{sT5}", off, w=1))

    def build(self):
        e = self.e
        self.prologue()
        self.qkv(True)
        e.label("L_loop")
        self.attention(); self.wo(); self.ffn1(); PK = self.ffn2()
        if self.stamps: self.dump_stamps(0)
        self.qkv(False)
        e.nop(4)
        e.I("s_branch L_loop")
        self.final(PK)
        ref = open(f"cdna_kernels/{NAME}.s.ref").read()
        head = ref[:ref.index("; @launch")]
        out = head + f"; @launch grid=(256,1,1) block=(256,1,1) lds={LDS_BYTES}\n"
        out += f""".amdgcn_target "amdgcn-amd-amdhsa--gfx950"
.text
.globl {NAME}_kernel
.p2align 8
.type {NAME}_kernel,@function
{NAME}_kernel:
"""
        body = e.text()
        out += body + "L_codeend:\n    s_endpgm\n"
        out += f""".section .rodata,"a"
.p2align 6
.amdhsa_kernel {NAME}_kernel
  .amdhsa_next_free_vgpr 512
  .amdhsa_next_free_sgpr 102
  .amdhsa_accum_offset 256
  .amdhsa_group_segment_fixed_size 0
  .amdhsa_kernarg_size 104
  .amdhsa_user_sgpr_count 2
  .amdhsa_user_sgpr_kernarg_segment_ptr 1
  .amdhsa_system_sgpr_workgroup_id_x 1
.end_amdhsa_kernel
"""
        out = out.replace("CODE_SPAN", "(L_end-L_nopf-2048)")
        return out

if __name__ == "__main__":
    import argparse
    ap = argparse.ArgumentParser()
    ap.add_argument("-o", default=f"cdna_kernels/{NAME}.s")
    ap.add_argument("--stamps", action="store_true"); ap.add_argument("--fsa", action="store_true"); ap.add_argument("--fsm", action="store_true")
    ap.add_argument("--nopf", action="store_true"); ap.add_argument("--nops", action="store_true")
    ap.add_argument("--opt", default="{}")
    a = ap.parse_args()
    g = Gen(stamps=a.stamps, force_slow_attn=a.fsa, force_slow_mode=a.fsm, codepf=not a.nopf, opt=eval(a.opt))
    txt = g.build()
    if a.stamps: txt = txt.replace("; @launch", "; stamps: " + ",".join(g.stnames) + "\n; @launch", 1)
    open(a.o, "w").write(txt)
    print("written", a.o, len(txt), "bytes; nops", g.e.nops)
    if a.nops:
        for n, t in g.e.nop_log: print(n, t)
```

```python
import sys, os, math, struct
sys.path.insert(0, os.path.dirname(os.path.abspath(__file__)))
from em import *

NAME = "interleave_layers__grouped_kv_mqa__dense_activation_gelu__prompt"
def f2u(x): return struct.unpack('<I', struct.pack('<f', x))[0]
def hx(x): return hex(x & 0xffffffff)

GF = 0x10000; KVB = 0x40000; W1S = 0x100000; W2S = 0x300000; WOS = 0x500000; STAMP = 0x600000; GRP = 0x800000
WSLIM = 0x800000
G_FL = 0; G_ST = 0x1000; G_X1 = 0x10000; G_X2 = 0x10000; G_O = 0x20000; G_H = 0x20000; G_SZ = 0x58000; G_STR = 0x60000
BIG = 0x10000000
L_K = 0; L_V = 0x10000; L_KVR = 0x20000; L_ST = 0x20000; L_CSR = 0x20800; L_ONES = 0x21000; L_WKV = 0x24000
LDS_BYTES = 0x28000
sWS, sG, sKV, sWQ, sTA, sTB = 4, 8, 12, 16, 20, 24
pX, pWQ, pWK, pWV, pWO, pW1, pB1, pW2, pB2, pOUT, pDBG, pWS = 28, 30, 32, 34, 36, 40, 42, 44, 46, 48, 50, 52
sg, sj, sw, sLayer, sMode, sMyF = 54, 55, 56, 57, 58, 59
sN = 60
sT0, sT1, sT2, sT3, sT4, sT5, sT6, sT7 = 62, 63, 64, 65, 66, 67, 68, 69
sCnt = 70; sOnes = 71
sM = 72
sP1K = 74
sW8K = 75
sW1K = 76
sFlSt = 77
sFlPo = 78
sKVFs = 79
sKVFp = 80
sQ = 81
sW1o = 85
sWOo = 87
sW2o = 89
sHs = 91
sHl = 93
sRow = 94
sKVst = 95
sWQo = 96
sWQl = 98
sSwD = 99
sAug = 100
sSwF = 101
vL16, vL16x, vPoll, vN, vEW, vER, vIdx, vV = 1, 2, 3, 4, 6, 7, 10, 11
vCSKV, vCSQ, vB2, vAUG = 12, 16, 24, 28
vT = 36
vACC = 48
def RES(mt): return vACC + 32 * mt
vF0 = 56; vF1 = 88
vWO = 112
vS = 176; vO = 208; vQ = 240
vLane = 0
vSTAMP = 111 ; vSTAMP0 = 110
POLL_LIM = 1 << 17
RTL = {'attn0': 59, 'attn1': 60, 'f2done': 61}

C1 = -2.0 * math.sqrt(2.0 / math.pi) * math.log2(math.e)
C2 = 0.044715 * C1
QS = 0.25 * math.log2(math.e)


class Gen:
    def __init__(self, stamps=False, force_slow_attn=False, force_slow_mode=False, codepf=True, opt=None):
        self.opt = opt or {}
        self.e = Em(); self.stamps = stamps; self.fsa = force_slow_attn; self.fsm = force_slow_mode
        self.codepf = codepf
        self.nst = 0; self.stnames = []
    def I(self, t): return self.e.I(t)
    def srd(self, d, p, n):
        I = self.I
        I(f"s_mov_b32 s{d}, s{p}"); I(f"s_mov_b32 s{d+1}, s{p+1}")
        I(f"s_mov_b32 s{d+2}, {hx(n)}"); I(f"s_mov_b32 s{d+3}, 0x20000")
    def stamp(self, name):
        e = self.e
        dg = self.opt.get('diag')
        if dg and name in dg[:2]:
            lab = e.newlab("L_dg")
            if name != 'start': e.I(f"s_cmp_lg_u32 s{sLayer}, {dg[2][dg.index(name)]}"); e.I(f"s_cbranch_scc1 {lab}")
            e.wait_lg0()
            e.I(f"{'s_memtime' if dg[4] else 's_memrealtime'} s[{sM}:{sM+1}]"); e.wait_lg0(force=True)
            e.I(f"s_mov_b32 s0, s{sM}" if name == dg[0] else f"s_sub_u32 s1, s{sM}, s0")
            e.label(lab)
        if not self.stamps: return
        e.I(f"s_memtime s[{sM}:{sM+1}]"); e.wait_lg0(force=True)
        e.I(f"v_writelane_b32 v47, s{sM}, {self.nst}")
        self.stnames.append(name); self.nst += 1
        if name in RTL: self.rt(RTL[name])
    def rt(self, lane):
        if not self.stamps: return
        e = self.e
        e.I(f"s_memrealtime s[{sM}:{sM+1}]"); e.wait_lg0(force=True)
        e.I(f"v_writelane_b32 v47, s{sM}, {lane}")
    def ld(self, dst, voff, srd, soff, imm=0, fl="", w=4):
        mn = {4: "dwordx4", 2: "dwordx2", 1: "dword"}[w]
        return f"buffer_load_{mn} {dst}, v{voff}, s[{srd}:{srd+3}], {soff} offen" + (f" offset:{imm}" if imm else "") + (" " + fl if fl else "")
    def dma(self, voff, srd, soff, imm=0, fl=""):
        return f"buffer_load_dwordx4 v{voff}, s[{srd}:{srd+3}], {soff} offen" + (f" offset:{imm}" if imm else "") + (" " + fl if fl else "") + " lds"
    def st(self, src, voff, srd, soff, imm=0, fl="", w=4):
        mn = {4: "dwordx4", 2: "dwordx2", 1: "dword"}[w]
        return f"buffer_store_{mn} {src}, v{voff}, s[{srd}:{srd+3}], {soff} offen" + (f" offset:{imm}" if imm else "") + (" " + fl if fl else "")
    def dual(self, stores):
        e = self.e
        lab = e.newlab("L_sl"); back = e.newlab("L_bk")
        regs = []
        for s in stores: regs += regs_of(s)
        e._autowait(regs)
        e.I(f"s_cmp_lg_u32 s{sMode}, 0"); e.I(f"s_cbranch_scc1 {lab}")
        toks = [e.I(s) for s in stores]
        e.label(back)
        e.tail += [lab + ":", "    s_nop 7", "    s_nop 7"]
        e.tail += ["    " + (s + " sc1" if s.startswith("buffer_") else s) for s in stores]
        e.tail += [f"    s_branch {back}"]
        return toks
    def publish(self, slot):
        e = self.e
        e.wait_vm0()
        e.I("s_mov_b64 exec, 1")
        self.dual([self.st(V(vN, 2), vPoll, sG, f"s{sFlSt}", slot * 8, w=2)])
        e.I("s_mov_b64 exec, -1")
    def poll(self, srd, soff, imm, nl, kv=False):
        e = self.e
        lab = e.newlab("L_poll")
        if nl < 64: e.I(f"s_mov_b64 exec, {hex((1 << nl) - 1)}")
        e.I(f"s_mov_b32 s{sCnt}, 0")
        e.label(lab)
        e.I(self.ld(V(vT, 2), vPoll, srd, soff, imm, "sc1", w=2))
        e.I(f"s_add_u32 s{sCnt}, s{sCnt}, 1"); e.I(f"s_cmp_gt_u32 s{sCnt}, {POLL_LIM}"); e.I("s_cbranch_scc1 L_end")
        e.wait_vm0()
        if kv: e.I(f"v_and_b32 v{vT}, -16, v{vT}")
        e.I(f"v_cmp_ne_u64 vcc, s[{sN}:{sN+1}], {V(vT, 2)}")
        e.I(f"s_cbranch_vccnz {lab}")
        if nl < 64: e.I("s_mov_b64 exec, -1")
    def gpoll(self, slot): self.poll(sG, f"s{sFlPo}", slot * 8, 8)
    def mf(self, d, a, b, c=None):
        return f"v_mfma_f32_32x32x16_bf16 {V(d,16)}, {a}, {b}, {V(d,16) if c is None else c}"
    def mf16(self, d, a, b, first):
        return f"v_mfma_f32_16x16x32_bf16 {V(d,4)}, {a}, {b}, {'0' if first else V(d,4)}"
    def exw(self, acc, area, ew=vEW):
        return [f"ds_write_b128 v{ew}, {V(acc+8*q+4*h,4)} offset:{area+(q-1)*2048+h*1024}" for q in (1, 2, 3) for h in (0, 1)]
    def exr(self, tmp, area, er=vER):
        return [f"ds_read_b128 {V(tmp+8*(q-1)+4*h,4)}, v{er+q-1} offset:{area+h*1024}" for q in (1, 2, 3) for h in (0, 1)]
    def exadd(self, dst, tmp, pk=True):
        if pk: return [f"v_pk_add_f32 {V(dst+i,2)}, {V(dst+i,2)}, {V(tmp+8*q+i,2)}" for q in range(3) for i in (0, 2, 4, 6)]
        return [f"v_add_f32 v{dst+i}, v{dst+i}, v{tmp+8*q+i}" for q in range(3) for i in range(8)]
    def pack(self, dst, src, n=4):
        return [f"v_cvt_pk_bf16_f32 v{dst+i}, v{src+2*i}, v{src+2*i+1}" for i in range(n)]
    def dots(self, s, q, x, n):
        out = []
        for i in range(n):
            out.append((f"v_dot2c_f32_bf16 v{s}, s{sOnes}, v{x+i}", 8))
            out.append((f"v_dot2c_f32_bf16 v{q}, v{x+i}, v{x+i}", 8))
        return out
    def stat_write(self, s, q, addr, mt):
        return [f"v_permlane32_swap_b32 v{s}, v{q}", f"v_add_f32 v{s}, v{s}, v{q}", f"ds_write_b32 v{addr}, v{s} offset:{mt*1024}"]
    def stat_fin(self, t, m, r, sd=None):
        o = [f"v_add_f32 v{t}, v{t}, v{t+1}", f"v_add_f32 v{t+2}, v{t+2}, v{t+3}", f"v_add_f32 v{t}, v{t}, v{t+2}",
             f"v_mul_f32 v{m}, {hx(f2u(1/512))}, v{t}", f"v_mul_f32 v{t}, {hx(f2u(1/512))}, v{t}",
             f"v_permlane32_swap_b32 v{m}, v{t}",
             f"v_fma_f32 v{t}, -v{m}, v{m}, v{t}", f"v_max_f32 v{t}, 0, v{t}", f"v_add_f32 v{t}, {hx(f2u(1e-5))}, v{t}",
             f"v_rsq_f32 v{r}, v{t}"]
        if sd is not None: o.append(f"v_mul_f32 v{sd}, v{t}, v{r}")
        return o

    def prologue(self):
        e = self.e; I = e.I
        if self.opt.get('diag', [0])[0] == 'first': I("s_memrealtime s[74:75]")
        I("s_cmp_ge_u32 s2, 256"); I("s_cbranch_scc1 L_end")
        I("s_load_dwordx16 s[28:43], s[0:1], 0"); I("s_load_dwordx8 s[44:51], s[0:1], 64"); I("s_load_dwordx2 s[52:53], s[0:1], 96")
        if self.stamps: I("v_mov_b32 v47, 0")
        I(f"v_lshrrev_b32 v{vT}, 6, v0"); I(f"v_and_b32 v{vLane}, 63, v0")
        I(f"v_readfirstlane_b32 s{sw}, v{vT}")
        I(f"s_and_b32 s{sg}, s2, 7"); I(f"s_lshl_b32 s{sg}, s{sg}, 2"); I(f"s_lshr_b32 s{sT0}, s2, 6"); I(f"s_add_u32 s{sg}, s{sg}, s{sT0}")
        I(f"s_lshr_b32 s{sj}, s2, 3"); I(f"s_and_b32 s{sj}, s{sj}, 7")
        I(f"s_and_b32 s{sw}, s{sw}, 3")
        I(f"v_lshlrev_b32 v{vL16}, 4, v{vLane}")
        I(f"v_lshrrev_b32 v{vT+4}, 4, v{vLane}"); I(f"v_and_b32 v{vT+5}, 15, v{vLane}")
        for qq in range(4):
            I(f"v_add_u32 v{vT+6}, {4*qq}, v{vT+4}")
            I(f"v_xor_b32 v{vT+7}, v{vT+6}, v{vT+5}")
            I(f"v_add_u32 v{vT+6}, {3*qq}, v{vT+4}")
            I(f"v_lshlrev_b32 v{vT+6}, 10, v{vT+6}")
            I(f"v_lshl_add_u32 v{vT+qq}, v{vT+7}, 4, v{vT+6}")
        if self.opt.get('diag', [0])[0] == 'first': e.wait_lg0(force=True); I("s_mov_b32 s0, s74")
        I(f"s_lshl_b32 s{sW1K}, s{sw}, 10"); I(f"s_lshl_b32 s{sW8K}, s{sw}, 13")
        I(f"s_lshl_b32 s{sT1}, s{sw}, 12")
        I(f"s_add_u32 m0, s{sT1}, {hx(L_WKV)}")
        I(f"s_lshl_b32 s{sT2}, s{sg}, 16"); I(f"s_lshl_b32 s{sT3}, s{sw}, 8"); I(f"s_add_u32 s{sT2}, s{sT2}, s{sT3}")
        I(f"s_lshl_b32 s{sT3}, s{sw}, 14")
        I(f"s_lshr_b32 s{sT4}, s{sj}, 1")
        e.wait_lg0(force=True)
        self.stamp("start"); self.rt(62)
        I(f"s_load_dwordx2 s[{sN}:{sN+1}], s[{pWS}:{pWS+1}], 0")
        I(f"s_bitcmp1_b32 s{sj}, 0"); I(f"s_cselect_b64 s[{sTB}:{sTB+1}], s[{pWV}:{pWV+1}], s[{pWK}:{pWK+1}]")
        I(f"s_mov_b32 s{sTB+2}, 16384"); I(f"s_mov_b32 s{sTB+3}, 0x20000")
        self.srd(sTA, pX, 0x200000)
        self.tk_wkv = [I(self.dma(vL16, sTB, f"s{sT1}", q * 1024)) for q in range(4)]
        self.tk_x = []
        for i in range(4):
            I(f"s_xor_b32 s{sT5}, s{sT4}, {i}")
            I(f"s_lshl_b32 s{sT6}, s{sT5}, 12"); I(f"s_add_u32 m0, s{sT6}, s{sT3}")
            I(f"s_lshl_b32 s{sT5}, s{sT5}, 14"); I(f"s_add_u32 s{sT5}, s{sT5}, s{sT2}")
            self.tk_x.append([I(self.dma(vT + qq, sTA, f"s{sT5}", qq * 1024)) for qq in range(4)])
        self.srd(sWQ, pWQ, 0x80000)
        I(f"s_add_u32 s{sWQl}, s{sT3}, {hx(L_V)}")
        I(f"s_lshl_b32 s{sT5}, s{sw}, 17"); I(f"s_lshl_b32 s{sT6}, s{sj}, 7"); I(f"s_add_u32 s{sT5}, s{sT5}, s{sT6}")
        I(f"s_lshr_b32 s{sT6}, s{sw}, 1"); I(f"s_lshl_b32 s{sT6}, s{sT6}, 6")
        I(f"s_add_u32 s{sWQo}, s{sT5}, s{sT6}"); I(f"s_xor_b32 s{sT6}, s{sT6}, 64"); I(f"s_add_u32 s{sWQo+1}, s{sT5}, s{sT6}")
        self.tk_wq = [t for t in (I(x) for x in self.wq_dma(vT + 4)) if t]
        I(f"s_lshl_b32 s{sP1K}, s{sj}, 2"); I(f"s_add_u32 s{sP1K}, s{sP1K}, s{sw}")
        I(f"s_lshl_b32 s{sT5}, s{sP1K}, 5")
        I(f"s_lshl_b32 s{sRow}, s{sg}, 16"); I(f"s_add_u32 s{sRow}, s{sRow}, s{sT5}")
        e.seq(self.rowaddr(vT + 5, vT + 6))
        I(f"s_add_u32 s{sT6}, s{sRow}, 0x8000")
        I(self.ld(V(vF0 + 16, 4), vT + 5, sTA, f"s{sRow}")); I(self.ld(V(vF0 + 20, 4), vT + 5, sTA, f"s{sT6}"))
        self.srd(sTB, pB2, 1024)
        I(self.ld(V(vB2, 4), vT + 6, sTB, f"s{sT5}"))
        if self.codepf:
            I(f"s_getpc_b64 s[{sT6}:{sT7}]")
            I(f"s_lshl_b32 s{sT5}, s{sP1K}, 11")
            I(f"s_add_u32 s{sT6}, s{sT6}, s{sT5}"); I(f"s_addc_u32 s{sT7}, s{sT7}, 0")
            I(f"v_and_b32 v{vT+8}, 15, v{vLane}"); I(f"v_lshlrev_b32 v{vT+8}, 7, v{vT+8}")
            I(f"v_mov_b32 v{vT+9}, s{sT7}"); I(f"v_add_co_u32 v{vT+8}, vcc, s{sT6}, v{vT+8}"); I(f"v_addc_co_u32 v{vT+9}, vcc, 0, v{vT+9}, vcc")
            I(f"s_cmp_ge_u32 s{sT5}, CODE_SPAN"); I("s_cbranch_scc1 L_nopf")
            e.begin_opt(); I(f"global_load_dword v{vAUG+1}, v[{vT+8}:{vT+9}], off"); e.end_opt()
            e.label("L_nopf")
        I(f"s_lshl_b32 s{sFlSt}, s{sP1K}, 7"); I(f"s_add_u32 s{sFlSt}, s{sFlSt}, {hx(G_FL)}")
        I(f"s_add_u32 s{sFlPo}, s{sW1K}, {hx(G_FL)}")
        I(f"s_lshl_b32 s{sP1K}, s{sP1K}, 10")
        self.srd(sWS, pWS, WSLIM)
        I(f"s_mul_i32 s{sT5}, s{sg}, {hx(G_STR)}"); I(f"s_add_u32 s{sT5}, s{sT5}, {hx(GRP)}")
        I(f"s_add_u32 s{sG}, s{pWS}, s{sT5}"); I(f"s_addc_u32 s{sG+1}, s{pWS+1}, 0"); I(f"s_mov_b32 s{sG+2}, {hx(G_SZ)}"); I(f"s_mov_b32 s{sG+3}, 0x20000")
        I(f"s_add_u32 s{sKV}, s{pWS}, {hx(KVB)}"); I(f"s_addc_u32 s{sKV+1}, s{pWS+1}, 0"); I(f"s_mov_b32 s{sKV+2}, 0x20000"); I(f"s_mov_b32 s{sKV+3}, 0x20000")
        I(f"s_mov_b32 s{sLayer}, 0"); I(f"s_mov_b32 s{sMode}, 1"); I(f"s_mov_b32 s{sOnes}, 0x3f803f80")
        I(f"s_lshr_b32 s{sT5}, s{sg}, 3"); I(f"s_and_b32 s{sT6}, s{sg}, 7")
        I(f"s_lshl_b32 s{sKVFs}, s{sT5}, 6"); I(f"s_lshl_b32 s{sT7}, s{sT6}, 2"); I(f"s_add_u32 s{sKVFs}, s{sKVFs}, s{sT7}")
        I(f"s_add_u32 s{sKVst}, s{sT7}, s{sT5}")
        I(f"s_lshr_b32 s{sT7}, s{sj}, 2"); I(f"s_lshl_b32 s{sT7}, s{sT7}, 5")
        I(f"s_add_u32 s{sKVFs}, s{sKVFs}, s{sT7}"); I(f"s_add_u32 s{sKVst}, s{sKVst}, s{sT7}")
        I(f"s_and_b32 s{sT7}, s{sj}, 3"); I(f"s_add_u32 s{sKVFs}, s{sKVFs}, s{sT7}")
        I(f"s_lshl_b32 s{sKVFs}, s{sKVFs}, 7"); I(f"s_add_u32 s{sKVFs}, s{sKVFs}, {hx(GF)}")
        I(f"s_add_u32 s{sKVFp}, s{sW8K}, {hx(GF)}")
        I(f"s_lshl_b32 s{sKVst}, s{sKVst}, 10")
        I(f"s_and_b32 s{sT5}, s{sT4}, 1"); I(f"s_lshl_b32 s{sT5}, s{sT5}, 8"); I(f"s_and_b32 s{sT6}, s{sj}, 1")
        I(f"s_lshl_b32 s{sT5}, s{sT5}, s{sT6}"); I(f"s_lshl_b32 s{sT6}, s{sT6}, 16")
        I(f"s_add_u32 s{sKVst}, s{sKVst}, s{sT5}"); I(f"s_add_u32 s{sKVst}, s{sKVst}, s{sT6}")
        for q in range(4): I(f"s_xor_b32 s{sQ+q}, s{sW8K}, {q*8192}")
        I(f"s_mul_i32 s{sT5}, s{sj}, 7"); I(f"s_lshl_b32 s{sT6}, s{sw}, 1"); I(f"s_add_u32 s{sT5}, s{sT5}, s{sT6}")
        I(f"s_mul_i32 s{sW1o}, s{sT5}, {33*1024}"); I(f"s_add_u32 s{sW1o}, s{sW1o}, {hx(W1S)}")
        I(f"s_lshl_b32 s{sHs}, s{sT5}, 11"); I(f"s_add_u32 s{sHs}, s{sHs}, {hx(G_H)}")
        I(f"s_cmp_eq_u32 s{sw}, 3"); I(f"s_cselect_b32 s{sT6}, {hx(BIG)}, 0")
        I(f"s_add_u32 s{sW1o+1}, s{sW1o}, {33*1024}"); I(f"s_add_u32 s{sW1o+1}, s{sW1o+1}, s{sT6}")
        I(f"s_add_u32 s{sHs+1}, s{sHs}, 2048"); I(f"s_add_u32 s{sHs+1}, s{sHs+1}, s{sT6}")
        I(f"s_mul_i32 s{sHl}, s{sw}, {28*1024}")
        I(f"s_lshr_b32 s{sT6}, s{sw}, 1"); I(f"s_lshl_b32 s{sT5}, s{sj}, 1"); I(f"s_add_u32 s{sT5}, s{sT5}, s{sT6}")
        for n in range(2):
            if n: I(f"s_xor_b32 s{sT5}, s{sT5}, 1")
            I(f"s_lshl_b32 s{sWOo+n}, s{sT5}, 15"); I(f"s_add_u32 s{sWOo+n}, s{sWOo+n}, s{sW8K}"); I(f"s_add_u32 s{sWOo+n}, s{sWOo+n}, {hx(WOS)}")
            I(f"s_mul_i32 s{sW2o+n}, s{sT5}, {112*1024}"); I(f"s_add_u32 s{sW2o+n}, s{sW2o+n}, s{sHl}"); I(f"s_add_u32 s{sW2o+n}, s{sW2o+n}, {hx(W2S)}")
        I(f"s_add_u32 s{sHl}, s{sHl}, {hx(G_H)}")
        I(f"s_and_b32 s{sT5}, s{sw}, 1"); I(f"s_lshl_b32 s{sT5}, s{sT5}, 8"); I(f"v_xor_b32 v{vL16x}, s{sT5}, v{vL16}")
        I(f"v_lshlrev_b32 v{vPoll}, 7, v{vLane}")
        I(f"v_add_u32 v{vEW}, s{sT3}, v{vL16}")
        for q in (1, 2, 3):
            I(f"v_xor_b32 v{vER+q-1}, {hx(q*0x4000)}, v{vEW}")
            if q > 1: I(f"v_add_u32 v{vER+q-1}, {(q-1)*2048}, v{vER+q-1}")
        I(f"v_mov_b32 v{vIdx}, 0xdddddddd")
        e.wait_lg0(force=True)
        I(f"s_add_u32 s{sN}, s{sN}, 16"); I(f"s_addc_u32 s{sN+1}, s{sN+1}, 0"); I(f"s_and_b32 s{sN}, s{sN}, -16")
        I(f"s_getreg_b32 s{sT5}, hwreg(HW_REG_XCC_ID, 0, 4)"); I(f"s_or_b32 s{sMyF}, s{sN}, s{sT5}")
        I(f"v_mov_b32 v{vN}, s{sN}"); I(f"v_mov_b32 v{vN+1}, s{sN+1}")

    def rowaddr(self, d, hh16):
        return [f"v_lshrrev_b32 v{hh16}, 5, v{vLane}", f"v_lshlrev_b32 v{hh16}, 4, v{hh16}", f"v_and_b32 v{d}, 31, v{vLane}",
                f"v_lshl_add_u32 v{d}, v{d}, 10, v{hh16}"]
    def wq_dma(self, va):
        o = [f"v_lshrrev_b32 v{va}, 2, v{vLane}", f"v_lshlrev_b32 v{va}, 10, v{va}", f"v_and_or_b32 v{va}, v{vL16}, 48, v{va}"]
        for ks in range(8):
            for n in range(2):
                o += [f"s_add_u32 m0, s{sWQl}, {(2*ks+n)*1024}", f"s_add_u32 s{sT7}, s{sWQo+n}, {ks*16384}", self.dma(va, sWQ, f"s{sT7}")]
        return o
    def traddr(self, d, t, swapw):
        o = [f"v_lshrrev_b32 v{d}, 5, v{vLane}", f"v_lshlrev_b32 v{d}, 9, v{d}",
             f"v_bfe_u32 v{t}, v{vLane}, 2, 2", f"v_lshl_or_b32 v{d}, v{t}, 6, v{d}",
             f"v_bfe_u32 v{t}, v{vL16x if swapw else vL16}, 8, 1", f"v_lshl_or_b32 v{d}, v{t}, 5, v{d}",
             f"v_and_b32 v{t}, 1, v{vLane}", f"v_lshl_or_b32 v{d}, v{t}, 4, v{d}",
             f"v_bfe_u32 v{t}, v{vLane}, 1, 1", f"v_lshl_or_b32 v{d}, v{t}, 3, v{d}",
             f"v_add_u32 v{d}, s{sWQl}, v{d}"]
        return o
    def wkv_reads(self, W):
        a = vT + 6; t = vT + 7
        o = [f"v_lshrrev_b32 v{a}, 4, v{vLane}", f"v_lshlrev_b32 v{a}, 8, v{a}", f"v_and_b32 v{t}, 15, v{vLane}",
             f"v_lshl_or_b32 v{a}, v{t}, 3, v{a}", f"s_lshl_b32 s{sT5}, s{sw}, 12", f"s_add_u32 s{sT5}, s{sT5}, {hx(L_WKV)}",
             f"v_add_u32 v{a}, s{sT5}, v{a}"]
        for s in range(4):
            for h in range(2): o.append(f"ds_read_b64_tr_b16 {V(W+4*s+2*h,2)}, v{a} offset:{s*1024+h*128}")
        return o
    def wq_reads(self):
        a = vT + 6
        o = self.traddr(a, vT + 7, True)
        for f in range(16):
            for h in range(2): o.append(f"ds_read_b64_tr_b16 {A(4*f+2*h,2)}, v{a} offset:{f*1024+h*256}")
        return o

    def qkv(self, first):
        e = self.e; I = e.I
        W = vF0; XK = 240; X = 176; AQ = 112; ONE = vF1 + 16
        acc, sm, cs, gr = vF1, vF1 + 4, vF1 + 8, vF1 + 12
        for i in range(4): I(f"v_mov_b32 v{ONE+i}, s{sOnes}")
        I(f"s_lshr_b32 s{sT4}, s{sj}, 1")
        if first:
            a = vT + 8
            I(f"v_and_b32 v{vT+4}, 15, v{vLane}"); I(f"v_lshrrev_b32 v{vT+5}, 4, v{vLane}")
            I(f"v_xor_b32 v{vT+5}, v{vT+5}, v{vT+4}"); I(f"v_lshlrev_b32 v{vT+5}, 4, v{vT+5}")
            I(f"v_lshl_or_b32 v{a}, v{vT+4}, 8, v{vT+5}")
            I(f"s_lshl_b32 s{sT5}, s{sT4}, 12"); I(f"s_lshl_b32 s{sT6}, s{sw}, 14"); I(f"s_add_u32 s{sT5}, s{sT5}, s{sT6}")
            I(f"v_add_u32 v{a}, s{sT5}, v{a}")
            o = self.wkv_reads(W)
            e.seq(o[:7]); e.wait(*self.tk_wkv); e.seq(o[7:])
            e.wait(*self.tk_x[0])
            for s in range(4):
                if s: I(f"v_xor_b32 v{a+1}, {s*64}, v{a}")
                I(f"ds_read_b128 {V(XK+4*s,4)}, v{a+(1 if s else 0)}")
            e.wait_lg0()
        else:
            e.seq(self.wkv_reads(W)); e.seq(self.wq_reads())
            a = vT + 8
            I(f"v_lshrrev_b32 v{a}, 4, v{vLane}"); I(f"v_lshlrev_b32 v{a}, 9, v{a}"); I(f"v_and_b32 v{a+1}, 0xf0, v{vL16}"); I(f"v_or_b32 v{a}, v{a}, v{a+1}")
            I(f"s_lshr_b32 s{sT5}, s{sT4}, 1"); I(f"s_lshl_b32 s{sT5}, s{sT5}, 15"); I(f"s_and_b32 s{sT6}, s{sT4}, 1"); I(f"s_lshl_b32 s{sT6}, s{sT6}, 8")
            I(f"s_add_u32 s{sT5}, s{sT5}, s{sT6}"); I(f"s_add_u32 s{sT0}, s{sW8K}, {hx(G_X2)}"); I(f"s_add_u32 s{sT5}, s{sT5}, s{sT0}")
            I(f"s_add_u32 s{sT6}, s{sT5}, 4096")
            e.wait_lg0()
            self.gpoll(6)
            self.stamp("x2poll")
            tk = [I(self.ld(V(XK + 4 * s, 4), a, sG, f"s{sT5 + (s >> 1)}", (s & 1) * 2048, "sc1")) for s in range(4)]
            for mt in range(2):
                for ks in range(8):
                    if ks % 4 == 0: I(f"s_add_u32 s{sT1}, s{sT0}, {mt*0x8000 + ks*1024}")
                    I(self.ld(V(X + (mt * 8 + ks) * 4, 4), vL16, sG, f"s{sT1}", (ks % 4) * 1024, "sc1"))
            I(f"s_add_u32 s{sFlSt}, s{sFlSt}, 64"); I(f"s_add_u32 s{sFlPo}, s{sFlPo}, 64")
            I(f"s_add_u32 s{sKV}, s{sKV}, 0x20000"); I(f"s_addc_u32 s{sKV+1}, s{sKV+1}, 0")
            I(f"s_add_u32 s{sKVFs}, s{sKVFs}, 0x8000"); I(f"s_add_u32 s{sKVFp}, s{sKVFp}, 0x8000")
            I(f"s_mov_b32 s{sLayer}, 1")
            e.wait(*tk)
        self.stamp("kvx")
        lv = e.newlab("L_kvv"); lj = e.newlab("L_kvj")
        I(f"s_bitcmp1_b32 s{sj}, 0"); I(f"s_cbranch_scc1 {lv}")
        for typ in range(2):
            e.begin_opt()
            for s in range(4):
                x = V(XK + 4 * s, 4); w = V(W + 4 * s, 4); one = V(ONE, 4)
                pr = (lambda a, b: (a, b)) if typ == 0 else (lambda a, b: (b, a))
                I(self.mf16(acc, *pr(w, x), s == 0)); I(self.mf16(sm, *pr(one, x), s == 0)); I(self.mf16(gr, x, x, s == 0))
                if first: I(self.mf16(cs, *pr(w, one), s == 0))
            if typ == 0: I(f"s_branch {lj}")
            e.end_opt()
            if typ == 0: e.label(lv)
        e.label(lj)
        ah = vT + 4
        I(f"v_add_u32 v{ah}, {hx(L_KVR)}, v{vL16}")
        I(f"s_lshl_b32 s{sT5}, s{sw}, 12"); I(f"v_add_u32 v{ah+1}, s{sT5}, v{ah}")
        I(f"ds_write_b128 v{ah+1}, {V(gr,4)} offset:{0xC00}")
        l0 = e.newlab("L_kvw")
        I(f"s_cmp_eq_u32 s{sw}, 0"); I(f"s_cbranch_scc1 {l0}")
        e.begin_opt()
        I(f"ds_write_b128 v{ah+1}, {V(acc,4)}"); I(f"ds_write_b128 v{ah+1}, {V(sm,4)} offset:{0x400}")
        if first: I(f"ds_write_b128 v{ah+1}, {V(cs,4)} offset:{0x800}")
        e.end_opt(); e.label(l0)
        ga = vT + 6; gs = sT6; sa = vT + 7; n16 = vT + 8; q = vT + 9; t = vT + 10
        I(f"v_and_b32 v{n16}, 15, v{vLane}"); I(f"v_lshrrev_b32 v{q}, 4, v{vLane}")
        lv = e.newlab("L_kvv"); lj = e.newlab("L_kvj")
        I(f"s_bitcmp1_b32 s{sj}, 0"); I(f"s_cbranch_scc1 {lv}")
        e.begin_opt()
        I(f"v_lshrrev_b32 v{ga}, 2, v{n16}"); I(f"v_lshlrev_b32 v{ga}, 8, v{ga}"); I(f"v_lshl_or_b32 v{ga}, v{n16}, 4, v{ga}")
        I(f"v_and_b32 v{t}, 3, v{n16}"); I(f"v_lshl_or_b32 v{ga}, v{t}, 2, v{ga}"); I(f"s_mov_b32 s{gs}, 0")
        I(f"v_lshrrev_b32 v{sa}, 1, v{q}"); I(f"v_lshlrev_b32 v{sa}, 9, v{sa}"); I(f"v_lshl_or_b32 v{sa}, v{n16}, 4, v{sa}")
        I(f"s_branch {lj}")
        e.end_opt(); e.label(lv); e.begin_opt()
        I(f"v_mul_u32_u24 v{ga}, 0x140, v{q}"); I(f"s_mov_b32 s{gs}, 20")
        I(f"v_lshrrev_b32 v{sa}, 1, v{q}"); I(f"v_lshlrev_b32 v{sa}, 8, v{sa}")
        I(f"v_and_b32 v{t}, 3, v{n16}"); I(f"v_lshl_or_b32 v{sa}, v{t}, 4, v{sa}")
        I(f"v_bfe_u32 v{t}, v{n16}, 2, 1"); I(f"v_lshl_or_b32 v{sa}, v{t}, 7, v{sa}")
        I(f"v_bfe_u32 v{t}, v{n16}, 3, 1"); I(f"v_lshl_or_b32 v{sa}, v{t}, 6, v{sa}")
        e.end_opt(); e.label(lj)
        I(f"v_and_b32 v{t}, 1, v{q}"); I(f"v_lshl_or_b32 v{sa}, v{t}, 3, v{sa}")
        I(f"v_add_u32 v{ga}, {hx(L_KVR + 0xC00)}, v{ga}")
        g1 = vT + 8
        I(f"v_add_u32 v{g1}, s{gs}, v{ga}"); I(f"v_add_u32 v{g1+1}, s{gs}, v{g1}"); I(f"v_add_u32 v{g1+2}, s{gs}, v{g1+1}")
        gaddr = [ga, g1, g1 + 1, g1 + 2]
        e.wait_lg0(force=True); e.barrier()
        lf = e.newlab("L_kvf")
        I(f"s_cmp_lg_u32 s{sw}, 0"); I(f"s_cbranch_scc1 {lf}")
        e.begin_opt()
        tg = AQ; ts = AQ + 16; ta = AQ + 28; tc = AQ + 40
        for w2 in range(4):
            for r in range(4): I(f"ds_read_b32 v{tg+4*w2+r}, v{gaddr[r]} offset:{w2*0x1000}")
            if w2: I(f"ds_read_b128 {V(ts+4*(w2-1),4)}, v{ah} offset:{w2*0x1000+0x400}")
        for w2 in range(1, 4):
            I(f"ds_read_b128 {V(ta+4*(w2-1),4)}, v{ah} offset:{w2*0x1000}")
            if first: I(f"ds_read_b128 {V(tc+4*(w2-1),4)}, v{ah} offset:{w2*0x1000+0x800}")
        def padd(d, s): I(f"v_pk_add_f32 {V(d,2)}, {V(d,2)}, {V(s,2)}"); I(f"v_pk_add_f32 {V(d+2,2)}, {V(d+2,2)}, {V(s+2,2)}")
        for w2 in range(1, 4): padd(tg, tg + 4 * w2); padd(sm, ts + 4 * (w2 - 1))
        k = hx(f2u(1 / 512))
        for r in range(4): I(f"v_mul_f32 v{sm+r}, {k}, v{sm+r}")
        for r in range(4): I(f"v_mul_f32 v{tg+r}, {k}, v{tg+r}")
        for r in range(4): I(f"v_fma_f32 v{tg+r}, -v{sm+r}, v{sm+r}, v{tg+r}")
        for r in range(4): I(f"v_max_f32 v{tg+r}, 0, v{tg+r}")
        for r in range(4): I(f"v_add_f32 v{tg+r}, {hx(f2u(1e-5))}, v{tg+r}")
        for r in range(4): I(f"v_rsq_f32 v{tg+r}, v{tg+r}")
        for w2 in range(1, 4):
            padd(acc, ta + 4 * (w2 - 1))
            if first: padd(cs, tc + 4 * (w2 - 1))
        if first:
            for r in range(4): I(f"v_mov_b32 v{vCSKV+r}, v{cs+r}")
        for r in range(4): I(f"v_fma_f32 v{acc+r}, -v{sm+r}, v{vCSKV+r}, v{acc+r}")
        for r in range(4): I(f"v_mul_f32 v{acc+r}, v{acc+r}, v{tg+r}")
        e.seq(self.pack(acc, acc, 2))
        I(self.st(V(acc, 2), sa, sKV, f"s{sKVst}", 0, "sc1", w=2))
        I(f"v_mov_b32 v{tg}, s{sMyF}"); I(f"v_mov_b32 v{tg+1}, s{sN+1}")
        e.wait_vm0()
        I("s_mov_b64 exec, 1"); I(self.st(V(tg, 2), vPoll, sWS, f"s{sKVFs}", 0, "sc1", w=2)); I("s_mov_b64 exec, -1")
        e.end_opt(); e.label(lf)
        self.stamp("kvdone")
        sd = [vF1, vF1 + 1, vF1 + 2, vF1 + 3]
        if first:
            a = vT + 8
            I(f"v_and_b32 v{a+1}, 31, v{vLane}"); I(f"v_lshrrev_b32 v{a}, 5, v{vLane}"); I(f"v_xor_b32 v{a}, v{a}, v{a+1}")
            I(f"v_and_b32 v{a}, 15, v{a}"); I(f"v_lshlrev_b32 v{a}, 4, v{a}"); I(f"v_lshl_or_b32 v{a}, v{a+1}, 8, v{a}")
            I(f"s_lshl_b32 s{sT6}, s{sw}, 14"); I(f"v_add_u32 v{a}, s{sT6}, v{a}")
            e.wait(*self.tk_x[3])
            for ks in range(8):
                if ks: I(f"v_xor_b32 v{a+1}, {ks*32}, v{a}")
                for mt in range(2): I(f"ds_read_b128 {V(X+(mt*8+ks)*4,4)}, v{a+(1 if ks else 0)} offset:{mt*8192}")
            o = self.wq_reads()
            e.seq(o[:11]); e.wait(*self.tk_wq); e.seq(o[11:])
            self.swz_setup()
            for mt in range(2):
                for i in range(4):
                    I(f"v_lshlrev_b32 v{RES(mt)+2*i}, 16, v{vF0+16+4*mt+i}"); I(f"v_and_b32 v{RES(mt)+2*i+1}, 0xffff0000, v{vF0+16+4*mt+i}")
            e.wait_lg0()
            self.swz_dma()
            self.stamp("wqrd")
            c = AQ + 32
            for ks in range(8):
                for n in range(2): I(self.mf(c + 16 * n, A((2 * ks + n) * 4, 4), V(ONE, 4), '0' if ks == 0 else None))
        for r in sd: I(f"v_mov_b32 v{r}, 0")
        main = []
        for mt in range(2):
            for ks in range(8):
                for n in range(2): main.append([self.mf(AQ + 32 * mt + 16 * n, A((2 * ks + n) * 4, 4), V(X + (mt * 8 + ks) * 4, 4), '0' if ks == 0 else None)])
        fill0 = []
        if first:
            fill0 = [f"v_add_u32 v{vT+8}, 0x10000, v{vEW}"] + self.exw(AQ + 32, 0, vT + 8) + [f"v_mov_b32 v{vCSQ+i}, v{AQ+32+i}" for i in range(8)]
        d0 = self.dots(sd[0], sd[1], X, 32); d1 = self.dots(sd[2], sd[3], X + 32, 32)
        a, r0 = interleave(main[:16], d0[:24] + fill0 + d0[24:], 24)
        e.seq(a); e.seq(r0)
        a, r1 = interleave(main[16:], d1[:12] + self.exw(AQ, 0) + d1[12:], 24)
        e.seq(a); e.seq(r1)
        e.seq(self.exw(AQ + 32, 0x1800))
        I(f"s_lshl_b32 s{sT5}, s{sw}, 2"); I(f"v_add_u32 v{ah+1}, s{sT5}, v{ah}")
        for mt in range(2): e.seq(self.stat_write(sd[2 * mt], sd[2 * mt + 1], ah + 1, mt))
        e.wait_lg0(); e.barrier()
        t0 = vF1 + 4
        for mt in range(2): I(f"ds_read_b128 {V(t0+4*mt,4)}, v{ah} offset:{mt*1024}")
        if first:
            for q in range(3): I(f"v_add_u32 v{vT+8+q}, 0x10000, v{vER+q}")
            e.seq(self.exr(vF0, 0, vT + 8))
        for mt in range(2): e.seq(self.exr(X + 24 * mt, 0x1800 * mt))
        I(f"v_add_u32 v{ah+1}, s{sW1K}, v{ah}")
        if not self.opt.get('allones'):
            I(f"v_and_b32 v{ONE+1}, 11, v{vLane}"); I(f"v_cmp_eq_u32 vcc, 0, v{ONE+1}")
            for i in (1, 2, 3, 0): I(f"v_cndmask_b32 v{ONE+i}, 0, v{ONE}, vcc")
        I(f"ds_write_b128 v{ah+1}, {V(ONE,4)} offset:{L_ONES-L_KVR}")
        for mt in range(2):
            e.seq(self.stat_fin(t0 + 4 * mt, sd[2 * mt], sd[2 * mt + 1]))
        if first: e.seq(self.exadd(vCSQ, vF0))
        for mt in range(2):
            m, r = sd[2 * mt], sd[2 * mt + 1]; ac = AQ + 32 * mt
            I(f"v_mul_f32 v{r}, {hx(f2u(QS))}, v{r}")
            e.seq(self.exadd(ac, X + 24 * mt))
            for i in range(8): I(f"v_fma_f32 v{ac+i}, -v{m}, v{vCSQ+i}, v{ac+i}")
            for i in range(8): I(f"v_mul_f32 v{ac+i}, v{ac+i}, v{r}")
            e.seq(self.pack(vQ + 4 * mt, ac))
        self.stamp("qdone")
        if first: self.swz_do(ah)
        else: e.wait_lg0(); e.barrier()

    def swz_setup(self):
        e = self.e; I = e.I
        l2 = e.newlab("L_sw2"); lo = e.newlab("L_swo"); lj = e.newlab("L_swj")
        I(f"s_mov_b32 s{sAug}, {hx(BIG)}"); I(f"s_mov_b32 s{sTA+3}, 0x20000")
        I(f"s_cmp_ge_u32 s{sg}, 14"); I(f"s_cbranch_scc1 {l2}")
        I(f"s_mov_b64 s[{sTA}:{sTA+1}], s[{pW1}:{pW1+1}]"); I(f"s_mov_b32 s{sTA+2}, {512*1792*2}")
        I(f"s_mov_b32 s{sT0}, 3584"); I(f"s_and_b32 s{sT1}, s{sg}, 1")
        I(f"s_mul_i32 s{sT2}, s{sj}, 7"); I(f"s_lshr_b32 s{sT3}, s{sg}, 1"); I(f"s_add_u32 s{sT2}, s{sT2}, s{sT3}")
        I(f"s_mul_i32 s{sSwD}, s{sT2}, {33*1024}"); I(f"s_add_u32 s{sSwD}, s{sSwD}, {hx(W1S)}")
        I(f"s_lshl_b32 s{sT3}, s{sT1}, 3"); I(f"s_add_u32 s{sT3}, s{sT3}, s{sSwD}"); I(f"s_add_u32 s{sT3}, s{sT3}, {32*1024}")
        I(f"s_cmp_eq_u32 s{sw}, 0"); I(f"s_cselect_b32 s{sAug}, s{sT3}, s{sAug}")
        I(f"s_branch {lj}")
        e.label(l2)
        I(f"s_mov_b32 s{sT0}, 1024"); I(f"s_lshl_b32 s{sT2}, s{sj}, 1")
        I(f"s_cmp_ge_u32 s{sg}, 28"); I(f"s_cbranch_scc1 {lo}")
        I(f"s_mov_b64 s[{sTA}:{sTA+1}], s[{pW2}:{pW2+1}]"); I(f"s_mov_b32 s{sTA+2}, {512*1792*2}")
        I(f"s_cmp_ge_u32 s{sg}, 21"); I(f"s_cselect_b32 s{sT3}, 21, 14"); I(f"s_addc_u32 s{sT2}, s{sT2}, 0")
        I(f"s_sub_u32 s{sT1}, s{sg}, s{sT3}")
        I(f"s_mul_i32 s{sSwD}, s{sT2}, {112*1024}"); I(f"s_add_u32 s{sSwD}, s{sSwD}, {hx(W2S)}")
        I(f"s_branch {lj}")
        e.label(lo)
        I(f"s_mov_b64 s[{sTA}:{sTA+1}], s[{pWO}:{pWO+1}]"); I(f"s_mov_b32 s{sTA+2}, 0x80000")
        I(f"s_and_b32 s{sT1}, s{sg}, 1"); I(f"s_bitcmp1_b32 s{sg}, 1"); I(f"s_addc_u32 s{sT2}, s{sT2}, 0")
        I(f"s_lshl_b32 s{sSwD}, s{sT2}, 15"); I(f"s_add_u32 s{sSwD}, s{sSwD}, {hx(WOS)}")
        e.label(lj)
        I(f"s_lshl_b32 s{sT1}, s{sT1}, 2"); I(f"s_add_u32 s{sT1}, s{sT1}, s{sw}")
        I(f"s_lshl_b32 s{sT3}, s{sT1}, 12"); I(f"s_add_u32 s{sSwD}, s{sSwD}, s{sT3}")
        I(f"s_lshl_b32 s{sT1}, s{sT1}, 6"); I(f"s_mul_i32 s{sT1}, s{sT1}, s{sT0}")
        I(f"s_lshl_b32 s{sT2}, s{sT2}, 6"); I(f"s_add_u32 s{sT1}, s{sT1}, s{sT2}")
        a = vT + 9
        I(f"v_lshrrev_b32 v{a}, 2, v{vLane}"); I(f"v_mul_lo_u32 v{a}, v{a}, s{sT0}"); I(f"v_and_or_b32 v{a}, v{vL16}, 48, v{a}")
        I(f"s_lshl_b32 s{sT0}, s{sT0}, 4")
        b = vT + 10; t = vT + 8
        I(f"v_and_b32 v{b}, 0x13, v{vLane}"); I(f"v_bfe_u32 v{t}, v{vLane}, 2, 1"); I(f"v_lshl_or_b32 v{b}, v{t}, 3, v{b}")
        I(f"v_bfe_u32 v{t}, v{vLane}, 3, 1"); I(f"v_lshl_or_b32 v{b}, v{t}, 2, v{b}")
        I(f"v_lshrrev_b32 v{t}, 5, v{vLane}"); I(f"v_lshl_or_b32 v{b}, v{t}, 15, v{b}"); I(f"v_lshlrev_b32 v{b}, 1, v{b}")
        self.srd(sTB, pB1, 3584)
        I(f"buffer_load_ushort v{vAUG}, v{b}, s[{sTB}:{sTB+3}], s{sT2} offen")
        I(f"s_lshl_b32 s{sSwF}, s{sj}, 12"); I(f"s_add_u32 s{sSwF}, s{sSwF}, {hx(GF + 0x10000)}")
    def swz_dma(self):
        I = self.I
        self.tk_sw = []
        for f in range(4):
            I(f"s_add_u32 m0, s{sWQl}, {0x2000 + f*1024}")
            if f: I(f"s_add_u32 s{sT1}, s{sT1}, s{sT0}")
            self.tk_sw.append(I(self.dma(vT + 9, sTA, f"s{sT1}")))
    def swz_do(self, ah):
        e = self.e; I = e.I
        a = vT + 6; F = 112; c = vT + 8
        e.seq(self.traddr(a, vT + 7, False)); I(f"v_mov_b32 v{c}, 0")
        e.wait(*self.tk_sw)
        for f in range(4):
            for h in range(2): I(f"ds_read_b64_tr_b16 {V(F+4*f+2*h,2)}, v{a} offset:{0x2000+f*1024+h*256}")
        for f in range(4): I(self.st(V(F + 4 * f, 4), vL16, sWS, f"s{sSwD}", f * 1024, "sc1"))
        for i in range(16): I(f"v_dot2c_f32_bf16 v{c}, s{sOnes}, v{F+i}")
        I(f"s_lshl_b32 s{sT5}, s{sw}, 2"); I(f"v_add_u32 v{ah+1}, s{sT5}, v{ah}")
        I(f"ds_write_b32 v{ah+1}, v{c} offset:{L_CSR-L_KVR}")
        e.wait_lg0(); e.barrier()
        t = F + 16
        I(f"ds_read_b128 {V(t,4)}, v{ah} offset:{L_CSR-L_KVR}")
        I(f"v_add_f32 v{t}, v{t}, v{t+1}"); I(f"v_add_f32 v{t+2}, v{t+2}, v{t+3}"); I(f"v_add_f32 v{t}, v{t}, v{t+2}")
        I(f"v_cvt_pk_bf16_f32 v{t+1}, v{t}, v{t}"); I(f"v_lshlrev_b32 v{t+2}, 16, v{t+1}"); I(f"v_sub_f32 v{t}, v{t}, v{t+2}")
        I(f"v_cvt_pk_bf16_f32 v{t}, v{t+2}, v{t}"); I(f"v_and_b32 v{t+1}, 0xffff, v{t+1}"); I(f"v_lshl_or_b32 v{t+1}, v{vAUG}, 16, v{t+1}")
        I(self.st(V(t, 2), vL16, sWS, f"s{sAug}", 0, "sc1", w=2))
        self.stamp("swz")

    def attention(self):
        e = self.e; I = e.I
        Kf = [vF0, vF0 + 4]; Vf = [vF0 + 8, vF0 + 16]
        vInc = vF1; vPW = vF1 + 1; vMA = vF1 + 3; vSA = vF1 + 4; vMD = vF1 + 5; vSD = vF1 + 6; vJ = vF1 + 8; t = vF1 + 9
        S_ = [vS, vS + 16]; O_ = [vO, vO + 16]
        I(f"v_and_b32 v{t}, 16, v{vLane}"); I(f"v_cmp_eq_u32 vcc, 0, v{t}")
        I(f"v_lshrrev_b32 v{t}, 5, v{vLane}"); I(f"v_lshlrev_b32 v{t}, 8, v{t}"); I(f"v_add_u32 v{t}, {hx(L_V)}, v{t}")
        I(f"v_mov_b32 v{t+1}, {hx(L_ONES)}"); I(f"v_cndmask_b32 v{vV}, v{t+1}, v{t}, vcc")
        I(f"v_and_b32 v{t}, 0xf0, v{vL16}"); I(f"v_or_b32 v{vV}, v{vV}, v{t}")
        I(f"v_mov_b32 v{t}, 0x1000"); I(f"v_cndmask_b32 v{vInc}, 0, v{t}, vcc")
        I(f"v_and_b32 v{vMA}, 0x180, v{vPoll}"); I(f"v_bfe_u32 v{t}, v{vLane}, 2, 1"); I(f"v_lshl_or_b32 v{vMA}, v{t}, 12, v{vMA}")
        I(f"v_and_b32 v{vSA}, 0xf80, v{vPoll}")
        for i in range(32): I(f"v_mov_b32 v{vO+i}, 0")
        self.poll(sWS, f"s{sKVFp}", 0, 64, kv=True)
        self.stamp("kvpoll")
        def kvdma(i, v): return ([f"s_add_u32 m0, s{sW1K}, {hx(i*4096 + v*0x10000)}"], self.dma(vL16, sKV, "m0", 0, "sc1"))
        tk = []
        for i in range(4):
            for v in range(2):
                p, o = kvdma(i, v); e.seq(p); tk.append(I(o))
        e.wait(tk[1]); e.barrier()
        l1 = e.newlab("L_nosw")
        I(f"s_or_b32 s{sT5}, s{sLayer}, s{sw}"); I(f"s_cbranch_scc1 {l1}")
        e.begin_opt()
        I(f"s_lshl_b32 s{sT5}, s{sg}, 7"); I(f"s_add_u32 s{sT5}, s{sT5}, s{sSwF}")
        I(f"s_cmp_eq_u32 s2, 0"); I(f"s_cselect_b32 s{sT6}, 0, {hx(BIG)}")
        I("s_mov_b64 exec, 1")
        I(self.st(V(vN, 2), vPoll, sWS, f"s{sT5}", 0, "sc1", w=2)); I(self.st(V(vN, 2), vPoll, sWS, f"s{sT6}", 0, "sc1", w=2))
        I("s_mov_b64 exec, -1")
        e.end_opt(); e.label(l1)
        vm = [[] for _ in range(64)]
        lst = [kvdma(i, v) for i in range(4, 16) for v in range(2)]
        for n, it in enumerate(lst): vm[n // 2].append(it)
        vm[12] = [([f"s_andn2_b32 s{sT5}, s{sKVFs}, 0x1180"], self.ld(V(vMD), vMA, sWS, f"s{sT5}", 0, "sc1", w=1)),
                  ([], self.ld(V(vSD, 2), vSA, sWS, f"s{sSwF}", 0, "sc1", w=2))]
        lst = []
        pw = [([f"s_lshl_b32 s{sT1}, s{sLayer}, 28", f"s_add_u32 s{sT1}, s{sT1}, s{sP1K}"], "!" + self.ld(V(vJ), vL16, sG, f"s{sT1}", 0, "sc1", w=1))]
        for i in (2, 3, 0, 1, 4, 5, 6, 7, 8):
            pw.append(([f"s_add_u32 s{sT0}, s{sT1}, {hx(G_X1 + i * 0x8000)}"], "!" + self.ld(V(vJ), vL16, sG, f"s{sT0}", 0, "sc1", w=1)))
        if self.opt.get('nopw'): pw = []
        wfl = self.opt.get('wfl', 'sc1')
        for n in range(2):
            for ks in range(8):
                pre = [f"s_add_u32 s{sT5}, s{sWOo+n}, {ks*1024}"] if ks % 4 == 0 else []
                lst.append((pre, self.ld(V(vWO + (2 * ks + n) * 4, 4), vL16x, sWS, f"s{sT5}", (ks % 4) * 1024, wfl)))
        for n in range(2):
            for i in range(32):
                pre = []
                if i % 8 == 0: pre = [f"s_add_u32 s{sT5}, s{sW1o+n}, s{sQ+i//8}"]
                elif i % 4 == 0: pre = [f"s_add_u32 s{sT5}, s{sT5}, 4096"]
                lst.append((pre, self.ld(A((2 * i + n) * 4, 4), vL16, sWS, f"s{sT5}", (i % 4) * 1024, wfl)))
            lst.append(([f"s_add_u32 s{sT5}, s{sW1o+n}, {32*1024}"], self.ld(V(vAUG + 4 * n, 4), vL16, sWS, f"s{sT5}", 0, "sc1")))
        if self.opt.get('now'): lst = []
        stp = self.opt.get('pwstep', 9)
        for n, it in enumerate(pw): lst.insert(n * stp, it)
        for n, it in enumerate(lst): vm[16 + n // 2].append(it)
        def rdK(t_): return I(f"ds_read_b128 {V(Kf[t_&1],4)}, v{vL16} offset:{t_*1024}")
        def rdV(t_, s): return I(f"ds_read_b128 {V(Vf[t_&1]+4*s,4)}, v{vV} offset:{(t_&3)*1024+s*512}")
        def smf(mt, t_, s): I(f"v_smfmac_f32_32x32x32_bf16 {V(O_[mt],16)}, {V(Vf[t_&1]+4*s,4)}, {V(S_[mt]+8*s,8)}, v{vIdx}")
        def qk(mt, t_): I(self.mf(S_[mt], V(Kf[t_&1], 4), V(vQ + 4 * mt, 4), '0'))
        def ex(mt, a, b):
            for r in range(a, b): I(f"v_exp_f32 v{S_[mt]+r}, v{S_[mt]+r}")
        rdK(0); rdV(0, 0); rdV(0, 1)
        qk(0, 0)
        self.stamp("attn0")
        lasttk = None
        for t_ in range(64):
            nx = t_ + 1 < 64
            ex(0, 0, 2)
            if t_: smf(1, t_ - 1, 1)
            if nx:
                tkK = rdK(t_ + 1)
                if (t_ + 1) % 4 == 0: I(f"v_add_u32 v{vV}, v{vInc}, v{vV}")
            ex(0, 2, 5); qk(1, t_)
            if nx: rdV(t_ + 1, 0)
            ex(0, 5, 10); smf(0, t_, 0)
            if vm[t_]: e.seq(vm[t_][0][0])
            if nx: tkV = rdV(t_ + 1, 1)
            ex(0, 10, 16)
            ex(1, 0, 2); smf(0, t_, 1)
            if nx: e.wait(tkK)
            if vm[t_]: lasttk = I(vm[t_][0][1])
            ex(1, 2, 5)
            if nx: qk(0, t_ + 1)
            if len(vm[t_]) > 1: e.seq(vm[t_][1][0])
            ex(1, 5, 10); smf(1, t_, 0)
            if nx: e.wait(tkV)
            if t_ in self.opt.get('ast', ()): self.stamp(f"a{t_}")
            if t_ == 2: e.wait(tk[7]); e.barrier()
            if t_ == 14:
                e.wait(lasttk); e.barrier()
                I(f"v_cmp_ne_u32 vcc, s{sMyF}, v{vMD}"); I("s_cmp_lg_u64 vcc, 0")
                I(f"s_cselect_b32 s{sMode}, 1, {1 if self.fsm else 0}")
                I(f"v_cmp_ne_u64 vcc, s[{sN}:{sN+1}], {V(vSD,2)}"); I("s_cbranch_vccnz L_swpoll"); e.label("L_swback")
                e.tail += ["L_swpoll:", f"    s_mov_b32 s{sCnt}, 0", "L_swp2:", "    " + self.ld(V(vSD, 2), vSA, sWS, f"s{sSwF}", 0, "sc1", w=2),
                           f"    s_add_u32 s{sCnt}, s{sCnt}, 1", f"    s_cmp_gt_u32 s{sCnt}, {POLL_LIM}", "    s_cbranch_scc1 L_end",
                           "    s_waitcnt vmcnt(0)", f"    v_cmp_ne_u64 vcc, s[{sN}:{sN+1}], {V(vSD,2)}", "    s_cbranch_vccnz L_swp2", "    s_branch L_swback"]
            if len(vm[t_]) > 1: lasttk = I(vm[t_][1][1])
            ex(1, 10, 16)
        lo, hi = (2.0 ** -64, 2.0 ** 64) if not self.fsa else (2.0 ** 64, 2.0 ** -64)
        I(f"s_mov_b32 s{sT0}, {hx(f2u(lo))}"); I(f"s_mov_b32 s{sT1}, {hx(f2u(hi))}")
        smf(1, 63, 1)
        I(f"v_cmp_lt_f32 s[{sT2}:{sT3}], s{sT0}, v{O_[0]+8}"); I(f"v_cmp_gt_f32 s[{sT4}:{sT5}], s{sT1}, v{O_[0]+8}")
        I(f"s_and_b64 s[{sT2}:{sT3}], s[{sT2}:{sT3}], s[{sT4}:{sT5}]")
        I(f"v_cmp_lt_f32 vcc, s{sT0}, v{O_[1]+8}"); I(f"v_cmp_gt_f32 s[{sT4}:{sT5}], s{sT1}, v{O_[1]+8}")
        I(f"s_and_b64 s[{sT2}:{sT3}], s[{sT2}:{sT3}], vcc"); I(f"s_and_b64 s[{sT2}:{sT3}], s[{sT2}:{sT3}], s[{sT4}:{sT5}]")
        I(f"s_andn2_b64 s[{sT2}:{sT3}], exec, s[{sT2}:{sT3}]"); I("s_cbranch_scc1 L_slowattn"); e.label("L_slowback")
        self.slow_attn(Kf, Vf, vInc, S_, O_)
        self.stamp("attn1")
        for mt in range(2): I(f"v_rcp_f32 v{O_[mt]+8}, v{O_[mt]+8}")
        I(f"s_add_u32 s{sT0}, s{sP1K}, {hx(G_O)}"); I(f"s_add_u32 s{sT1}, s{sP1K}, {hx(G_O + 0x8000)}")
        for mt in range(2):
            for i in range(8): I(f"v_mul_f32 v{O_[mt]+i}, v{O_[mt]+i}, v{O_[mt]+8}")
            e.seq(self.pack(vQ + 4 * mt, O_[mt]))
        self.dual([self.st(V(vQ, 4), vL16, sG, f"s{sT0}"), self.st(V(vQ + 4, 4), vL16, sG, f"s{sT1}")])
        for mt in range(2):
            for i in range(8): I(f"v_mov_b32 v{RES(mt)+8+i}, 0")
        self.publish(0)
        e.barrier()

    def slow_attn(self, Kf, Vf, vInc, S_, O_):
        x = Em(); I = x.I
        x.label("L_slowattn"); x.nop(16)
        M = vF1 + 9; ka = vF1 + 11; va = vF1 + 12; inc = vF1 + 13
        I(f"v_lshrrev_b32 v{inc}, 2, v{vInc}")
        for mt in range(2):
            Sx = S_[0]; C = S_[1]
            I(f"v_mov_b32 v{M}, 0xff800000"); I(f"v_mov_b32 v{ka}, v{vL16}"); I(f"s_mov_b32 s{sCnt}, 0")
            x.label(f"L_sa1_{mt}")
            I(f"ds_read_b128 {V(Kf[0],4)}, v{ka}"); I(f"v_add_u32 v{ka}, 1024, v{ka}")
            I(self.mf(Sx, V(Kf[0], 4), V(vQ + 4 * mt, 4), '0'))
            for i in range(8): I(f"v_max3_f32 v{M}, v{Sx+2*i}, v{Sx+2*i+1}, v{M}")
            I(f"s_add_u32 s{sCnt}, s{sCnt}, 1"); I(f"s_cmp_lt_u32 s{sCnt}, 64"); I(f"s_cbranch_scc1 L_sa1_{mt}")
            I(f"v_mov_b32 v{M+1}, v{M}"); I(f"v_permlane32_swap_b32 v{M}, v{M+1}"); I(f"v_max_f32 v{M}, v{M}, v{M+1}")
            for i in range(16): I(f"v_sub_f32 v{C+i}, 0, v{M}")
            for i in range(16): I(f"v_mov_b32 v{O_[mt]+i}, 0")
            I(f"v_mul_u32_u24 v{va}, 15, v{vInc}"); I(f"v_sub_u32 v{va}, v{vV}, v{va}")
            I(f"v_mov_b32 v{ka}, v{vL16}"); I(f"s_mov_b32 s{sCnt}, 0")
            x.label(f"L_sa2_{mt}")
            I(f"ds_read_b128 {V(Kf[0],4)}, v{ka}"); I(f"ds_read_b128 {V(Vf[0],4)}, v{va}"); I(f"ds_read_b128 {V(Vf[0]+4,4)}, v{va} offset:512")
            I(f"v_add_u32 v{ka}, 1024, v{ka}"); I(f"v_add_u32 v{va}, v{inc}, v{va}")
            I(self.mf(Sx, V(Kf[0], 4), V(vQ + 4 * mt, 4), V(C, 16)))
            for i in range(16): I(f"v_exp_f32 v{Sx+i}, v{Sx+i}")
            for s in range(2): I(f"v_smfmac_f32_32x32x32_bf16 {V(O_[mt],16)}, {V(Vf[0]+4*s,4)}, {V(Sx+8*s,8)}, v{vIdx}")
            x.nop(16)
            I(f"s_add_u32 s{sCnt}, s{sCnt}, 1"); I(f"s_cmp_lt_u32 s{sCnt}, 64"); I(f"s_cbranch_scc1 L_sa2_{mt}")
        I("s_branch L_slowback")
        self.e.tail += x.lines

    def wo(self):
        e = self.e; I = e.I
        X = 176
        self.gpoll(0)
        self.stamp("opoll")
        for mt in range(2):
            for ks in range(8):
                if ks % 4 == 0: I(f"s_add_u32 s{sT1}, s{sW8K}, {G_O + mt*0x8000 + ks*1024}")
                I(self.ld(V(X + (mt * 8 + ks) * 4, 4), vL16, sG, f"s{sT1}", (ks % 4) * 1024, "sc1"))
        main = []
        for mt in range(2):
            for ks in range(8):
                for n in range(2):
                    main.append([self.mf(vACC + 32 * mt + 16 * n, V(vWO + (2 * ks + n) * 4, 4), V(X + (mt * 8 + ks) * 4, 4), '0' if (ks == 0 and n == 1) else None)])
        for g_ in main[:16]: e.seq(g_)
        a, r = interleave(main[16:], self.exw(vACC, 0), 16, start=6)
        e.seq(a); e.seq(r)
        I(f"s_add_u32 s{sT0}, s{sP1K}, {hx(G_X1)}"); I(f"s_add_u32 s{sT1}, s{sP1K}, {hx(G_X1 + 0x8000)}")
        e.seq(self.exw(vACC + 32, 0x1800))
        e.wait_lg0(); e.barrier()
        for mt in range(2): e.seq(self.exr(X + 24 * mt, 0x1800 * mt))
        for mt in range(2):
            e.seq(self.exadd(RES(mt), X + 24 * mt)); e.seq(self.pack(vQ + 4 * mt, RES(mt)))
            self.dual([self.st(V(vQ + 4 * mt, 4), vL16, sG, f"s{sT0+mt}")])
        for i in range(4):
            I(f"v_lshlrev_b32 v{vT+2}, 16, v{vB2+i}"); I(f"v_and_b32 v{vT+3}, 0xffff0000, v{vB2+i}")
            for mt in range(2): I(f"v_pk_add_f32 {V(RES(mt)+2*i,2)}, {V(RES(mt)+2*i,2)}, {V(vT+2,2)}")
        self.stamp("wodone")
        self.publish(2)

    def gelu(self, acc, k1, k2, sd, T, P, stores):
        o = []
        for b in range(4):
            a = acc + 4 * b; t = T + 4 * (b & 1)
            o += [f"v_mul_f32 v{t+i}, v{a+i}, v{a+i}" for i in range(4)]
            o += [f"v_fma_f32 v{t+i}, v{t+i}, v{k2}, v{k1}" for i in range(4)]
            o += [f"v_mul_f32 v{t+i}, v{t+i}, v{a+i}" for i in range(4)]
            o += [f"v_exp_f32 v{t+i}, v{t+i}" for i in range(4)]
            o += [f"v_fma_f32 v{t+i}, v{t+i}, v{sd}, v{sd}" for i in range(4)]
            o += [f"v_rcp_f32 v{t+i}, v{t+i}" for i in range(4)]
            o += [f"v_mul_f32 v{a+i}, v{a+i}, v{t+i}" for i in range(4)]
            o += self.pack(P + 2 * b, a, 2)
            if b & 1: o.append(stores(b >> 1, P + 4 * (b >> 1)))
        return o
    def ffn1(self):
        e = self.e; I = e.I
        AC = 112; XA = 176; XB = 208; RG = 240
        XQ = vT + 2; ah = vT + 6
        sd4 = [vF1, vF1 + 1, vF1 + 2, vF1 + 3]; t0 = vF1 + 4
        BA = [vF1 + 12, vF1 + 16]; SD = [vF1 + 20, vT + 8]
        for q in range(4):
            I(f"s_add_u32 s{sT5}, s{sQ+q}, {hx(L_V)}"); I(f"v_add_u32 v{XQ+q}, s{sT5}, v{vL16}")
        I(f"v_add_u32 v{ah}, {hx(L_ST)}, v{vL16}"); I(f"s_lshl_b32 s{sT5}, s{sw}, 2"); I(f"v_add_u32 v{ah+1}, s{sT5}, v{ah}")
        for r in sd4: I(f"v_mov_b32 v{r}, 0")
        e.undef('v', 112, 144); e.undef('v', t0, 17)
        self.gpoll(2)
        self.stamp("x1poll")
        tk = []
        for mt in range(2):
            for h in range(2):
                I(f"s_add_u32 m0, s{sW8K}, {hx(G_X1 + mt*0x8000 + h*4096)}")
                tk += [I(self.dma(vL16, sG, "m0", i * 1024, "sc1")) for i in range(4)]
        def rd(mt, i, dst): return f"ds_read_b128 {V(dst,4)}, v{XQ+i//8} offset:{mt*0x8000+(i%8)*1024}"
        def B(mt, i): return (XA if mt == 0 else XB) + 4 * i if i < 8 else RG + 4 * (i % 4)
        def mm(mt, i, n): return self.mf(AC + 32 * mt + 16 * n, A((2 * i + n) * 4, 4), V(B(mt, i), 4), '0' if i == 0 else None)
        for h in range(2):
            e.wait(tk[4 * h + 3])
            for i in range(4): I(rd(0, 4 * h + i, XA + 16 * h + 4 * i))
        def bar1(): e.wait(tk[15]); e.barrier()
        def bar2(): e.wait_lg0(); e.barrier()
        main = []
        for i in range(32):
            pre = []
            if i == 5: pre.append((bar1, 8))
            if 8 <= i + 3 < 32: pre.append(rd(0, i + 3, B(0, i + 3)))
            main.append(pre + [mm(0, i, 0)])
            pre = []
            if 6 <= i < 14: pre.append(rd(1, i - 6, XB + 4 * (i - 6)))
            main.append(pre + [mm(0, i, 1)])
        fin = []
        for mt in range(2): fin += self.stat_write(sd4[2 * mt], sd4[2 * mt + 1], ah + 1, mt)
        fin.append((bar2, 8))
        for mt in range(2): fin.append(f"ds_read_b128 {V(t0+4*mt,4)}, v{ah} offset:{mt*1024}")
        for mt in range(2):
            m, r = sd4[2 * mt], sd4[2 * mt + 1]; t = t0 + 4 * mt; b = BA[mt]; s = SD[mt]
            fin += self.stat_fin(t, m, r, s)
            fin += [f"v_cvt_pk_bf16_f32 v{b}, -v{m}, -v{m}", f"v_lshlrev_b32 v{t}, 16, v{b}", f"v_add_f32 v{t}, v{t}, v{m}",
                    f"v_cvt_pk_bf16_f32 v{b+1}, -v{t}, v{s}", f"v_and_b32 v{t+1}, 0xffff0000, v{b+1}", f"v_sub_f32 v{t+1}, v{s}, v{t+1}",
                    f"v_cvt_pk_bf16_f32 v{b+3}, -v{t}, v{t+1}", f"v_mov_b32 v{b+2}, v{b}",
                    f"v_mul_f32 v{t}, v{r}, v{r}", f"v_mul_f32 v{m}, {hx(f2u(C1))}, v{r}", f"v_mul_f32 v{t}, {hx(f2u(0.044715))}, v{t}",
                    f"v_mul_f32 v{r}, v{t}, v{m}"]
        fill = self.dots(sd4[0], sd4[1], XA, 32) + self.dots(sd4[2], sd4[3], XB, 32) + fin
        main = [[(x[0] if isinstance(x, tuple) else x) for x in g_] for g_ in main]
        a, r = interleave(main, fill, 24, start=1)
        e.seq(a); e.seq(r)
        for n in range(2): I(self.mf(AC + 16 * n, V(vAUG + 4 * n, 4), V(BA[0], 4)))
        self.stamp("f1p0")
        def hst(mt, n):
            def f(half, reg):
                def g_():
                    if mt and half == 0: I(f"s_add_u32 s{sT2}, s{sHs+n}, 0x1c000")
                    self.dual([self.st(V(reg, 4), vL16, sG, f"s{sT2 if mt else sHs+n}", half * 1024)])
                return (g_, 14)
            return f
        def w2(i, n):
            o = []
            if i % 4 == 0: o.append(f"s_add_u32 s{sT0+n}, s{sW2o+n}, {i*1024}")
            o.append(self.ld(A((2 * i + n) * 4, 4), vL16x, sWS, f"s{sT0+n}", (i % 4) * 1024, "sc1"))
            return o
        main = []
        for i in range(32):
            pre = []
            if 1 <= i <= 28: pre += w2(i - 1, 1)
            if 8 <= i + 3 < 32: pre.append(rd(1, i + 3, B(1, i + 3)))
            main.append(pre + [mm(1, i, 0)])
            pre = []
            if i < 28: pre += w2(i, 0)
            main.append(pre + [mm(1, i, 1)])
        for n in range(2): main.append([self.mf(AC + 32 + 16 * n, V(vAUG + 4 * n, 4), V(BA[1], 4))])
        fill = []
        for n in range(2): fill += self.gelu(AC + 16 * n, sd4[0], sd4[1], SD[0], vF0, vF0 + 8 + 8 * n, hst(0, n))
        a, r = interleave(main, fill, 34, start=4)
        e.seq(a); e.seq(r)
        self.stamp("f1p1")
        for n in range(2):
            e.seq([(x[0] if isinstance(x, tuple) else x) for x in self.gelu(AC + 32 + 16 * n, sd4[2], sd4[3], SD[1], vF0, vF0 + 8 + 8 * n, hst(1, n))])
        self.stamp("f1done")
        self.publish(4)
    def ffn2(self):
        e = self.e; I = e.I
        RG = 112; TM = 224; PK = 248
        for mt in range(2):
            for i in range(8): I(f"v_mov_b32 v{RES(mt)+8+i}, 0")
        self.gpoll(4)
        self.stamp("hpoll")
        def hl(mt, i):
            o = []
            if i % 4 == 0: o.append(f"s_add_u32 s{sT0}, s{sHl}, {mt*0x1c000 + i*1024}")
            o.append(self.ld(V(RG + 4 * i, 4), vL16, sG, f"s{sT0}", (i % 4) * 1024, "sc1"))
            return o
        def mm(mt, i, n): return self.mf(vACC + 32 * mt + 16 * n, A((2 * i + n) * 4, 4), V(RG + 4 * i, 4), '0' if (i == 0 and n == 1) else None)
        for i in range(28): e.seq(hl(0, i))
        for i in range(28):
            I(mm(0, i, 0)); I(mm(0, i, 1)); e.seq(hl(1, i))
        if self.opt.get('wb'):
            I(f"s_lshr_b32 s{sT5}, s2, 3"); I(f"s_or_b32 s{sT5}, s{sT5}, s{sw}"); I(f"s_xor_b32 s{sT6}, s{sLayer}, 1"); I(f"s_or_b32 s{sT5}, s{sT5}, s{sT6}"); I("s_cbranch_scc1 L_nowb")
            e.begin_opt(); I("!buffer_wbl2 sc1"); e.end_opt(); e.label("L_nowb")
        self.stamp("f2p0")
        main = [[mm(1, i, n)] for i in range(28) for n in range(2)]
        def bar(): e.wait_lg0(); e.barrier()
        fill = self.exw(vACC, 0) + [(bar, 24)] + self.exr(TM, 0)
        fill += [f"s_cmp_eq_u32 s{sLayer}, 0", f"s_cselect_b32 s{sWQ+2}, 0x80000, 0"] + self.wq_dma(vT + 4)
        fill += self.exadd(RES(0), TM, pk=False) + self.pack(PK, RES(0))
        a, r = interleave(main, fill, 20, start=10)
        e.seq(a); e.seq(r)
        e.seq(self.exw(vACC + 32, 0x1800))
        e.wait_lg0(); e.barrier()
        e.seq(self.exr(TM, 0x1800))
        I(f"s_add_u32 s{sT0}, s{sP1K}, {hx(G_X2)}"); I(f"s_add_u32 s{sT1}, s{sP1K}, {hx(G_X2 + 0x8000)}")
        e.seq(self.exadd(RES(1), TM)); e.seq(self.pack(PK + 4, RES(1)))
        self.stamp("f2done")
        I(f"s_cmp_lg_u32 s{sLayer}, 0"); I("s_cbranch_scc1 L_final")
        self.dual([self.st(V(PK + 4 * mt, 4), vL16, sG, f"s{sT0+mt}") for mt in range(2)])
        self.publish(6)
        return PK
    def final(self, PK):
        e = self.e; I = e.I
        e.label("L_final")
        self.srd(sTA, pOUT, 0x200000)
        e.seq(self.rowaddr(vT + 5, vT + 6))
        I(f"s_add_u32 s{sT6}, s{sRow}, 0x8000")
        ofl = self.opt.get('ofl', '')
        I(self.st(V(PK, 4), vT + 5, sTA, f"s{sRow}", fl=ofl)); I(self.st(V(PK + 4, 4), vT + 5, sTA, f"s{sT6}", fl=ofl))
        if self.stamps: self.rt(63); self.dump_stamps(256)
        if not self.opt.get('nofw'): e.wait_vm0()
        dg = self.opt.get('diag')
        if dg:
            if dg[4]: I("s_lshr_b32 s1, s1, 4")
            I(f"s_mul_i32 s1, s1, {dg[3]}"); I("s_min_u32 s1, s1, 50000")
            I(f"s_memrealtime s[{sM}:{sM+1}]"); e.wait_lg0(force=True); I(f"s_mov_b32 s0, s{sM}")
            e.label("L_dgs")
            I(f"s_memrealtime s[{sM}:{sM+1}]"); e.wait_lg0(force=True); I(f"s_sub_u32 s3, s{sM}, s0"); I("s_cmp_lt_u32 s3, s1"); I("s_cbranch_scc1 L_dgs")
        e.label("L_end")
        I("s_endpgm")
    def dump_stamps(self, off):
        I = self.I
        I(f"s_lshl_b32 s{sT5}, s2, 2"); I(f"s_add_u32 s{sT5}, s{sT5}, s{sw}"); I(f"s_lshl_b32 s{sT5}, s{sT5}, 9"); I(f"s_add_u32 s{sT5}, s{sT5}, {hx(STAMP)}")
        I(f"v_lshlrev_b32 v{vT+2}, 2, v{vLane}")
        I(self.st("v47", vT + 2, sWS, f"s{sT5}", off, w=1))

    def build(self):
        e = self.e
        self.prologue()
        self.qkv(True)
        e.label("L_loop")
        self.attention(); self.wo(); self.ffn1(); PK = self.ffn2()
        if self.stamps: self.dump_stamps(0)
        self.qkv(False)
        e.nop(4)
        e.I("s_branch L_loop")
        self.final(PK)
        ref = open(f"cdna_kernels/{NAME}.s.ref").read()
        head = ref[:ref.index("; @launch")]
        out = head + f"; @launch grid=(256,1,1) block=(256,1,1) lds={LDS_BYTES}\n"
        out += f""".amdgcn_target "amdgcn-amd-amdhsa--gfx950"
.text
.globl {NAME}_kernel
.p2align 8
.type {NAME}_kernel,@function
{NAME}_kernel:
"""
        body = e.text()
        out += body + "L_codeend:\n    s_endpgm\n"
        out += f""".section .rodata,"a"
.p2align 6
.amdhsa_kernel {NAME}_kernel
  .amdhsa_next_free_vgpr 512
  .amdhsa_next_free_sgpr 102
  .amdhsa_accum_offset 256
  .amdhsa_group_segment_fixed_size 0
  .amdhsa_kernarg_size 104
  .amdhsa_user_sgpr_count 2
  .amdhsa_user_sgpr_kernarg_segment_ptr 1
  .amdhsa_system_sgpr_workgroup_id_x 1
.end_amdhsa_kernel
"""
        out = out.replace("CODE_SPAN", "(L_end-L_nopf-2048)")
        return out

if __name__ == "__main__":
    import argparse
    ap = argparse.ArgumentParser()
    ap.add_argument("-o", default=f"cdna_kernels/{NAME}.s")
    ap.add_argument("--stamps", action="store_true"); ap.add_argument("--fsa", action="store_true"); ap.add_argument("--fsm", action="store_true")
    ap.add_argument("--nopf", action="store_true"); ap.add_argument("--nops", action="store_true")
    ap.add_argument("--opt", default="{}")
    a = ap.parse_args()
    g = Gen(stamps=a.stamps, force_slow_attn=a.fsa, force_slow_mode=a.fsm, codepf=not a.nopf, opt=eval(a.opt))
    txt = g.build()
    if a.stamps: txt = txt.replace("; @launch", "; stamps: " + ",".join(g.stnames) + "\n; @launch", 1)
    open(a.o, "w").write(txt)
    print("written", a.o, len(txt), "bytes; nops", g.e.nops)
    if a.nops:
        for n, t in g.e.nop_log: print(n, t)
```

```python
import re, copy

REG = re.compile(r'\b([vas])(\d+)\b|\b([vas])\[(\d+):(\d+)\]|\b(vcc|exec|m0|scc)\b')
TRANS = ('v_exp_', 'v_log_', 'v_rcp_', 'v_rsq_', 'v_sqrt_', 'v_sin_', 'v_cos_')

def regs_of(op):
    out = []
    for m in REG.finditer(op):
        if m.group(1): out.append((m.group(1), int(m.group(2))))
        elif m.group(3): out += [(m.group(3), i) for i in range(int(m.group(4)), int(m.group(5)) + 1)]
        else: out.append((m.group(6), 0))
    return out

def R(kind, lo, n=1):
    return f"{kind}{lo}" if n == 1 else f"{kind}[{lo}:{lo+n-1}]"
def V(lo, n=1): return R('v', lo, n)
def A(lo, n=1): return R('a', lo, n)
def S(lo, n=1): return R('s', lo, n)

class Tok:
    def __init__(self, regs=()):
        self.regs = set(regs); self.optional = False

class Em:
    def __init__(self):
        self.lines = []
        self.tail = []
        self.now = 0
        self.h = {k: {} for k in ('valu', 'trans', 'dot', 'mfma', 'mfmac', 'sval', 'store', 'm0', 'exv')}
        self.vmq = []; self.lgq = []
        self.nops = 0; self.nlab = 0
        self.stack = []
        self.nop_log = []
        self.und = set()
        self.mf_t = None
    def raw(self, t): self.lines.append(t)
    def c(self, t): self.lines.append("    ; " + t)
    def label(self, name):
        self.lines.append(name + ":")
        if name == "L_loop": self.mf_t = None
    def newlab(self, p="L"):
        self.nlab += 1
        return f"{p}_{self.nlab}"
    def _emit(self, t, ws=1):
        self.lines.append("    " + t); self.now += ws
    def nop(self, n):
        while n > 0:
            k = min(n, 16); self._emit(f"s_nop {k-1}", k); n -= k
    def _wait(self, q, name, mx, idx):
        n = sum(1 for t in q[idx+1:] if not t.optional)
        n = min(n, mx)
        self._emit(f"s_waitcnt {name}({n})")
        del q[:idx+1]
    def wait(self, *toks):
        for q, name, mx in ((self.vmq, 'vmcnt', 63), (self.lgq, 'lgkmcnt', 15)):
            idx = max((i for i, t in enumerate(q) if any(t is x for x in toks)), default=-1)
            if idx >= 0: self._wait(q, name, mx, idx)
    def wait_vm0(self):
        self._emit("s_waitcnt vmcnt(0)"); self.vmq.clear()
    def wait_lg0(self, force=False):
        if self.lgq or force: self._emit("s_waitcnt lgkmcnt(0)")
        self.lgq.clear()
    def barrier(self): self._emit("s_barrier")
    def _autowait(self, regs):
        rs = set(regs)
        for q, name, mx in ((self.vmq, 'vmcnt', 63), (self.lgq, 'lgkmcnt', 15)):
            idx = max((i for i, t in enumerate(q) if t.regs & rs), default=-1)
            if idx >= 0: self._wait(q, name, mx, idx)
    def undef(self, kind, lo, n):
        self.und |= {(kind, i) for i in range(lo, lo + n)}
    def _du(self, rd, wr, text):
        bad = [r for r in rd if r in self.und]
        if bad: raise ValueError(f"read of undefined {bad} in {text}")
        self.und -= set(wr)
    def begin_opt(self):
        self.stack.append((self.now, copy.deepcopy(self.h), list(self.vmq), list(self.lgq)))
    def end_opt(self):
        t0, h0, vm0, lg0 = self.stack.pop()
        d = self.now - t0
        self.mf_t = None
        for k in h0:
            for r, v in h0[k].items():
                nv = (v[0] + d,) + tuple(v[1:])
                if r not in self.h[k] or self.h[k][r][0] <= nv[0]: self.h[k][r] = nv
        for q, q0 in ((self.vmq, vm0), (self.lgq, lg0)):
            new = [t for t in q if not any(t is x for x in q0)]
            for t in new: t.optional = True
            q[:] = q0 + new
    def I(self, text):
        text = text.strip()
        if text.startswith('!'):
            self._emit(text[1:]); tok = Tok(); self.vmq.append(tok); return tok
        mn, _, rest = text.partition(' ')
        ops = [o.strip() for o in rest.split(',')] if rest else []
        need = 0
        H = self.h
        def chk(kind, regs, ws):
            nonlocal need
            for r in regs:
                if r in H[kind]:
                    v = H[kind][r]
                    w = ws(v) if callable(ws) else ws
                    need = max(need, w - (self.now - v[0]))
        tok = None
        mD = lambda v: {4: 8, 8: 12}[v[1]]
        if mn.startswith('v_mfma') or mn.startswith('v_smfmac'):
            passes = 8 if '32x32' in mn else 4
            D = regs_of(ops[0]); Aa = regs_of(ops[1]); B = regs_of(ops[2]); C = regs_of(ops[3])
            if mn.startswith('v_smfmac'): idx = C; C = D; AB = Aa + B + idx
            else: AB = Aa + B
            self._autowait(D + AB + C); self._du(AB + C, D, text)
            chk('valu', AB + C, 2); chk('dot', AB + C + D, 3)
            chk('mfma', AB, mD)
            chk('mfma', C, lambda v: 0 if (v[2] == tuple(C) and v[1] == passes) else {4: 6, 8: 10}[v[1]])
            if not C or tuple(C) != tuple(D):
                chk('mfma', D, lambda v: 0 if v[1] <= passes else 6)
            chk('exv', [('exec', 0)], 4)
            self._pad(need, text); self._emit(text)
            if self.mf_t:
                J = self.mf_t[0] + self.mf_t[1] - self.now
                if J > 0:
                    for k in H:
                        for r, v in H[k].items():
                            if v[0] <= self.mf_t[0]: H[k][r] = (v[0] - J,) + tuple(v[1:])
            self.mf_t = (self.now, 7 if (passes == 8 and mn.startswith('v_mfma')) else 3)
            for r in D: H['mfma'][r] = (self.now, passes, tuple(D))
            for r in C: H['mfmac'][r] = (self.now, passes)
            return None
        if mn.startswith('v_'):
            nd = 1
            if re.match(r'v_(add|sub|subrev|addc|subb)_co_', mn): nd = 2
            swap = mn.startswith('v_permlane') and 'swap' in mn
            W = []
            for o in ops[:nd]: W += regs_of(o)
            Rd = []
            for o in ops[nd:]: Rd += regs_of(o)
            if swap: W = W + Rd; Rd = list(W)
            if mn.startswith('v_fmac') or mn.startswith('v_dot2c') or mn.startswith('v_writelane') or 'dpp' in mn or 'row_' in text or 'sdwa' in mn: Rd += W
            self._autowait(W + Rd); self._du(Rd, W, text)
            vr = [r for r in Rd if r[0] in 'va' and len(r[0]) == 1]
            sr = [r for r in Rd if r[0] in ('s', 'vcc')]
            vw = [r for r in W if r[0] in 'va' and len(r[0]) == 1]
            sw = [r for r in W if r[0] in ('s', 'vcc', 'exec')]
            trans = mn.startswith(TRANS); dot = mn.startswith('v_dot')
            chk('mfma', vr + vw, mD)
            chk('mfmac', vw, lambda v: {4: 3, 8: 7}[v[1]])
            if not trans: chk('trans', vr, 1)
            if dot:
                srcc = regs_of(ops[3]) if len(ops) > 3 else W
                ab = regs_of(ops[1]) + regs_of(ops[2])
                chk('dot', ab, 3); chk('dot', srcc + vw, lambda v: 0 if v[1] == mn else 3)
            else: chk('dot', vr + vw, 3)
            chk('sval', sr, 2)
            if mn.startswith('v_readfirstlane') or mn.startswith('v_readlane'): chk('valu', vr, 1)
            if mn.startswith('v_permlane') or 'row_' in text or 'quad_perm' in text: chk('valu', vr, 2)
            chk('store', vw, 2)
            self._pad(need, text); self._emit(text)
            for r in vw:
                H['valu'][r] = (self.now,)
                H['trans'].pop(r, None); H['dot'].pop(r, None)
                if trans: H['trans'][r] = (self.now,)
                if dot: H['dot'][r] = (self.now, mn)
            for r in sw: H['sval'][r] = (self.now,)
            if mn.startswith('v_cmpx'): H['exv'][('exec', 0)] = (self.now,)
            return None
        if mn.startswith('buffer_') or mn.startswith('global_'):
            allr = []
            for o in ops: allr += regs_of(o)
            lds = re.search(r'\blds\b', text) is not None
            is_load = '_load' in mn
            W = regs_of(ops[0]) if (is_load and not lds) else []
            self._autowait(allr); self._du([r for r in allr if r not in W], W, text)
            vr = [r for r in allr if r[0] in 'va' and len(r[0]) == 1]
            chk('mfma', vr, mD); chk('dot', vr, 3)
            chk('sval', [r for r in allr if r[0] == 's'], 5)
            if lds: chk('m0', [('m0', 0)], 1)
            chk('store', W, 1)
            self._pad(need, text); self._emit(text)
            if '_store' in mn and ('x4' in mn or 'x3' in mn):
                d = regs_of(ops[0]) if mn.startswith('buffer_') else regs_of(ops[1])
                for r in d: H['store'][r] = (self.now,)
            tok = Tok(W); self.vmq.append(tok); return tok
        if mn.startswith('ds_'):
            allr = []
            for o in ops: allr += regs_of(o)
            W = regs_of(ops[0]) if ('read' in mn or 'permute' in mn or 'rtn' in mn) else []
            self._autowait(allr); self._du([r for r in allr if r not in W], W, text)
            chk('mfma', allr, mD); chk('dot', allr, 3)
            chk('store', W, 1)
            self._pad(need, text); self._emit(text)
            tok = Tok(W); self.lgq.append(tok); return tok
        if mn.startswith('s_'):
            if mn == 's_nop':
                self._emit(text, int(ops[0]) + 1); return None
            self._emit(text)
            if ops and ops[0] == 'm0' and not mn.startswith('s_cmp'): H['m0'][('m0', 0)] = (self.now,)
            return None
        raise ValueError(text)
    def _pad(self, need, text):
        if need > 0:
            self.nops += need; self.nop_log.append((need, text)); self.nop(need)
    def seq(self, items):
        for it in items:
            if isinstance(it, tuple): it = it[0]
            if callable(it): it()
            else: self.I(it)
    def text(self):
        return "\n".join(self.lines + self.tail) + "\n"

def cost(it):
    if isinstance(it, tuple): return it[1]
    if callable(it): return 4
    mn = it.split()[0]
    if mn.startswith(TRANS): return 8
    if mn.startswith('buffer_'): return 10
    if mn.startswith('ds_write'): return 16
    if mn.startswith('ds_'): return 5
    if mn.startswith('s_'): return 2
    return 4

def interleave(main, fill, budget=24, start=0):
    out = []; fi = 0; credit = 0
    for gi, grp in enumerate(main):
        out += grp
        if gi < start: continue
        used = sum(cost(x) for x in (main[gi+1][:-1] if gi + 1 < len(main) else []))
        credit = min(credit, 0) + budget - used
        while fi < len(fill) and credit > 0:
            it = fill[fi]; credit -= cost(it); out.append(it[0] if isinstance(it, tuple) else it); fi += 1
    rest = [(it[0] if isinstance(it, tuple) else it) for it in fill[fi:]]
    return out, rest
```

```python
import sys, os, math, struct
sys.path.insert(0, os.path.dirname(os.path.abspath(__file__)))
from em import *

NAME = "interleave_layers__grouped_kv_mqa__dense_activation_gelu__prompt"
def f2u(x): return struct.unpack('<I', struct.pack('<f', x))[0]
def hx(x): return hex(x & 0xffffffff)

GF = 0x10000; KVB = 0x40000; W1S = 0x100000; W2S = 0x300000; WOS = 0x500000; WQS = 0x580000; STAMP = 0x600000; GRP = 0x800000
WSLIM = 0x800000
G_FL = 0; G_ST = 0x2000; G_X1 = 0x10000; G_X2 = 0x10000; G_O = 0x3c000; G_H = 0x20000; G_SZ = 0x58000; G_STR = 0x60000
BIG = 0x10000000
L_V = 0x10000; L_X = 0x10000; L_KVR = 0x20000; L_ST = 0x20000; L_CSR = 0x20800; L_ONES = 0x21000; L_WKV = 0x24000
LDS_BYTES = 0x28000
sWS, sG, sKV, sWQ, sTA, sTB = 4, 8, 12, 16, 20, 24
pX, pWQ, pWK, pWV, pWO, pW1, pB1, pW2, pB2, pOUT, pDBG, pWS = 28, 30, 32, 34, 36, 40, 42, 44, 46, 48, 50, 52
sg, sj, sw, sLayer, sMode, sMyF = 54, 55, 56, 57, 58, 59
sN = 60
sT0, sT1, sT2, sT3, sT4, sT5, sT6, sT7 = 62, 63, 64, 65, 66, 67, 68, 69
sCnt = 70; sOnes = 71
sM = 72
sP1K = 74
sW8K = 75
sW1K = 76
sFlSt = 77
sFlPo = 78
sKVFs = 79
sKVFp = 80
sQ = 81
sW1o = 85
sWOo = 87
sW2o = 89
sHs = 91
sHl = 93
sRow = 94
sKVst = 95
sWQo = 96
sWQl = 98
sSwD = 99
sAug = 100
sSwF = 101
sStS = 32; sStL = 33
F_O, F_X1, F_H, F_X2 = 0, 2, 4, 8
vL16, vL16x, vPoll, vN, vEW, vER, vIdx, vV = 1, 2, 3, 4, 6, 7, 10, 11
vFl, vP8 = 45, 46
vCSKV, vCSQ, vB2, vAUG = 12, 16, 24, 28
vT = 36
vACC = 48
def RES(mt): return vACC + 32 * mt
vF0 = 56; vF1 = 88
vWO = 112
vS = 176; vO = 208; vQ = 240
vLane = 0
vSTAMP = 111 ; vSTAMP0 = 110
POLL_LIM = 1 << 17
RTL = {'attn0': 59, 'attn1': 60, 'f2done': 61}

C1 = -2.0 * math.sqrt(2.0 / math.pi) * math.log2(math.e)
C2 = 0.044715 * C1
QS = 0.25 * math.log2(math.e)


class Gen:
    def __init__(self, stamps=False, force_slow_attn=False, force_slow_mode=False, codepf=True, opt=None):
        self.opt = opt or {}
        self.e = Em(); self.stamps = stamps; self.fsa = force_slow_attn; self.fsm = force_slow_mode
        self.codepf = codepf
        self.nst = 0; self.stnames = []
    def I(self, t): return self.e.I(t)
    def srd(self, d, p, n):
        I = self.I
        I(f"s_mov_b32 s{d}, s{p}"); I(f"s_mov_b32 s{d+1}, s{p+1}")
        I(f"s_mov_b32 s{d+2}, {hx(n)}"); I(f"s_mov_b32 s{d+3}, 0x20000")
    def stamp(self, name):
        e = self.e
        dg = self.opt.get('diag')
        if dg and name in dg[:2]:
            lab = e.newlab("L_dg")
            if name != 'start': e.I(f"s_cmp_lg_u32 s{sLayer}, {dg[2][dg.index(name)]}"); e.I(f"s_cbranch_scc1 {lab}")
            e.wait_lg0()
            e.I(f"{'s_memtime' if dg[4] else 's_memrealtime'} s[{sM}:{sM+1}]"); e.wait_lg0(force=True)
            e.I(f"s_mov_b32 s0, s{sM}" if name == dg[0] else f"s_sub_u32 s1, s{sM}, s0")
            e.label(lab)
        if not self.stamps: return
        e.I(f"s_memtime s[{sM}:{sM+1}]"); e.wait_lg0(force=True)
        e.I(f"v_writelane_b32 v47, s{sM}, {self.nst}")
        self.stnames.append(name); self.nst += 1
        if name in RTL: self.rt(RTL[name])
    def rt(self, lane):
        if not self.stamps: return
        e = self.e
        e.I(f"s_memrealtime s[{sM}:{sM+1}]"); e.wait_lg0(force=True)
        e.I(f"v_writelane_b32 v47, s{sM}, {lane}")
    def ld(self, dst, voff, srd, soff, imm=0, fl="", w=4):
        mn = {4: "dwordx4", 2: "dwordx2", 1: "dword"}[w]
        return f"buffer_load_{mn} {dst}, v{voff}, s[{srd}:{srd+3}], {soff} offen" + (f" offset:{imm}" if imm else "") + (" " + fl if fl else "")
    def dma(self, voff, srd, soff, imm=0, fl=""):
        return f"buffer_load_dwordx4 v{voff}, s[{srd}:{srd+3}], {soff} offen" + (f" offset:{imm}" if imm else "") + (" " + fl if fl else "") + " lds"
    def st(self, src, voff, srd, soff, imm=0, fl="", w=4):
        mn = {4: "dwordx4", 2: "dwordx2", 1: "dword"}[w]
        return f"buffer_store_{mn} {src}, v{voff}, s[{srd}:{srd+3}], {soff} offen" + (f" offset:{imm}" if imm else "") + (" " + fl if fl else "")
    def dual(self, stores):
        e = self.e
        lab = e.newlab("L_sl"); back = e.newlab("L_bk")
        regs = []
        for s in stores: regs += regs_of(s)
        e._autowait(regs)
        e.I(f"s_cmp_lg_u32 s{sMode}, 0"); e.I(f"s_cbranch_scc1 {lab}")
        toks = [e.I(s) for s in stores]
        e.label(back)
        e.tail += [lab + ":", "    s_nop 7", "    s_nop 7"]
        e.tail += ["    " + (s + " sc1" if s.startswith("buffer_") else s) for s in stores]
        e.tail += [f"    s_branch {back}"]
        return toks
    def publish(self, slot):
        e = self.e
        e.wait_vm0()
        e.I("s_mov_b64 exec, 1")
        self.dual([self.st(V(vN, 2), vPoll, sG, f"s{sFlSt}", slot * 8, w=2)])
        e.I("s_mov_b64 exec, -1")
    def poll(self, srd, soff, imm, nl, kv=False):
        e = self.e
        lab = e.newlab("L_poll")
        if nl < 64: e.I(f"s_mov_b64 exec, {hex((1 << nl) - 1)}")
        e.I(f"s_mov_b32 s{sCnt}, 0")
        e.label(lab)
        e.I(self.ld(V(vT, 2), vPoll, srd, soff, imm, "sc1", w=2))
        e.I(f"s_add_u32 s{sCnt}, s{sCnt}, 1"); e.I(f"s_cmp_gt_u32 s{sCnt}, {POLL_LIM}"); e.I("s_cbranch_scc1 L_end")
        e.wait_vm0()
        if kv: e.I(f"v_and_b32 v{vT}, -16, v{vT}")
        e.I(f"v_cmp_ne_u64 vcc, s[{sN}:{sN+1}], {V(vT, 2)}")
        e.I(f"s_cbranch_vccnz {lab}")
        if nl < 64: e.I("s_mov_b64 exec, -1")
    def gpoll(self, slot): self.poll(sG, f"s{sFlPo}", slot * 8, 8)
    def pub(self, slot, toks):
        def f():
            self.e.wait(*toks)
            self.dual([self.st(V(vN, 2), vFl, sG, f"s{sFlSt}", slot * 8, w=2)])
        return (f, 24)
    def pissue(self, slot, r): return self.ld(V(r, 2), vP8, sG, f"s{sFlPo}", slot * 8, "sc1", w=2)
    def pcheck(self, slot, r):
        def f():
            e = self.e; lab = e.newlab("L_sp"); back = e.newlab("L_sb")
            e.I(f"v_cmp_ne_u64 vcc, s[{sN}:{sN+1}], {V(r, 2)}"); e.I(f"s_cbranch_vccnz {lab}"); e.label(back)
            e.tail += [lab + ":", f"    s_mov_b32 s{sCnt}, 0", lab + "a:", "    " + self.pissue(slot, r),
                       f"    s_add_u32 s{sCnt}, s{sCnt}, 1", f"    s_cmp_gt_u32 s{sCnt}, {POLL_LIM}", "    s_cbranch_scc1 L_end",
                       "    s_waitcnt vmcnt(0)", f"    v_cmp_ne_u64 vcc, s[{sN}:{sN+1}], {V(r, 2)}", f"    s_cbranch_vccnz {lab}a", f"    s_branch {back}"]
        return (f, 16)
    def cap(self, text, box):
        def f(): box.append(self.e.I(text))
        return (f, 10)
    def dcap(self, stores, box):
        def f(): box.extend(self.dual(stores))
        return (f, 8 + 10 * len(stores))
    def sched(self, mfmas, ev, fill=(), f0=0, f1=None, name=None):
        for g in self.opt.get('fst', {}).get(name, ()): ev.setdefault(g, []).append(self.stp(f"{name}.{g}"))
        self._sched(mfmas, ev, fill, f0, f1)
        if name and name not in self.opt.get('nost', ()): self.stamp(name)
    def _sched(self, mfmas, ev, fill, f0, f1):
        e = self.e; n = len(mfmas); fill = list(fill); f1 = n - 1 if f1 is None else f1
        evc = [sum(cost(x) for x in ev.get(i, [])) for i in range(n)]
        tot = sum(cost(x) for x in fill) + sum(evc[f0:f1 + 1]); done = 0
        e.seq(ev.get(-1, []))
        for i in range(n):
            e.I(mfmas[i]); e.seq(ev.get(i, []))
            if f0 <= i <= f1:
                done += evc[i]
                while fill and (done + cost(fill[0]) / 2 <= tot * (i - f0 + 1) / (f1 - f0 + 1) or i == f1):
                    done += cost(fill[0]); e.seq([fill.pop(0)])
    def rowstats(self, x, t, mt, box, pk=True):
        if pk:
            o = [f"v_pk_mul_f32 {V(t+2,2)}, {V(x,2)}, {V(x,2)}", f"v_pk_add_f32 {V(t,2)}, {V(x,2)}, {V(x+2,2)}"]
            for i in (2, 4, 6):
                o.append(f"v_pk_fma_f32 {V(t+2,2)}, {V(x+i,2)}, {V(x+i,2)}, {V(t+2,2)}")
                if i > 2: o.append(f"v_pk_add_f32 {V(t,2)}, {V(t,2)}, {V(x+i,2)}")
            o += [f"v_add_f32 v{t}, v{t}, v{t+1}", f"v_add_f32 v{t+2}, v{t+2}, v{t+3}"]
        else:
            o = [f"v_mul_f32 v{t+2}, v{x}, v{x}", f"v_add_f32 v{t}, v{x}, v{x+1}", f"v_fmac_f32 v{t+2}, v{x+1}, v{x+1}"]
            for i in range(2, 8): o += [f"v_add_f32 v{t}, v{t}, v{x+i}", f"v_fmac_f32 v{t+2}, v{x+i}, v{x+i}"]
        o.append(f"s_add_u32 s{sT2}, s{sStS}, {mt*0x2000}")
        o += [f"v_permlane32_swap_b32 v{t}, v{t+2}", f"v_add_f32 v{t}, v{t}, v{t+2}",
              self.dcap([self.st(V(t), vL16, sG, f"s{sT2}", w=1)], box)]
        return o
    def mf(self, d, a, b, c=None):
        return f"v_mfma_f32_32x32x16_bf16 {V(d,16)}, {a}, {b}, {V(d,16) if c is None else c}"
    def mf16(self, d, a, b, first):
        return f"v_mfma_f32_16x16x32_bf16 {V(d,4)}, {a}, {b}, {'0' if first else V(d,4)}"
    def exw(self, acc, area, ew=vEW):
        return [f"ds_write_b128 v{ew}, {V(acc+8*q+4*h,4)} offset:{area+(q-1)*2048+h*1024}" for q in (1, 2, 3) for h in (0, 1)]
    def exr(self, tmp, area, er=vER):
        return [f"ds_read_b128 {V(tmp+8*(q-1)+4*h,4)}, v{er+q-1} offset:{area+h*1024}" for q in (1, 2, 3) for h in (0, 1)]
    def exadd(self, dst, tmp, pk=True):
        if pk: return [f"v_pk_add_f32 {V(dst+i,2)}, {V(dst+i,2)}, {V(tmp+8*q+i,2)}" for q in range(3) for i in (0, 2, 4, 6)]
        return [f"v_add_f32 v{dst+i}, v{dst+i}, v{tmp+8*q+i}" for q in range(3) for i in range(8)]
    def pack(self, dst, src, n=4):
        return [f"v_cvt_pk_bf16_f32 v{dst+i}, v{src+2*i}, v{src+2*i+1}" for i in range(n)]
    def dots(self, s, q, x, n):
        out = []
        for i in range(n):
            out.append((f"v_dot2c_f32_bf16 v{s}, s{sOnes}, v{x+i}", 8))
            out.append((f"v_dot2c_f32_bf16 v{q}, v{x+i}, v{x+i}", 8))
        return out
    def stat_write(self, s, q, addr, mt):
        return [f"v_permlane32_swap_b32 v{s}, v{q}", f"v_add_f32 v{s}, v{s}, v{q}", f"ds_write_b32 v{addr}, v{s} offset:{mt*1024}"]
    def stat_fin(self, t, m, r, sd=None):
        o = [f"v_add_f32 v{t}, v{t}, v{t+1}", f"v_add_f32 v{t+2}, v{t+2}, v{t+3}", f"v_add_f32 v{t}, v{t}, v{t+2}",
             f"v_mul_f32 v{m}, {hx(f2u(1/512))}, v{t}", f"v_mul_f32 v{t}, {hx(f2u(1/512))}, v{t}",
             f"v_permlane32_swap_b32 v{m}, v{t}",
             f"v_fma_f32 v{t}, -v{m}, v{m}, v{t}", f"v_max_f32 v{t}, 0, v{t}", f"v_add_f32 v{t}, {hx(f2u(1e-5))}, v{t}",
             f"v_rsq_f32 v{r}, v{t}"]
        if sd is not None: o.append(f"v_mul_f32 v{sd}, v{t}, v{r}")
        return o

    def prologue(self):
        e = self.e; I = e.I
        if self.opt.get('diag', [0])[0] == 'first': I("s_memrealtime s[74:75]")
        I("s_cmp_ge_u32 s2, 256"); I("s_cbranch_scc1 L_end")
        I("s_load_dwordx16 s[28:43], s[0:1], 0"); I("s_load_dwordx8 s[44:51], s[0:1], 64"); I("s_load_dwordx2 s[52:53], s[0:1], 96")
        if self.stamps: I("v_mov_b32 v47, 0")
        I(f"v_lshrrev_b32 v{vT}, 6, v0"); I(f"v_and_b32 v{vLane}, 63, v0")
        I(f"v_readfirstlane_b32 s{sw}, v{vT}")
        I(f"s_and_b32 s{sg}, s2, 7"); I(f"s_lshl_b32 s{sg}, s{sg}, 2"); I(f"s_lshr_b32 s{sT0}, s2, 6"); I(f"s_add_u32 s{sg}, s{sg}, s{sT0}")
        I(f"s_lshr_b32 s{sj}, s2, 3"); I(f"s_and_b32 s{sj}, s{sj}, 7")
        I(f"s_and_b32 s{sw}, s{sw}, 3")
        I(f"v_lshlrev_b32 v{vL16}, 4, v{vLane}")
        I(f"v_lshrrev_b32 v{vT+4}, 4, v{vLane}"); I(f"v_and_b32 v{vT+5}, 15, v{vLane}")
        for qq in range(4):
            I(f"v_add_u32 v{vT+6}, {4*qq}, v{vT+4}")
            I(f"v_xor_b32 v{vT+7}, v{vT+6}, v{vT+5}")
            I(f"v_add_u32 v{vT+6}, {3*qq}, v{vT+4}")
            I(f"v_lshlrev_b32 v{vT+6}, 10, v{vT+6}")
            I(f"v_lshl_add_u32 v{vT+qq}, v{vT+7}, 4, v{vT+6}")
        if self.opt.get('diag', [0])[0] == 'first': e.wait_lg0(force=True); I("s_mov_b32 s0, s74")
        I(f"s_lshl_b32 s{sW1K}, s{sw}, 10"); I(f"s_lshl_b32 s{sW8K}, s{sw}, 13")
        I(f"s_lshl_b32 s{sT1}, s{sw}, 12")
        I(f"s_add_u32 m0, s{sT1}, {hx(L_WKV)}")
        I(f"s_lshl_b32 s{sT2}, s{sg}, 16"); I(f"s_lshl_b32 s{sT3}, s{sw}, 8"); I(f"s_add_u32 s{sT2}, s{sT2}, s{sT3}")
        I(f"s_lshl_b32 s{sT3}, s{sw}, 14")
        I(f"s_lshr_b32 s{sT4}, s{sj}, 1")
        e.wait_lg0(force=True)
        self.stamp("start"); self.rt(62)
        I(f"s_load_dwordx2 s[{sN}:{sN+1}], s[{pWS}:{pWS+1}], 0")
        I(f"s_bitcmp1_b32 s{sj}, 0"); I(f"s_cselect_b64 s[{sTB}:{sTB+1}], s[{pWV}:{pWV+1}], s[{pWK}:{pWK+1}]")
        I(f"s_mov_b32 s{sTB+2}, 16384"); I(f"s_mov_b32 s{sTB+3}, 0x20000")
        self.srd(sTA, pX, 0x200000)
        self.tk_wkv = [I(self.dma(vL16, sTB, f"s{sT1}", q * 1024)) for q in range(4)]
        self.tk_x = []
        for i in range(4):
            I(f"s_xor_b32 s{sT5}, s{sT4}, {i}")
            I(f"s_lshl_b32 s{sT6}, s{sT5}, 12"); I(f"s_add_u32 m0, s{sT6}, s{sT3}")
            I(f"s_lshl_b32 s{sT5}, s{sT5}, 14"); I(f"s_add_u32 s{sT5}, s{sT5}, s{sT2}")
            self.tk_x.append([I(self.dma(vT + qq, sTA, f"s{sT5}", qq * 1024)) for qq in range(4)])
        self.srd(sWQ, pWQ, 0x80000)
        I(f"s_add_u32 s{sWQl}, s{sT3}, {hx(L_V)}")
        I(f"s_lshl_b32 s{sT5}, s{sw}, 17"); I(f"s_lshl_b32 s{sT6}, s{sj}, 7"); I(f"s_add_u32 s{sT5}, s{sT5}, s{sT6}")
        I(f"s_lshr_b32 s{sT6}, s{sw}, 1"); I(f"s_lshl_b32 s{sT6}, s{sT6}, 6")
        I(f"s_add_u32 s{sWQo}, s{sT5}, s{sT6}"); I(f"s_xor_b32 s{sT6}, s{sT6}, 64"); I(f"s_add_u32 s{sWQo+1}, s{sT5}, s{sT6}")
        self.tk_wq = [t for t in (I(x) for x in self.wq_dma(vT + 4)) if t]
        I(f"s_lshl_b32 s{sP1K}, s{sj}, 2"); I(f"s_add_u32 s{sP1K}, s{sP1K}, s{sw}")
        I(f"s_lshl_b32 s{sT5}, s{sP1K}, 5")
        I(f"s_lshl_b32 s{sRow}, s{sg}, 16"); I(f"s_add_u32 s{sRow}, s{sRow}, s{sT5}")
        e.seq(self.rowaddr(vT + 5, vT + 6))
        I(f"s_add_u32 s{sT6}, s{sRow}, 0x8000")
        I(self.ld(V(vF0 + 16, 4), vT + 5, sTA, f"s{sRow}")); I(self.ld(V(vF0 + 20, 4), vT + 5, sTA, f"s{sT6}"))
        self.srd(sTB, pB2, 1024)
        I(self.ld(V(vB2, 4), vT + 6, sTB, f"s{sT5}"))
        if self.codepf:
            I(f"s_getpc_b64 s[{sT6}:{sT7}]")
            I(f"s_lshl_b32 s{sT5}, s{sP1K}, 11")
            I(f"s_add_u32 s{sT6}, s{sT6}, s{sT5}"); I(f"s_addc_u32 s{sT7}, s{sT7}, 0")
            I(f"v_and_b32 v{vT+8}, 15, v{vLane}"); I(f"v_lshlrev_b32 v{vT+8}, 7, v{vT+8}")
            I(f"v_mov_b32 v{vT+9}, s{sT7}"); I(f"v_add_co_u32 v{vT+8}, vcc, s{sT6}, v{vT+8}"); I(f"v_addc_co_u32 v{vT+9}, vcc, 0, v{vT+9}, vcc")
            I(f"s_cmp_ge_u32 s{sT5}, CODE_SPAN"); I("s_cbranch_scc1 L_nopf")
            e.begin_opt(); I(f"global_load_dword v{vAUG+1}, v[{vT+8}:{vT+9}], off"); e.end_opt()
            e.label("L_nopf")
        I(f"s_lshl_b32 s{sFlSt}, s{sP1K}, 7"); I(f"s_add_u32 s{sFlSt}, s{sFlSt}, {hx(G_FL)}")
        I(f"s_add_u32 s{sFlPo}, s{sW1K}, {hx(G_FL)}")
        I(f"s_lshl_b32 s{sP1K}, s{sP1K}, 10")
        self.srd(sWS, pWS, WSLIM)
        I(f"s_mul_i32 s{sT5}, s{sg}, {hx(G_STR)}"); I(f"s_add_u32 s{sT5}, s{sT5}, {hx(GRP)}")
        I(f"s_add_u32 s{sG}, s{pWS}, s{sT5}"); I(f"s_addc_u32 s{sG+1}, s{pWS+1}, 0"); I(f"s_mov_b32 s{sG+2}, {hx(G_SZ)}"); I(f"s_mov_b32 s{sG+3}, 0x20000")
        I(f"s_add_u32 s{sKV}, s{pWS}, {hx(KVB)}"); I(f"s_addc_u32 s{sKV+1}, s{pWS+1}, 0"); I(f"s_mov_b32 s{sKV+2}, 0x20000"); I(f"s_mov_b32 s{sKV+3}, 0x20000")
        I(f"s_mov_b32 s{sLayer}, 0"); I(f"s_mov_b32 s{sMode}, 1"); I(f"s_mov_b32 s{sOnes}, 0x3f803f80")
        I(f"s_lshr_b32 s{sT5}, s{sg}, 3"); I(f"s_and_b32 s{sT6}, s{sg}, 7")
        I(f"s_lshl_b32 s{sKVFs}, s{sT5}, 6"); I(f"s_lshl_b32 s{sT7}, s{sT6}, 2"); I(f"s_add_u32 s{sKVFs}, s{sKVFs}, s{sT7}")
        I(f"s_add_u32 s{sKVst}, s{sT7}, s{sT5}")
        I(f"s_lshr_b32 s{sT7}, s{sj}, 2"); I(f"s_lshl_b32 s{sT7}, s{sT7}, 5")
        I(f"s_add_u32 s{sKVFs}, s{sKVFs}, s{sT7}"); I(f"s_lshl1_add_u32 s{sKVst}, s{sT7}, s{sKVst}")
        I(f"s_and_b32 s{sT7}, s{sj}, 3"); I(f"s_add_u32 s{sKVFs}, s{sKVFs}, s{sT7}")
        I(f"s_lshl_b32 s{sKVFs}, s{sKVFs}, 7"); I(f"s_add_u32 s{sKVFs}, s{sKVFs}, {hx(GF)}")
        I(f"s_add_u32 s{sKVFp}, s{sW8K}, {hx(GF)}")
        I(f"s_lshl_b32 s{sKVst}, s{sKVst}, 10")
        I(f"s_and_b32 s{sT5}, s{sT4}, 1"); I(f"s_lshl_b32 s{sT5}, s{sT5}, 8"); I(f"s_and_b32 s{sT6}, s{sj}, 1")
        I(f"s_lshl_b32 s{sT5}, s{sT5}, s{sT6}"); I(f"s_lshl_b32 s{sT6}, s{sT6}, 15")
        I(f"s_add_u32 s{sKVst}, s{sKVst}, s{sT5}"); I(f"s_add_u32 s{sKVst}, s{sKVst}, s{sT6}")
        for q in range(4): I(f"s_xor_b32 s{sQ+q}, s{sW8K}, {q*8192}")
        I(f"s_mul_i32 s{sT5}, s{sj}, 7"); I(f"s_lshl_b32 s{sT6}, s{sw}, 1"); I(f"s_add_u32 s{sT5}, s{sT5}, s{sT6}")
        I(f"s_mul_i32 s{sW1o}, s{sT5}, {33*1024}"); I(f"s_add_u32 s{sW1o}, s{sW1o}, {hx(W1S)}")
        I(f"s_lshl_b32 s{sHs}, s{sT5}, 11"); I(f"s_add_u32 s{sHs}, s{sHs}, {hx(G_H)}")
        I(f"s_cmp_eq_u32 s{sw}, 3"); I(f"s_cselect_b32 s{sT6}, {hx(BIG)}, 0")
        I(f"s_add_u32 s{sW1o+1}, s{sW1o}, {33*1024}"); I(f"s_add_u32 s{sW1o+1}, s{sW1o+1}, s{sT6}")
        I(f"s_add_u32 s{sHs+1}, s{sHs}, 2048"); I(f"s_add_u32 s{sHs+1}, s{sHs+1}, s{sT6}")
        I(f"s_mul_i32 s{sHl}, s{sw}, {28*1024}")
        I(f"s_lshr_b32 s{sT6}, s{sw}, 1"); I(f"s_lshl_b32 s{sT5}, s{sj}, 1"); I(f"s_add_u32 s{sT5}, s{sT5}, s{sT6}")
        for n in range(2):
            if n: I(f"s_xor_b32 s{sT5}, s{sT5}, 1")
            I(f"s_lshl_b32 s{sWOo+n}, s{sT5}, 15"); I(f"s_add_u32 s{sWOo+n}, s{sWOo+n}, s{sW8K}"); I(f"s_add_u32 s{sWOo+n}, s{sWOo+n}, {hx(WOS)}")
            I(f"s_mul_i32 s{sW2o+n}, s{sT5}, {112*1024}"); I(f"s_add_u32 s{sW2o+n}, s{sW2o+n}, s{sHl}"); I(f"s_add_u32 s{sW2o+n}, s{sW2o+n}, {hx(W2S)}")
        I(f"s_add_u32 s{sHl}, s{sHl}, {hx(G_H)}")
        I(f"s_and_b32 s{sT5}, s{sw}, 1"); I(f"s_lshl_b32 s{sT5}, s{sT5}, 8"); I(f"v_xor_b32 v{vL16x}, s{sT5}, v{vL16}")
        I(f"v_lshlrev_b32 v{vPoll}, 7, v{vLane}")
        I(f"v_add_u32 v{vEW}, s{sT3}, v{vL16}")
        for q in (1, 2, 3):
            I(f"v_xor_b32 v{vER+q-1}, {hx(q*0x4000)}, v{vEW}")
            if q > 1: I(f"v_add_u32 v{vER+q-1}, {(q-1)*2048}, v{vER+q-1}")
        I(f"v_mov_b32 v{vIdx}, 0xdddddddd")
        I(f"s_lshl_b32 s{sStS}, s{sj}, 8"); I(f"s_add_u32 s{sStS}, s{sStS}, s{sw}"); I(f"s_lshl_b32 s{sStS}, s{sStS}, 2"); I(f"s_add_u32 s{sStS}, s{sStS}, {hx(G_ST)}")
        I(f"s_lshl_b32 s{sStL}, s{sw}, 11"); I(f"s_add_u32 s{sStL}, s{sStL}, {hx(G_ST)}")
        e.wait_lg0(force=True)
        I(f"s_add_u32 s{sN}, s{sN}, 16"); I(f"s_addc_u32 s{sN+1}, s{sN+1}, 0"); I(f"s_and_b32 s{sN}, s{sN}, -16")
        I(f"s_getreg_b32 s{sT5}, hwreg(HW_REG_XCC_ID, 0, 4)"); I(f"s_or_b32 s{sMyF}, s{sN}, s{sT5}")
        I(f"v_mov_b32 v{vN}, s{sN}"); I(f"v_mov_b32 v{vN+1}, s{sN+1}")

    def rowaddr(self, d, hh16):
        return [f"v_lshrrev_b32 v{hh16}, 5, v{vLane}", f"v_lshlrev_b32 v{hh16}, 4, v{hh16}", f"v_and_b32 v{d}, 31, v{vLane}",
                f"v_lshl_add_u32 v{d}, v{d}, 10, v{hh16}"]
    def wq_dma(self, va):
        o = [f"v_lshrrev_b32 v{va}, 2, v{vLane}", f"v_lshlrev_b32 v{va}, 10, v{va}", f"v_and_or_b32 v{va}, v{vL16}, 48, v{va}"]
        for ks in range(8):
            for n in range(2):
                o += [f"s_add_u32 m0, s{sWQl}, {(2*ks+n)*1024}", f"s_add_u32 s{sT7}, s{sWQo+n}, {ks*16384}", self.dma(va, sWQ, f"s{sT7}")]
        return o
    def traddr(self, d, t, swapw):
        o = [f"v_lshrrev_b32 v{d}, 5, v{vLane}", f"v_lshlrev_b32 v{d}, 9, v{d}",
             f"v_bfe_u32 v{t}, v{vLane}, 2, 2", f"v_lshl_or_b32 v{d}, v{t}, 6, v{d}",
             f"v_bfe_u32 v{t}, v{vL16x if swapw else vL16}, 8, 1", f"v_lshl_or_b32 v{d}, v{t}, 5, v{d}",
             f"v_and_b32 v{t}, 1, v{vLane}", f"v_lshl_or_b32 v{d}, v{t}, 4, v{d}",
             f"v_bfe_u32 v{t}, v{vLane}, 1, 1", f"v_lshl_or_b32 v{d}, v{t}, 3, v{d}",
             f"v_add_u32 v{d}, s{sWQl}, v{d}"]
        return o
    def wkv_reads(self, W):
        a = vT + 6; t = vT + 7
        o = [f"v_lshrrev_b32 v{a}, 4, v{vLane}", f"v_lshlrev_b32 v{a}, 8, v{a}", f"v_and_b32 v{t}, 15, v{vLane}",
             f"v_lshl_or_b32 v{a}, v{t}, 3, v{a}", f"s_lshl_b32 s{sT5}, s{sw}, 12", f"s_add_u32 s{sT5}, s{sT5}, {hx(L_WKV)}",
             f"v_add_u32 v{a}, s{sT5}, v{a}"]
        for s in range(4):
            for h in range(2): o.append(f"ds_read_b64_tr_b16 {V(W+4*s+2*h,2)}, v{a} offset:{s*1024+h*128}")
        return o
    def wq_reads(self):
        a = vT + 6
        o = self.traddr(a, vT + 7, True)
        for f in range(16):
            for h in range(2): o.append(f"ds_read_b64_tr_b16 {A(4*f+2*h,2)}, v{a} offset:{f*1024+h*256}")
        return o

    def qkv(self, first):
        e = self.e; I = e.I
        W = vF0; XK = 240; X = 176; AQ = 112; ONE = vF1 + 16; AR = 0x1800 if first else 0x8000
        acc, sm, cs, gr = vF1, vF1 + 4, vF1 + 8, vF1 + 12
        for i in range(4): I(f"v_mov_b32 v{ONE+i}, s{sOnes}")
        I(f"s_lshr_b32 s{sT4}, s{sj}, 1")
        if first:
            a = vT + 8
            I(f"v_and_b32 v{vT+4}, 15, v{vLane}"); I(f"v_lshrrev_b32 v{vT+5}, 4, v{vLane}")
            I(f"v_xor_b32 v{vT+5}, v{vT+5}, v{vT+4}"); I(f"v_lshlrev_b32 v{vT+5}, 4, v{vT+5}")
            I(f"v_lshl_or_b32 v{a}, v{vT+4}, 8, v{vT+5}")
            I(f"s_lshl_b32 s{sT5}, s{sT4}, 12"); I(f"s_lshl_b32 s{sT6}, s{sw}, 14"); I(f"s_add_u32 s{sT5}, s{sT5}, s{sT6}")
            I(f"v_add_u32 v{a}, s{sT5}, v{a}")
            o = self.wkv_reads(W)
            e.seq(o[:7]); e.wait(*self.tk_wkv); e.seq(o[7:])
            e.wait(*self.tk_x[0])
            for s in range(4):
                if s: I(f"v_xor_b32 v{a+1}, {s*64}, v{a}")
                I(f"ds_read_b128 {V(XK+4*s,4)}, v{a+(1 if s else 0)}")
            e.wait_lg0()
        else:
            e.seq(self.wkv_reads(W))
            a = vT + 8
            I(f"v_lshrrev_b32 v{a}, 4, v{vLane}"); I(f"v_lshlrev_b32 v{a}, 9, v{a}"); I(f"v_and_b32 v{a+1}, 0xf0, v{vL16}"); I(f"v_or_b32 v{a}, v{a}, v{a+1}")
            I(f"s_lshr_b32 s{sT5}, s{sT4}, 1"); I(f"s_lshl_b32 s{sT5}, s{sT5}, 15"); I(f"s_and_b32 s{sT6}, s{sT4}, 1"); I(f"s_lshl_b32 s{sT6}, s{sT6}, 8")
            I(f"s_add_u32 s{sT5}, s{sT5}, s{sT6}"); I(f"s_add_u32 s{sT0}, s{sW8K}, {hx(G_X2)}"); I(f"s_add_u32 s{sT5}, s{sT5}, s{sT0}")
            I(f"s_add_u32 s{sT6}, s{sT5}, 4096")
            e.wait_lg0()
            self.gpoll(F_X2)
            self.stamp("x2poll")
            tk = [I(self.ld(V(XK + 4 * s, 4), a, sG, f"s{sT5 + (s >> 1)}", (s & 1) * 2048, "sc1")) for s in range(4)]
            for mt in range(2):
                for ks in range(8):
                    if ks % 4 == 0: I(f"s_add_u32 s{sT1}, s{sT0}, {mt*0x8000 + ks*1024}")
                    I(self.ld(V(X + (mt * 8 + ks) * 4, 4), vL16, sG, f"s{sT1}", (ks % 4) * 1024, "sc1"))
            I(f"s_add_u32 s{sFlSt}, s{sFlSt}, 4096"); I(f"s_add_u32 s{sFlPo}, s{sFlPo}, 4096")
            I(f"s_add_u32 s{sKV}, s{sKV}, 0x20000"); I(f"s_addc_u32 s{sKV+1}, s{sKV+1}, 0")
            I(f"s_add_u32 s{sKVFs}, s{sKVFs}, 0x8000"); I(f"s_add_u32 s{sKVFp}, s{sKVFp}, 0x8000")
            I(f"s_mov_b32 s{sLayer}, 1"); I(f"s_mov_b32 s{sWQo}, {hx(BIG)}")
            e.wait(*tk)
        self.stamp("kvx")
        lv = e.newlab("L_kvv"); lj = e.newlab("L_kvj")
        I(f"s_bitcmp1_b32 s{sj}, 0"); I(f"s_cbranch_scc1 {lv}")
        for typ in range(2):
            e.begin_opt()
            for s in range(4):
                x = V(XK + 4 * s, 4); w = V(W + 4 * s, 4); one = V(ONE, 4)
                pr = (lambda a, b: (a, b)) if typ == 0 else (lambda a, b: (b, a))
                I(self.mf16(acc, *pr(w, x), s == 0)); I(self.mf16(sm, *pr(one, x), s == 0)); I(self.mf16(gr, x, x, s == 0))
                if first: I(self.mf16(cs, *pr(w, one), s == 0))
            if typ == 0: I(f"s_branch {lj}")
            e.end_opt()
            if typ == 0: e.label(lv)
        e.label(lj)
        ah = vT + 4
        I(f"v_add_u32 v{ah}, {hx(L_KVR)}, v{vL16}")
        I(f"s_lshl_b32 s{sT5}, s{sw}, 12"); I(f"v_add_u32 v{ah+1}, s{sT5}, v{ah}")
        I(f"ds_write_b128 v{ah+1}, {V(gr,4)} offset:{0xC00}")
        l0 = e.newlab("L_kvw")
        I(f"s_cmp_eq_u32 s{sw}, 0"); I(f"s_cbranch_scc1 {l0}")
        e.begin_opt()
        I(f"ds_write_b128 v{ah+1}, {V(acc,4)}"); I(f"ds_write_b128 v{ah+1}, {V(sm,4)} offset:{0x400}")
        if first: I(f"ds_write_b128 v{ah+1}, {V(cs,4)} offset:{0x800}")
        e.end_opt(); e.label(l0)
        ga = vT + 6; gs = sT6; sa = vT + 7; n16 = vT + 8; q = vT + 9; t = vT + 10
        I(f"v_and_b32 v{n16}, 15, v{vLane}"); I(f"v_lshrrev_b32 v{q}, 4, v{vLane}")
        lv = e.newlab("L_kvv"); lj = e.newlab("L_kvj")
        I(f"s_bitcmp1_b32 s{sj}, 0"); I(f"s_cbranch_scc1 {lv}")
        e.begin_opt()
        I(f"v_lshrrev_b32 v{ga}, 2, v{n16}"); I(f"v_lshlrev_b32 v{ga}, 8, v{ga}"); I(f"v_lshl_or_b32 v{ga}, v{n16}, 4, v{ga}")
        I(f"v_and_b32 v{t}, 3, v{n16}"); I(f"v_lshl_or_b32 v{ga}, v{t}, 2, v{ga}"); I(f"s_mov_b32 s{gs}, 0")
        I(f"v_lshrrev_b32 v{sa}, 1, v{q}"); I(f"v_lshlrev_b32 v{sa}, 9, v{sa}"); I(f"v_lshl_or_b32 v{sa}, v{n16}, 4, v{sa}")
        I(f"s_branch {lj}")
        e.end_opt(); e.label(lv); e.begin_opt()
        I(f"v_mul_u32_u24 v{ga}, 0x140, v{q}"); I(f"s_mov_b32 s{gs}, 20")
        I(f"v_lshrrev_b32 v{sa}, 1, v{q}"); I(f"v_lshlrev_b32 v{sa}, 8, v{sa}")
        I(f"v_and_b32 v{t}, 3, v{n16}"); I(f"v_lshl_or_b32 v{sa}, v{t}, 4, v{sa}")
        I(f"v_bfe_u32 v{t}, v{n16}, 2, 1"); I(f"v_lshl_or_b32 v{sa}, v{t}, 7, v{sa}")
        I(f"v_bfe_u32 v{t}, v{n16}, 3, 1"); I(f"v_lshl_or_b32 v{sa}, v{t}, 6, v{sa}")
        e.end_opt(); e.label(lj)
        I(f"v_and_b32 v{t}, 1, v{q}"); I(f"v_lshl_or_b32 v{sa}, v{t}, 3, v{sa}")
        I(f"v_add_u32 v{ga}, {hx(L_KVR + 0xC00)}, v{ga}")
        g1 = vT + 8
        I(f"v_add_u32 v{g1}, s{gs}, v{ga}"); I(f"v_add_u32 v{g1+1}, s{gs}, v{g1}"); I(f"v_add_u32 v{g1+2}, s{gs}, v{g1+1}")
        gaddr = [ga, g1, g1 + 1, g1 + 2]
        e.wait_lg0(force=True); e.barrier()
        lf = e.newlab("L_kvf")
        I(f"s_cmp_lg_u32 s{sw}, 0"); I(f"s_cbranch_scc1 {lf}")
        e.begin_opt()
        tg = AQ; ts = AQ + 16; ta = AQ + 28; tc = AQ + 40
        for w2 in range(4):
            for r in range(4): I(f"ds_read_b32 v{tg+4*w2+r}, v{gaddr[r]} offset:{w2*0x1000}")
            if w2: I(f"ds_read_b128 {V(ts+4*(w2-1),4)}, v{ah} offset:{w2*0x1000+0x400}")
        for w2 in range(1, 4):
            I(f"ds_read_b128 {V(ta+4*(w2-1),4)}, v{ah} offset:{w2*0x1000}")
            if first: I(f"ds_read_b128 {V(tc+4*(w2-1),4)}, v{ah} offset:{w2*0x1000+0x800}")
        def padd(d, s): I(f"v_pk_add_f32 {V(d,2)}, {V(d,2)}, {V(s,2)}"); I(f"v_pk_add_f32 {V(d+2,2)}, {V(d+2,2)}, {V(s+2,2)}")
        for w2 in range(1, 4): padd(tg, tg + 4 * w2); padd(sm, ts + 4 * (w2 - 1))
        k = hx(f2u(1 / 512))
        for r in range(4): I(f"v_mul_f32 v{sm+r}, {k}, v{sm+r}")
        for r in range(4): I(f"v_mul_f32 v{tg+r}, {k}, v{tg+r}")
        for r in range(4): I(f"v_fma_f32 v{tg+r}, -v{sm+r}, v{sm+r}, v{tg+r}")
        for r in range(4): I(f"v_max_f32 v{tg+r}, 0, v{tg+r}")
        for r in range(4): I(f"v_add_f32 v{tg+r}, {hx(f2u(1e-5))}, v{tg+r}")
        for r in range(4): I(f"v_rsq_f32 v{tg+r}, v{tg+r}")
        for w2 in range(1, 4):
            padd(acc, ta + 4 * (w2 - 1))
            if first: padd(cs, tc + 4 * (w2 - 1))
        if first:
            for r in range(4): I(f"v_mov_b32 v{vCSKV+r}, v{cs+r}")
        for r in range(4): I(f"v_fma_f32 v{acc+r}, -v{sm+r}, v{vCSKV+r}, v{acc+r}")
        for r in range(4): I(f"v_mul_f32 v{acc+r}, v{acc+r}, v{tg+r}")
        e.seq(self.pack(acc, acc, 2))
        I(self.st(V(acc, 2), sa, sKV, f"s{sKVst}", 0, "sc1", w=2))
        I(f"v_mov_b32 v{tg}, s{sMyF}"); I(f"v_mov_b32 v{tg+1}, s{sN+1}")
        e.wait_vm0()
        I("s_mov_b64 exec, 1"); I(self.st(V(tg, 2), vPoll, sWS, f"s{sKVFs}", 0, "sc1", w=2)); I("s_mov_b64 exec, -1")
        e.end_opt(); e.label(lf)
        self.stamp("kvdone")
        sd = [vF1, vF1 + 1, vF1 + 2, vF1 + 3]
        if first:
            a = vT + 8
            I(f"v_and_b32 v{a+1}, 31, v{vLane}"); I(f"v_lshrrev_b32 v{a}, 5, v{vLane}"); I(f"v_xor_b32 v{a}, v{a}, v{a+1}")
            I(f"v_and_b32 v{a}, 15, v{a}"); I(f"v_lshlrev_b32 v{a}, 4, v{a}"); I(f"v_lshl_or_b32 v{a}, v{a+1}, 8, v{a}")
            I(f"s_lshl_b32 s{sT6}, s{sw}, 14"); I(f"v_add_u32 v{a}, s{sT6}, v{a}")
            e.wait(*self.tk_x[3])
            for ks in range(8):
                if ks: I(f"v_xor_b32 v{a+1}, {ks*32}, v{a}")
                for mt in range(2): I(f"ds_read_b128 {V(X+(mt*8+ks)*4,4)}, v{a+(1 if ks else 0)} offset:{mt*8192}")
            o = self.wq_reads()
            e.seq(o[:11]); e.wait(*self.tk_wq); e.seq(o[11:])
            I(f"s_and_b32 s{sT5}, s{sg}, 15"); I(f"s_lshl_b32 s{sT5}, s{sT5}, 10"); I(f"v_add_u32 v{vT+6}, s{sT5}, v{vT+6}")
            for h in range(2): I(f"ds_read_b64_tr_b16 {V(vAUG+4+2*h,2)}, v{vT+6} offset:{h*256}")
            I(f"s_lshl_b32 s{sWQo}, s{sP1K}, 4"); I(f"s_add_u32 s{sWQo}, s{sWQo}, {hx(WQS)}"); I(f"s_add_u32 s{sT5}, s{sT5}, s{sWQo}")
            I(f"s_cmp_ge_u32 s{sg}, 16"); I(f"s_cselect_b32 s{sT5}, {hx(BIG)}, s{sT5}")
            I(self.st(V(vAUG + 4, 4), vL16, sWS, f"s{sT5}", 0, "sc1"))
            self.swz_setup()
            for mt in range(2):
                for i in range(4):
                    I(f"v_lshlrev_b32 v{RES(mt)+2*i}, 16, v{vF0+16+4*mt+i}"); I(f"v_and_b32 v{RES(mt)+2*i+1}, 0xffff0000, v{vF0+16+4*mt+i}")
            e.wait_lg0()
            self.swz_dma()
            self.stamp("wqrd")
            c = AQ + 32
            for ks in range(8):
                for n in range(2): I(self.mf(c + 16 * n, A((2 * ks + n) * 4, 4), V(ONE, 4), '0' if ks == 0 else None))
        for r in sd: I(f"v_mov_b32 v{r}, 0")
        main = []
        for mt in range(2):
            for ks in range(8):
                for n in range(2): main.append([self.mf(AQ + 32 * mt + 16 * n, A((2 * ks + n) * (4 if first else 8), 4), V(X + (mt * 8 + ks) * 4, 4), '0' if ks == 0 else None)])
        fill0 = []
        if first:
            fill0 = [f"v_add_u32 v{vT+8}, 0x10000, v{vEW}"] + self.exw(AQ + 32, 0, vT + 8) + [f"v_mov_b32 v{vCSQ+i}, v{AQ+32+i}" for i in range(8)]
        d0 = self.dots(sd[0], sd[1], X, 32); d1 = self.dots(sd[2], sd[3], X + 32, 32)
        a, r0 = interleave(main[:16], d0[:24] + fill0 + d0[24:], 24)
        e.seq(a); e.seq(r0)
        a, r1 = interleave(main[16:], d1[:12] + self.exw(AQ, 0) + d1[12:], 24)
        e.seq(a); e.seq(r1)
        e.seq(self.exw(AQ + 32, AR))
        I(f"s_lshl_b32 s{sT5}, s{sw}, 2"); I(f"v_add_u32 v{ah+1}, s{sT5}, v{ah}")
        for mt in range(2): e.seq(self.stat_write(sd[2 * mt], sd[2 * mt + 1], ah + 1, mt))
        e.wait_lg0(); e.barrier()
        t0 = vF1 + 4
        for mt in range(2): I(f"ds_read_b128 {V(t0+4*mt,4)}, v{ah} offset:{mt*1024}")
        if first:
            for q in range(3): I(f"v_add_u32 v{vT+8+q}, 0x10000, v{vER+q}")
            e.seq(self.exr(vF0, 0, vT + 8))
        for mt in range(2): e.seq(self.exr(X + 24 * mt, AR * mt))
        I(f"v_add_u32 v{ah+1}, s{sW1K}, v{ah}")
        if not self.opt.get('allones'):
            I(f"v_and_b32 v{ONE+1}, 11, v{vLane}"); I(f"v_cmp_eq_u32 vcc, 0, v{ONE+1}")
            for i in (1, 2, 3, 0): I(f"v_cndmask_b32 v{ONE+i}, 0, v{ONE}, vcc")
        I(f"ds_write_b128 v{ah+1}, {V(ONE,4)} offset:{L_ONES-L_KVR}")
        for mt in range(2):
            e.seq(self.stat_fin(t0 + 4 * mt, sd[2 * mt], sd[2 * mt + 1]))
        if first: e.seq(self.exadd(vCSQ, vF0))
        for mt in range(2):
            m, r = sd[2 * mt], sd[2 * mt + 1]; ac = AQ + 32 * mt
            I(f"v_mul_f32 v{r}, {hx(f2u(QS))}, v{r}")
            e.seq(self.exadd(ac, X + 24 * mt))
            for i in range(8): I(f"v_fma_f32 v{ac+i}, -v{m}, v{vCSQ+i}, v{ac+i}")
            for i in range(8): I(f"v_mul_f32 v{ac+i}, v{ac+i}, v{r}")
            e.seq(self.pack(vQ + 4 * mt, ac))
        self.stamp("qdone")
        if first:
            self.swz_do(ah)
            I(f"s_add_u32 s{sT5}, s{sW8K}, {hx(L_X)}"); I(f"v_add_u32 v{vEW}, s{sT5}, v{vL16}")
            for q in (1, 2, 3):
                I(f"v_xor_b32 v{vER+q-1}, {hx(q*0x2000)}, v{vEW}")
                if q > 1: I(f"v_add_u32 v{vER+q-1}, {(q-1)*2048}, v{vER+q-1}")
        else: e.wait_lg0(); e.barrier()

    def swz_setup(self):
        e = self.e; I = e.I
        l2 = e.newlab("L_sw2"); lo = e.newlab("L_swo"); lj = e.newlab("L_swj")
        I(f"s_mov_b32 s{sAug}, {hx(BIG)}"); I(f"s_mov_b32 s{sTA+3}, 0x20000")
        I(f"s_cmp_ge_u32 s{sg}, 14"); I(f"s_cbranch_scc1 {l2}")
        I(f"s_mov_b64 s[{sTA}:{sTA+1}], s[{pW1}:{pW1+1}]"); I(f"s_mov_b32 s{sTA+2}, {512*1792*2}")
        I(f"s_mov_b32 s{sT0}, 3584"); I(f"s_and_b32 s{sT1}, s{sg}, 1")
        I(f"s_mul_i32 s{sT2}, s{sj}, 7"); I(f"s_lshr_b32 s{sT3}, s{sg}, 1"); I(f"s_add_u32 s{sT2}, s{sT2}, s{sT3}")
        I(f"s_mul_i32 s{sSwD}, s{sT2}, {33*1024}"); I(f"s_add_u32 s{sSwD}, s{sSwD}, {hx(W1S)}")
        I(f"s_lshl_b32 s{sT3}, s{sT1}, 3"); I(f"s_add_u32 s{sT3}, s{sT3}, s{sSwD}"); I(f"s_add_u32 s{sT3}, s{sT3}, {32*1024}")
        I(f"s_cmp_eq_u32 s{sw}, 0"); I(f"s_cselect_b32 s{sAug}, s{sT3}, s{sAug}")
        I(f"s_branch {lj}")
        e.label(l2)
        I(f"s_mov_b32 s{sT0}, 1024"); I(f"s_lshl_b32 s{sT2}, s{sj}, 1")
        I(f"s_cmp_ge_u32 s{sg}, 28"); I(f"s_cbranch_scc1 {lo}")
        I(f"s_mov_b64 s[{sTA}:{sTA+1}], s[{pW2}:{pW2+1}]"); I(f"s_mov_b32 s{sTA+2}, {512*1792*2}")
        I(f"s_cmp_ge_u32 s{sg}, 21"); I(f"s_cselect_b32 s{sT3}, 21, 14"); I(f"s_addc_u32 s{sT2}, s{sT2}, 0")
        I(f"s_sub_u32 s{sT1}, s{sg}, s{sT3}")
        I(f"s_mul_i32 s{sSwD}, s{sT2}, {112*1024}"); I(f"s_add_u32 s{sSwD}, s{sSwD}, {hx(W2S)}")
        I(f"s_branch {lj}")
        e.label(lo)
        I(f"s_mov_b64 s[{sTA}:{sTA+1}], s[{pWO}:{pWO+1}]"); I(f"s_mov_b32 s{sTA+2}, 0x80000")
        I(f"s_and_b32 s{sT1}, s{sg}, 1"); I(f"s_bitcmp1_b32 s{sg}, 1"); I(f"s_addc_u32 s{sT2}, s{sT2}, 0")
        I(f"s_lshl_b32 s{sSwD}, s{sT2}, 15"); I(f"s_add_u32 s{sSwD}, s{sSwD}, {hx(WOS)}")
        e.label(lj)
        I(f"s_lshl_b32 s{sT1}, s{sT1}, 2"); I(f"s_add_u32 s{sT1}, s{sT1}, s{sw}")
        I(f"s_lshl_b32 s{sT3}, s{sT1}, 12"); I(f"s_add_u32 s{sSwD}, s{sSwD}, s{sT3}")
        I(f"s_lshl_b32 s{sT1}, s{sT1}, 6"); I(f"s_mul_i32 s{sT1}, s{sT1}, s{sT0}")
        I(f"s_lshl_b32 s{sT2}, s{sT2}, 6"); I(f"s_add_u32 s{sT1}, s{sT1}, s{sT2}")
        a = vT + 9
        I(f"v_lshrrev_b32 v{a}, 2, v{vLane}"); I(f"v_mul_lo_u32 v{a}, v{a}, s{sT0}"); I(f"v_and_or_b32 v{a}, v{vL16}, 48, v{a}")
        I(f"s_lshl_b32 s{sT0}, s{sT0}, 4")
        b = vT + 10; t = vT + 8
        I(f"v_and_b32 v{b}, 0x13, v{vLane}"); I(f"v_bfe_u32 v{t}, v{vLane}, 2, 1"); I(f"v_lshl_or_b32 v{b}, v{t}, 3, v{b}")
        I(f"v_bfe_u32 v{t}, v{vLane}, 3, 1"); I(f"v_lshl_or_b32 v{b}, v{t}, 2, v{b}")
        I(f"v_lshrrev_b32 v{t}, 5, v{vLane}"); I(f"v_lshl_or_b32 v{b}, v{t}, 15, v{b}"); I(f"v_lshlrev_b32 v{b}, 1, v{b}")
        self.srd(sTB, pB1, 3584)
        I(f"buffer_load_ushort v{vAUG}, v{b}, s[{sTB}:{sTB+3}], s{sT2} offen")
        I(f"s_lshl_b32 s{sSwF}, s{sj}, 12"); I(f"s_add_u32 s{sSwF}, s{sSwF}, {hx(GF + 0x10000)}")
    def swz_dma(self):
        I = self.I
        self.tk_sw = []
        for f in range(4):
            I(f"s_add_u32 m0, s{sWQl}, {0x2000 + f*1024}")
            if f: I(f"s_add_u32 s{sT1}, s{sT1}, s{sT0}")
            self.tk_sw.append(I(self.dma(vT + 9, sTA, f"s{sT1}")))
    def swz_do(self, ah):
        e = self.e; I = e.I
        a = vT + 6; F = 112; c = vT + 8
        e.seq(self.traddr(a, vT + 7, False)); I(f"v_mov_b32 v{c}, 0")
        e.wait(*self.tk_sw)
        for f in range(4):
            for h in range(2): I(f"ds_read_b64_tr_b16 {V(F+4*f+2*h,2)}, v{a} offset:{0x2000+f*1024+h*256}")
        for f in range(4): I(self.st(V(F + 4 * f, 4), vL16, sWS, f"s{sSwD}", f * 1024, "sc1"))
        for i in range(16): I(f"v_dot2c_f32_bf16 v{c}, s{sOnes}, v{F+i}")
        I(f"s_lshl_b32 s{sT5}, s{sw}, 2"); I(f"v_add_u32 v{ah+1}, s{sT5}, v{ah}")
        I(f"ds_write_b32 v{ah+1}, v{c} offset:{L_CSR-L_KVR}")
        e.wait_lg0(); e.barrier()
        t = F + 16
        I(f"ds_read_b128 {V(t,4)}, v{ah} offset:{L_CSR-L_KVR}")
        I(f"v_add_f32 v{t}, v{t}, v{t+1}"); I(f"v_add_f32 v{t+2}, v{t+2}, v{t+3}"); I(f"v_add_f32 v{t}, v{t}, v{t+2}")
        I(f"v_cvt_pk_bf16_f32 v{t+1}, v{t}, v{t}"); I(f"v_lshlrev_b32 v{t+2}, 16, v{t+1}"); I(f"v_sub_f32 v{t}, v{t}, v{t+2}")
        I(f"v_cvt_pk_bf16_f32 v{t}, v{t+2}, v{t}"); I(f"v_and_b32 v{t+1}, 0xffff, v{t+1}"); I(f"v_lshl_or_b32 v{t+1}, v{vAUG}, 16, v{t+1}")
        I(self.st(V(t, 2), vL16, sWS, f"s{sAug}", 0, "sc1", w=2))
        self.stamp("swz")

    OB = [[208, 212, 216, 220, 248, 252, 40, 240], [176 + 4 * i for i in range(8)]]
    UA = [0, 2, 4, 6, 7, 9, 11, 13]; UB = [1, 3, 5, 8, 10, 12]
    def ofin(self, mt, box):
        O = vO + 16 * mt
        def chk():
            I = self.I
            I(f"v_cmp_lt_f32 vcc, s{sT6}, v{O+8}"); I(f"v_cmp_gt_f32 s[{sT2}:{sT3}], s{sT7}, v{O+8}")
            I(f"s_and_b64 vcc, vcc, s[{sT2}:{sT3}]"); I("s_andn2_b64 vcc, exec, vcc"); I(f"s_cbranch_scc1 L_slow{mt}"); self.e.label(f"L_slowb{mt}")
        return [(chk, 20), f"v_rcp_f32 v{O+8}, v{O+8}", f"s_add_u32 s{sT2}, s{sP1K}, {hx(G_O + mt*0x8000)}"] + \
               [f"v_mul_f32 v{O+i}, v{O+i}, v{O+8}" for i in range(8)] + self.pack(vQ + 4 * mt, O) + \
               [self.dcap([self.st(V(vQ + 4 * mt, 4), vL16, sG, f"s{sT2}")], box)]
    def oload(self, mt):
        return [([f"s_add_u32 s{sT1}, s{sW8K}, {hx(G_O + mt*0x8000 + ks*1024)}"] if ks % 4 == 0 else []) +
                [self.ld(V(self.OB[mt][ks], 4), vL16, sG, f"s{sT1}", (ks % 4) * 1024, "sc1")] for ks in range(8)]
    def attention(self):
        e = self.e; I = e.I; op = self.opt.get
        Kf = [vF1, vF1 + 4]; Vf = [vF1 + 8, vF1 + 16]
        vInc = vT + 2; vK2 = vT + 3; vJ = vT + 8
        vPW = 64; vMA = 65; vSA = 66; vMD = 67; vSD = 68; t = 70
        S_ = [vS, vS + 16]; O_ = [vO, vO + 16]
        I(f"v_and_b32 v{t}, 16, v{vLane}"); I(f"v_cmp_eq_u32 vcc, 0, v{t}")
        I(f"v_lshrrev_b32 v{t}, 5, v{vLane}"); I(f"v_lshlrev_b32 v{t}, 8, v{t}"); I(f"v_add_u32 v{t}, 0x8000, v{t}")
        I(f"v_mov_b32 v{t+1}, {hx(L_ONES)}"); I(f"v_cndmask_b32 v{vV}, v{t+1}, v{t}, vcc")
        I(f"v_and_b32 v{t}, 0xf0, v{vL16}"); I(f"v_or_b32 v{vV}, v{vV}, v{t}")
        I(f"v_mov_b32 v{t}, 0x1000"); I(f"v_cndmask_b32 v{vInc}, 0, v{t}, vcc")
        I(f"v_and_b32 v{vMA}, 0x180, v{vPoll}"); I(f"v_bfe_u32 v{t}, v{vLane}, 2, 1"); I(f"v_lshl_or_b32 v{vMA}, v{t}, 12, v{vMA}")
        I(f"v_and_b32 v{vSA}, 0xf80, v{vPoll}"); I(f"v_add_u32 v{vK2}, 0x10000, v{vL16}"); I(f"v_lshlrev_b32 v{vPW}, 6, v{vLane}")
        I(f"v_lshlrev_b32 v{vFl}, 20, v{vLane}"); I(f"v_and_b32 v{vP8}, 0x380, v{vPoll}")
        for i in range(32): I(f"v_mov_b32 v{vO+i}, 0")
        for i in range(8): I(f"v_mov_b32 v{RES(0)+8+i}, 0")
        self.poll(sWS, f"s{sKVFp}", 0, 64, kv=True)
        self.stamp("kvpoll")
        def kvdma(i, v): return ([f"s_add_u32 m0, s{sW1K}, {hx((i&7)*4096 + (i>>3)*0x10000 + v*0x8000)}"], self.dma(vL16, sKV, "m0", 0, "sc1"))
        tk = []
        for i in range(4):
            for v in range(2):
                p, o = kvdma(i, v); e.seq(p); tk.append(I(o))
        e.wait(tk[1]); e.barrier()
        l1 = e.newlab("L_nosw")
        I(f"s_or_b32 s{sT5}, s{sLayer}, s{sw}"); I(f"s_cbranch_scc1 {l1}")
        e.begin_opt()
        I(f"s_lshl_b32 s{sT5}, s{sg}, 7"); I(f"s_add_u32 s{sT5}, s{sT5}, s{sSwF}")
        I(f"s_cmp_eq_u32 s2, 0"); I(f"s_cselect_b32 s{sT6}, 0, {hx(BIG)}")
        I("s_mov_b64 exec, 1")
        I(self.st(V(vN, 2), vPoll, sWS, f"s{sT5}", 0, "sc1", w=2)); I(self.st(V(vN, 2), vPoll, sWS, f"s{sT6}", 0, "sc1", w=2))
        I("s_mov_b64 exec, -1")
        e.end_opt(); e.label(l1)
        lo, hi = (2.0 ** -64, 2.0 ** 64) if not self.fsa else (2.0 ** 64, 2.0 ** -64)
        I(f"s_mov_b32 s{sT6}, {hx(f2u(lo))}"); I(f"s_mov_b32 s{sT7}, {hx(f2u(hi))}")
        SK = op('sk', 12); NP = 64 - SK
        vm = [[] for _ in range(64)]
        lst = [kvdma(i, v) for i in range(4, 16) for v in range(2)]
        for n, it in enumerate(lst): vm[n // 2].append(it)
        vm[12] = [([f"s_andn2_b32 s{sT5}, s{sKVFs}, 0x1180"], self.ld(V(vMD), vMA, sWS, f"s{sT5}", 0, "sc1", w=1)),
                  ([], self.ld(V(vSD, 2), vSA, sWS, f"s{sSwF}", 0, "sc1", w=2))]
        lst = []
        pw = [([f"s_lshl_b32 s{sT1}, s{sLayer}, {op('pwl', 28)}", f"s_add_u32 s{sT1}, s{sT1}, s{sP1K}"], "!" + self.ld(V(vJ), vL16, sG, f"s{sT1}", 0, "sc1", w=1))]
        for i in (5, 6, 7, 0, 1, 2, 3, 4, 8):
            pw.append(([f"s_add_u32 s{sT0}, s{sT1}, {hx(G_X1 + i * 0x8000)}"], "!" + self.ld(V(vJ), vL16, sG, f"s{sT0}", 0, "sc1", w=1)))
        if op('nopw'): pw = []
        wfl = op('wfl', 'sc1')
        for n in range(2):
            for ks in range(8):
                pre = [f"s_add_u32 s{sT5}, s{sWOo+n}, {ks*1024}"] if ks % 4 == 0 else []
                lst.append((pre, self.ld(V(vWO + (2 * ks + n) * 4, 4), vL16x, sWS, f"s{sT5}", (ks % 4) * 1024, wfl)))
        for n in range(2):
            for i in range(32):
                pre = []
                if i % 8 == 0: pre = [f"s_add_u32 s{sT5}, s{sW1o+n}, s{sQ+i//8}"]
                elif i % 4 == 0: pre = [f"s_add_u32 s{sT5}, s{sT5}, 4096"]
                lst.append((pre, self.ld(A((2 * i + n) * 4, 4), vL16, sWS, f"s{sT5}", (i % 4) * 1024, wfl)))
            lst.append(([f"s_add_u32 s{sT5}, s{sW1o+n}, {32*1024}"], self.ld(V(vAUG + 4 * n, 4), vL16, sWS, f"s{sT5}", 0, "sc1")))
        for k, u in enumerate(self.UB[2:]):
            for n in range(2):
                for h in range(2):
                    lst.append(([f"s_lshl1_add_u32 m0, s{sW8K}, {(k*2+n)*2048}", f"s_add_u32 s{sT5}, s{sW2o+n}, {u*2048}"] if h == 0 else [],
                                self.dma(vL16x, sWS, f"s{sT5}", h * 1024, wfl)))
        if op('now'): lst = []
        stp = op('pwstep', 10)
        for n, it in enumerate(pw): lst.insert(n * stp, it)
        if self.codepf:
            def cpf():
                I(f"s_getpc_b64 s[{sT2}:{sT3}]"); e.label("L_cpf")
                I(f"s_min_u32 s{sT0}, s{sP1K}, L_end-L_post"); I(f"s_add_u32 s{sT0}, s{sT0}, L_post-L_cpf")
                I(f"s_add_u32 s{sT2}, s{sT2}, s{sT0}"); I(f"s_addc_u32 s{sT3}, s{sT3}, 0")
            lst.append(([cpf], f"!global_load_dword v{vJ}, v{vL16}, s[{sT2}:{sT3}]"))
        p0, p1 = op('wp', (15, NP - 1))
        for n, it in enumerate(lst): vm[p0 + n * (p1 - p0 + 1) // len(lst)].append(it)
        assert max(len(x) for x in vm) <= 3 and not any('lds' in it[1] for x in vm[13:32] for it in x)
        slots = [(mt, t_) for t_ in range(NP) for mt in range(2)] + [(mt, t_) for mt in range(2) for t_ in range(NP, 64)]
        NS = len(slots)
        buf = lambda s_: (s_ >> 1) & 1 if s_ < 2 * NP else (s_ - NP) & 1
        new = lambda s_: s_ < NS and (s_ >= 2 * NP or s_ % 2 == 0)
        blk = [0]
        def rdK(s_):
            t_ = slots[s_][1]
            return I(f"ds_read_b128 {V(Kf[buf(s_)],4)}, v{vK2 if t_ >= 32 else vL16} offset:{(t_&31)*1024}")
        def rdV(s_, h):
            t_ = slots[s_][1]; b = (t_ >> 2) + (8 if t_ >= 32 else 0); d = b - blk[0]; blk[0] = b
            if d == 1: I(f"v_add_u32 v{vV}, v{vInc}, v{vV}")
            elif d: I(f"v_mad_i32_i24 v{vV}, v{vInc}, {d}, v{vV}")
            return I(f"ds_read_b128 {V(Vf[buf(s_)]+4*h,4)}, v{vV} offset:{(t_&3)*1024+h*512}")
        def smf(s_, h): I(f"v_smfmac_f32_32x32x32_bf16 {V(O_[slots[s_][0]],16)}, {V(Vf[buf(s_)]+4*h,4)}, {V(S_[s_&1]+8*h,8)}, v{vIdx}")
        def qk(s_): I(self.mf(S_[s_&1], V(Kf[buf(s_)], 4), V(vQ + 4 * slots[s_][0], 4), '0'))
        def ex(s_, a, b):
            for r in range(a, b): I(f"v_exp_f32 v{S_[s_&1]+r}, v{S_[s_&1]+r}")
        z = 2 * NP + SK; tv = {}; ob = []
        of = self.ofin(0, ob)
        tv[z + 1, 0] = of[:3]; tv[z + 1, 1] = of[3:11]; tv[z + 1, 2] = of[11:]
        pb, pi, pc = op('op', (11, 18, 25))
        for g, it in [(pb, [self.pub(F_O, ob)]), (pi, [self.pissue(F_O, vT)]), (pc, [self.pcheck(F_O, vT)])] + [(pc + k, x) for k, x in enumerate(self.oload(0))]:
            tv.setdefault((z + g // 3, g % 3), []).extend(it)
        rdK(0); rdV(0, 0); rdV(0, 1)
        qk(0)
        self.stamp("attn0")
        tkK = tkV = None
        for s_ in range(NS):
            mt, t_ = slots[s_]; sk = s_ >= 2 * NP
            v_ = vm[t_] if (mt and not sk) else []
            vs = (s_ + 1 if sk else s_ + 2 if mt == 0 else NS)
            ex(s_, 0, 2)
            if s_: smf(s_ - 1, 1)
            if sk: e.wait(tkV)
            elif mt: e.wait(tkK)
            if new(s_ + 2): tkK = rdK(s_ + 2)
            if v_: lasttk = I(v_[0][1])
            if len(v_) > 2: e.seq(v_[1][0])
            e.seq(tv.get((s_, 0), []))
            ex(s_, 2, 5)
            if s_ + 1 < NS: qk(s_ + 1)
            if vs < NS: rdV(vs, 0)
            if len(v_) > 2: I(v_[1][1])
            if len(v_) > 1: e.seq(v_[-1][0])
            e.seq(tv.get((s_, 1), []))
            ex(s_, 5, 10); smf(s_, 0)
            if not mt and not sk and vm[t_]: e.seq(vm[t_][0][0])
            if vs < NS: tkV = rdV(vs, 1)
            if mt and not sk:
                e.wait(tkV)
                if t_ in op('ast', ()): self.stamp(f"a{t_}")
                if t_ == 2: e.wait(tk[7]); e.barrier()
                if t_ == 31: e.barrier()
                if t_ == 14:
                    e.wait(tk12); e.barrier()
                    I(f"v_cmp_ne_u32 vcc, s{sMyF}, v{vMD}"); I("s_cmp_lg_u64 vcc, 0")
                    I(f"s_cselect_b32 s{sMode}, 1, {1 if self.fsm else 0}")
                    I(f"v_cmp_ne_u64 vcc, s[{sN}:{sN+1}], {V(vSD,2)}"); I("s_cbranch_vccnz L_swpoll"); e.label("L_swback")
                    e.tail += ["L_swpoll:", f"    s_mov_b32 s{sCnt}, 0", "L_swp2:", "    " + self.ld(V(vSD, 2), vSA, sWS, f"s{sSwF}", 0, "sc1", w=2),
                               f"    s_add_u32 s{sCnt}, s{sCnt}, 1", f"    s_cmp_gt_u32 s{sCnt}, {POLL_LIM}", "    s_cbranch_scc1 L_end",
                               "    s_waitcnt vmcnt(0)", f"    v_cmp_ne_u64 vcc, s[{sN}:{sN+1}], {V(vSD,2)}", "    s_cbranch_vccnz L_swp2", "    s_branch L_swback"]
            if len(v_) > 1: lasttk = I(v_[-1][1])
            if v_ and t_ == 12: tk12 = lasttk
            e.seq(tv.get((s_, 2), []))
            ex(s_, 10, 16)
        smf(NS - 1, 1)
        self.slow_attn(0, 64, 56, 248, 60); self.slow_attn(1, vS, vF1, vF1 + 8, vF1 + 4)
        self.stamp("attn1")
        e.label("L_post")

    def slow_attn(self, mt, Sx, K, Vv, M):
        x = Em(); I = x.I; O = vO + 16 * mt; va = M + 2
        x.label(f"L_slow{mt}"); x.nop(16)
        I(f"v_and_b32 v{va}, 0x1f0, v{vV}")
        for h in range(2): I(f"ds_read_b128 {V(Vv+4*h,4)}, v{vV}")
        I(f"v_mov_b32 v{M}, 0xff800000"); x.wait_lg0()
        for ps in range(2):
            I(f"s_mov_b32 s{sCnt}, 0")
            x.label(f"L_sa{ps}_{mt}")
            I(f"s_and_b32 s{sT2}, s{sCnt}, 32"); I(f"s_add_u32 s{sT2}, s{sT2}, s{sCnt}"); I(f"s_lshl_b32 s{sT2}, s{sT2}, 10")
            I(self.ld(V(K, 4), vL16, sKV, f"s{sT2}", 0, "sc1"))
            if ps:
                I(f"s_add_u32 s{sT2}, s{sT2}, 0x8000"); I("s_mov_b32 exec_lo, 0xffff"); I("s_mov_b32 exec_hi, 0xffff")
                for h in range(2): I(self.ld(V(Vv + 4 * h, 4), va, sKV, f"s{sT2}", h * 512, "sc1"))
                I("s_mov_b64 exec, -1")
            x.wait_vm0(); x.nop(4)
            I(self.mf(Sx, V(K, 4), V(vQ + 4 * mt, 4), '0'))
            if ps == 0:
                for i in range(8): I(f"v_max3_f32 v{M}, v{Sx+2*i}, v{Sx+2*i+1}, v{M}")
            else:
                for i in range(16): I(f"v_sub_f32 v{Sx+i}, v{Sx+i}, v{M}")
                for i in range(16): I(f"v_exp_f32 v{Sx+i}, v{Sx+i}")
                for h in range(2): I(f"v_smfmac_f32_32x32x32_bf16 {V(O,16)}, {V(Vv+4*h,4)}, {V(Sx+8*h,8)}, v{vIdx}")
                x.nop(16)
            I(f"s_add_u32 s{sCnt}, s{sCnt}, 1"); I(f"s_cmp_lt_u32 s{sCnt}, 64"); I(f"s_cbranch_scc1 L_sa{ps}_{mt}")
            if ps == 0:
                I(f"v_mov_b32 v{M+1}, v{M}"); I(f"v_permlane32_swap_b32 v{M}, v{M+1}"); I(f"v_max_f32 v{M}, v{M}, v{M+1}")
                for i in range(16): I(f"v_mov_b32 v{O+i}, 0")
        if mt == 0:
            for i in range(8): I(f"v_mov_b32 v{RES(0)+8+i}, 0")
        x.nop(4)
        I(f"s_branch L_slowb{mt}")
        self.e.tail += x.lines

    def bar(self, *boxes):
        def f():
            if boxes:
                for b in boxes: self.e.wait(*b)
            else: self.e.wait_lg0()
            self.e.barrier()
        return (f, 10)
    def stp(self, name): return (lambda: self.stamp(name), 0)
    def wt(self, box): return (lambda: self.e.wait(*box), 4)
    def xfin(self, mt, TM, PK, base, box, pk, flag_stats=True):
        o = self.exadd(RES(mt), TM, pk) + self.pack(PK, RES(mt)) + [f"s_add_u32 s{sT2}, s{sP1K}, {hx(base + mt*0x8000)}"]
        o += [self.dcap([self.st(V(PK, 4), vL16, sG, f"s{sT2}")], box)]
        if flag_stats: o += self.rowstats(RES(mt), TM, mt, box, pk)
        return o
    CB = [64, 96]
    def xdma(self, mt, box):
        o = []; CB = self.CB
        for h in range(2):
            for i in range(4):
                o.append(([f"s_add_u32 m0, s{sW8K}, {hx(G_X1 + mt*0x8000 + h*4096)}"] if i == 0 else []) + [self.cap(self.dma(vL16, sG, "m0", i * 1024, "sc1"), box[h])])
        o.append([f"s_add_u32 s{sT3}, s{sStL}, {mt*0x2000}", self.ld(V(CB[mt], 4), vL16, sG, f"s{sT3}", 0, "sc1")])
        o.append([self.ld(V(CB[mt] + 4, 4), vL16, sG, f"s{sT3}", 1024, "sc1")])
        return o
    def wo(self):
        e = self.e; I = e.I; op = self.opt.get
        TM = 208; PR = vT
        def mm(mt): return [self.mf(vACC + 32 * mt + 16 * n, V(vWO + (2 * ks + n) * 4, 4), V(self.OB[mt][ks], 4), '0' if (ks == 0 and n == 1) else None)
                            for ks in range(8) for n in range(2)]
        ob = []; b0 = []; self.b1 = []; self.d0 = [[], []]
        z1 = [f"v_mov_b32 v{RES(1)+8+i}, 0" for i in range(8)]
        self.sched(mm(0), {7: [self.bar()] + z1[:2], 8: z1[2:], op('op1', 14): [self.pub(F_O + 1, ob)]}, self.ofin(1, ob), 1, 4, name='wo0')
        e.seq(self.exw(vACC, 0)); e.seq(self.ffn_setup()); e.seq([self.bar()])
        e.seq(self.exr(TM, 0)); I(self.pissue(F_O + 1, PR))
        e.seq(self.xfin(0, TM, 232, G_X1, b0, True))
        e.seq([self.pcheck(F_O + 1, PR)])
        self.stamp("opoll")
        for o in self.oload(1): e.seq(o)
        B = 236
        for i in range(4):
            I(f"v_lshlrev_b32 v{B}, 16, v{vB2+i}"); I(f"v_and_b32 v{B+1}, 0xffff0000, v{vB2+i}")
            I(f"v_pk_add_f32 {V(RES(0)+2*i,2)}, {V(RES(0)+2*i,2)}, {V(B,2)}")
        for i in range(8): I(f"v_mov_b32 v{RES(0)+8+i}, 0")
        e.seq([self.pub(F_X1, b0)])
        pi, pc = op('xp0', (6, 15))
        xd = self.xdma(0, self.d0)
        ev = {pi - 1: [self.bar()], pi: [self.pissue(F_X1, PR)], pc: [self.pcheck(F_X1, PR)]}
        for g in range(pc, 16): ev.setdefault(g, []).extend(xd.pop(0))
        self.sched(mm(1), ev, name='wo1')
        e.seq(xd.pop(0))
        e.seq(self.exw(vACC + 32, 0x8000))
        for o in xd: e.seq(o)
        e.seq([self.bar()])
        e.seq(self.exr(TM, 0x8000)); e.seq(self.xfin(1, TM, 236, G_X1, self.b1, True))
        self.stamp("wodone")

    def gelu(self, acc, k1, k2, sd, T, P, stores):
        o = []
        for b in range(4):
            a = acc + 4 * b; t = T + 4 * (b & 1)
            o += [f"v_mul_f32 v{t+i}, v{a+i}, v{a+i}" for i in range(4)]
            o += [f"v_fma_f32 v{t+i}, v{t+i}, v{k2}, v{k1}" for i in range(4)]
            o += [f"v_mul_f32 v{t+i}, v{t+i}, v{a+i}" for i in range(4)]
            o += [f"v_exp_f32 v{t+i}, v{t+i}" for i in range(4)]
            o += [f"v_fma_f32 v{t+i}, v{t+i}, v{sd}, v{sd}" for i in range(4)]
            o += [f"v_rcp_f32 v{t+i}, v{t+i}" for i in range(4)]
            o += [f"v_mul_f32 v{a+i}, v{a+i}, v{t+i}" for i in range(4)]
            o += self.pack(P + 2 * b, a, 2)
            if b & 1: o.append(stores(b >> 1, P + 4 * (b >> 1)))
        return o
    def ffn_setup(self):
        XQ = vT + 2; ah = vT + 6; o = []
        for q in range(4): o += [f"s_add_u32 s{sT5}, s{sQ+q}, {hx(L_V)}", f"v_add_u32 v{XQ+q}, s{sT5}, v{vL16}"]
        return o + [f"v_add_u32 v{ah}, {hx(L_ST)}, v{vL16}", f"s_lshl_b32 s{sT5}, s{sw}, 2", f"v_add_u32 v{ah+1}, s{sT5}, v{ah}"]
    def ffn(self):
        e = self.e; I = e.I; op = self.opt.get
        AC = [176, 192]; RG = 208; GT = 240; GP = 248
        XQ = vT + 2; ah = vT + 6; PR = vT
        CB = self.CB
        e.undef('v', 176, 80); e.undef('v', 72, 8); e.undef('v', 96, 16)
        KS = [2 * u + h for u in self.UA + self.UB for h in range(2)]
        def add(ev, g, *items): ev.setdefault(g, []).extend(items)
        def ssum(mt, box):
            t = CB[mt]
            return [f"v_add_f32 v{t+i}, v{t+i}, v{t+4+i}" for i in range(4)] + [f"v_add_f32 v{t}, v{t}, v{t+1}", f"v_add_f32 v{t+2}, v{t+2}, v{t+3}",
                    f"v_add_f32 v{t}, v{t}, v{t+2}", self.cap(f"ds_write_b32 v{ah+1}, v{t} offset:{mt*1024}", box)]
        def srd_(mt): return f"ds_read_b128 {V(CB[mt],4)}, v{ah} offset:{mt*1024}"
        def sfin(mt):
            t = CB[mt]; m = t + 8; r = t + 9; s_ = t + 10; b = t + 12
            return self.stat_fin(t, m, r, s_) + [
                f"v_cvt_pk_bf16_f32 v{b}, -v{m}, -v{m}", f"v_lshlrev_b32 v{t}, 16, v{b}", f"v_add_f32 v{t}, v{t}, v{m}",
                f"v_cvt_pk_bf16_f32 v{b+1}, -v{t}, v{s_}", f"v_and_b32 v{t+1}, 0xffff0000, v{b+1}", f"v_sub_f32 v{t+1}, v{s_}, v{t+1}",
                f"v_cvt_pk_bf16_f32 v{b+3}, -v{t}, v{t+1}", f"v_mov_b32 v{b+2}, v{b}",
                f"v_mul_f32 v{t}, v{r}, v{r}", f"v_mul_f32 v{m}, {hx(f2u(C1))}, v{r}", f"v_mul_f32 v{t}, {hx(f2u(0.044715))}, v{t}",
                f"v_mul_f32 v{r}, v{t}, v{m}"]
        rt = {}
        def rd(k):
            c, i = divmod(k, 32); rt[k] = []
            return (self.cap(f"ds_read_b128 {V(RG+4*(k%8),4)}, v{XQ+i//8} offset:{(c>>1)*0x8000+(i%8)*1024}", rt[k])[0], 5)
        def chain(c):
            n, mt = c & 1, c >> 1
            return [self.mf(AC[n], A((2 * i + n) * 4, 4), V(RG + 4 * (i % 8), 4), '0' if i == 0 else None) for i in range(32)] + \
                   [self.mf(AC[n], V(vAUG + 4 * n, 4), V(CB[mt] + 12, 4))]
        def w2r(f):
            if f < 16: return V(vWO + 4 * f, 4)
            if f < 40: return A(8 * (f - 16), 4)
            return A(8 * (f - 24) + 4, 4)
        blk = {}
        def gld(dst, voff, srd, base, sreg, extra, ks):
            o = []
            if blk.get(sreg) != (extra, ks // 4):
                blk[sreg] = (extra, ks // 4); o.append(f"s_add_u32 s{sreg}, s{base}, {hx(extra + (ks // 4) * 4096)}")
            return o + [self.ld(dst, voff, srd, f"s{sreg}", (ks % 4) * 1024, op('w2fl', 'sc1') if srd == sWS else "sc1")]
        def w2(f): return [] if op('now2') else gld(w2r(f), vL16x, sWS, sW2o + (f & 1), sT0 + (f & 1), 0, KS[f >> 1])
        HQ = [(mt, p) for mt in range(2) for p in range(28)]
        def hr(q): r = q % 24; return A(8 * (24 + r), 4) if r < 8 else A(8 * (r - 8) + 4, 4)
        def hl(q): return gld(hr(q), vL16, sG, sHl, sT4, HQ[q][0] * 0x1c000, KS[HQ[q][1]])
        hb = [[] for _ in range(4)]
        def gel(c):
            n, mt = c & 1, c >> 1
            def f(half, reg):
                def g_():
                    if mt: I(f"s_add_u32 s{sT2}, s{sHs+n}, 0x1c000")
                    hb[c].extend(self.dual([self.st(V(reg, 4), vL16, sG, f"s{sT2 if mt else sHs+n}", half * 1024)]))
                return (g_, 20)
            return self.gelu(AC[n], CB[mt] + 8, CB[mt] + 9, CB[mt] + 10, GT, GP, f)
        def spread(ev, items, g0, g1):
            for k, it in enumerate(items): add(ev, g0 + (k * (g1 - g0 + 1)) // len(items), *it)
        d0 = self.d0; d1 = [[], []]; sb = [[], []]
        for h in range(2):
            e.wait(*d0[h]); e.seq([rd(4 * h + i) for i in range(4)])
        ev = [{} for _ in range(8)]
        LEN = [33, 33, 33, 33, 32, 24, 32, 24]
        def at(c, g):
            while g >= LEN[c]: g -= LEN[c]; c += 1
            return ev[c], g
        def spr(c, items, g0, g1):
            for k, it in enumerate(items): add(*at(c, g0 + (k * (g1 - g0 + 1)) // len(items)), *it)
        B1 = 3
        s0 = ssum(0, sb[0]); add(ev[0], 0, *s0[:4]); add(ev[0], 1, *s0[4:]); add(ev[0], B1, self.bar(sb[0]), srd_(0))
        pb, pi, pc, pl, DW, B2 = op('xp1', (6, 19, 29, 42, 55, 59))
        add(*at(0, pb), self.pub(F_X1 + 1, self.b1)); add(*at(0, pi), self.pissue(F_X1 + 1, PR)); add(*at(0, pc), self.pcheck(F_X1 + 1, PR))
        spr(0, self.xdma(1, d1), pc, pl)
        s1 = ssum(1, sb[1]); add(*at(0, DW), self.wt(d1[1]), *s1[:4]); add(*at(0, DW + 1), *s1[4:]); add(*at(0, B2), self.bar(sb[1]), srd_(1))
        for (c, f0, f1, g0, g1) in op('w2', [(0, 0, 10, 7, 28), (1, 10, 16, 12, 31), (2, 16, 36, 0, 32), (3, 36, 40, 0, 5)]): spr(c, [w2(f) for f in range(f0, f1)], g0, g1)
        HP = op('hp', [(5, 24, 36, 64), (5, 24, 35, 58), (5, 20, 30, 54), (3, 20, 30, 50)])
        Q0 = [0, 16, 28, 44, 56]
        for c in range(4):
            pb, pi, pc, pl = HP[c]
            add(*at(c + 2, pb), self.pub(F_H + c, hb[c])); add(*at(c + 2, pi), self.pissue(F_H + c, PR)); add(*at(c + 2, pc), self.pcheck(F_H + c, PR))
            spr(c + 2, [hl(q) for q in range(Q0[c], Q0[c + 1])], pc, pl)
        def wq(f): return gld(A(8 * f, 4), vL16, sWS, sWQo, sT0, 0, f)
        for (c, f0, f1, g0, g1) in op('wq', [(6, 0, 16, 28, 55)]): spr(c, [wq(f) for f in range(f0, f1)], g0, g1)
        add(ev[4], 0, f"s_lshl_b32 s{sT5}, s{sW8K}, 1", f"v_add_u32 v{XQ}, s{sT5}, v{vL16}")
        spr(4, [[f"ds_read_b128 {w2r(f)}, v{XQ} offset:{((f-40)>>2)*4096 + (f&1)*2048 + ((f>>1)&1)*1024}"] for f in range(40, 56)], *op('w2l', (25, 36)))
        GE = op('ge', (27, 27, 27, 24))
        pos = lambda k: k + k // 32
        cnt = {}; gap = {}
        assert B2 >= pos(56)
        for k in range(8, 128):
            g = max(pos(k - 7), B1 if k < 64 else DW if k < 72 else B2)
            while cnt.get(g, 0) >= 2: g += 1
            cnt[g] = cnt.get(g, 0) + 1; gap[k] = g
            add(ev[g // 33], g % 33, rd(k))
        for k in range(8, 128, 4):
            g = pos(k) - 1
            if gap[k + 3] <= g - 2: add(ev[g // 33], g % 33, self.wt(rt[k + 3]))
        fill = sfin(0) + [f"v_mov_b32 v{RES(1)+8+i}, 0" for i in range(8)]
        for i in range(8): fill += [f"v_and_b32 v{GT}, 0xffff0000, v{vB2+i//2}" if i & 1 else f"v_lshlrev_b32 v{GT}, 16, v{vB2+i//2}", f"v_add_f32 v{RES(1)+i}, v{RES(1)+i}, v{GT}"]
        self.sched(chain(0), ev[0], fill, B1 + 3, 27, name="c0")
        sf = sfin(1); spr(0, [[x] for x in sf], B2 + 2, B2 + 7)
        self.sched(chain(1), ev[1], gel(0), 1, GE[0], name="c1")
        self.sched(chain(2), ev[2], gel(1), 1, GE[1], name="c2")
        self.sched(chain(3), ev[3], gel(2), 1, GE[2], name="c3")
        def part(c):
            return [self.mf(vACC + 32 * HQ[q][0] + 16 * n, w2r(2 * HQ[q][1] + n), hr(q), '0' if (HQ[q][1] == 0 and n == 1) else None) for q in range(Q0[c], Q0[c + 1]) for n in range(2)]
        self.sched(part(0), ev[4], gel(3), 1, GE[3], name="A0")
        self.sched(part(1), ev[5], name="B0")
        if self.opt.get('wb'):
            I(f"s_lshr_b32 s{sT5}, s2, 3"); I(f"s_or_b32 s{sT5}, s{sT5}, s{sw}"); I(f"s_xor_b32 s{sT6}, s{sLayer}, 1"); I(f"s_or_b32 s{sT5}, s{sT5}, s{sT6}"); I("s_cbranch_scc1 L_nowb")
            e.begin_opt(); I("!buffer_wbl2 sc1"); e.end_opt(); e.label("L_nowb")
        TM = 176; PK = 248
        w = self.exw(vACC, 0); r = self.exr(TM, 0)
        for g, it in {1: w[:2], 2: w[2:4], 3: w[4:], 8: [self.bar()] + r[:3], 9: r[3:]}.items(): add(ev[6], g, *it)
        self.sched(part(2), ev[6], self.exadd(RES(0), TM, pk=False) + self.pack(PK, RES(0)), 12, 22, name='A1')
        self.sched(part(3), ev[7], name='B1')
        e.seq(self.exw(vACC + 32, 0x8000))
        e.wait_lg0(); e.barrier()
        e.seq(self.exr(TM, 0x8000))
        I(f"s_add_u32 s{sT0}, s{sP1K}, {hx(G_X2)}"); I(f"s_add_u32 s{sT1}, s{sP1K}, {hx(G_X2 + 0x8000)}")
        e.seq(self.exadd(RES(1), TM)); e.seq(self.pack(PK + 4, RES(1)))
        self.stamp("f2done")
        I(f"s_cmp_lg_u32 s{sLayer}, 0"); I("s_cbranch_scc1 L_final")
        self.dual([self.st(V(PK + 4 * mt, 4), vL16, sG, f"s{sT0+mt}") for mt in range(2)])
        self.publish(F_X2)
        return PK
    def final(self, PK):
        e = self.e; I = e.I
        e.label("L_final")
        self.srd(sTA, pOUT, 0x200000)
        e.seq(self.rowaddr(vT + 5, vT + 6))
        I(f"s_add_u32 s{sT6}, s{sRow}, 0x8000")
        ofl = self.opt.get('ofl', '')
        I(self.st(V(PK, 4), vT + 5, sTA, f"s{sRow}", fl=ofl)); I(self.st(V(PK + 4, 4), vT + 5, sTA, f"s{sT6}", fl=ofl))
        if self.stamps: self.rt(63); self.dump_stamps(256)
        if not self.opt.get('nofw'): e.wait_vm0()
        dg = self.opt.get('diag')
        if dg:
            if dg[4]: I("s_lshr_b32 s1, s1, 4")
            I(f"s_mul_i32 s1, s1, {dg[3]}"); I("s_min_u32 s1, s1, 50000")
            I(f"s_memrealtime s[{sM}:{sM+1}]"); e.wait_lg0(force=True); I(f"s_mov_b32 s0, s{sM}")
            e.label("L_dgs")
            I(f"s_memrealtime s[{sM}:{sM+1}]"); e.wait_lg0(force=True); I(f"s_sub_u32 s3, s{sM}, s0"); I("s_cmp_lt_u32 s3, s1"); I("s_cbranch_scc1 L_dgs")
        e.label("L_end")
        I("s_endpgm")
    def dump_stamps(self, off):
        I = self.I
        I(f"s_lshl_b32 s{sT5}, s2, 2"); I(f"s_add_u32 s{sT5}, s{sT5}, s{sw}"); I(f"s_lshl_b32 s{sT5}, s{sT5}, 9"); I(f"s_add_u32 s{sT5}, s{sT5}, {hx(STAMP)}")
        I(f"v_lshlrev_b32 v{vT+2}, 2, v{vLane}")
        I(self.st("v47", vT + 2, sWS, f"s{sT5}", off, w=1))

    def build(self):
        e = self.e
        self.prologue()
        self.qkv(True)
        e.label("L_loop")
        self.attention(); self.wo(); PK = self.ffn()
        if self.stamps: self.dump_stamps(0)
        self.qkv(False)
        e.nop(4)
        e.I("s_branch L_loop")
        self.final(PK)
        ref = open(f"cdna_kernels/{NAME}.s.ref").read()
        head = ref[:ref.index("; @launch")]
        out = head + f"; @launch grid=(256,1,1) block=(256,1,1) lds={LDS_BYTES}\n"
        out += f""".amdgcn_target "amdgcn-amd-amdhsa--gfx950"
.text
.globl {NAME}_kernel
.p2align 8
.type {NAME}_kernel,@function
{NAME}_kernel:
"""
        body = e.text()
        out += body + "L_codeend:\n    s_endpgm\n"
        out += f""".section .rodata,"a"
.p2align 6
.amdhsa_kernel {NAME}_kernel
  .amdhsa_next_free_vgpr 512
  .amdhsa_next_free_sgpr 102
  .amdhsa_accum_offset 256
  .amdhsa_group_segment_fixed_size 0
  .amdhsa_kernarg_size 104
  .amdhsa_user_sgpr_count 2
  .amdhsa_user_sgpr_kernarg_segment_ptr 1
  .amdhsa_system_sgpr_workgroup_id_x 1
.end_amdhsa_kernel
"""
        out = out.replace("CODE_SPAN", "(L_end-L_nopf-2048)")
        return out

if __name__ == "__main__":
    import argparse
    ap = argparse.ArgumentParser()
    ap.add_argument("-o", default=f"cdna_kernels/{NAME}.s")
    ap.add_argument("--stamps", action="store_true"); ap.add_argument("--fsa", action="store_true"); ap.add_argument("--fsm", action="store_true")
    ap.add_argument("--nopf", action="store_true"); ap.add_argument("--nops", action="store_true")
    ap.add_argument("--opt", default="{}")
    a = ap.parse_args()
    g = Gen(stamps=a.stamps, force_slow_attn=a.fsa, force_slow_mode=a.fsm, codepf=not a.nopf, opt=eval(a.opt))
    txt = g.build()
    if a.stamps: txt = txt.replace("; @launch", "; stamps: " + ",".join(g.stnames) + "\n; @launch", 1)
    open(a.o, "w").write(txt)
    print("written", a.o, len(txt), "bytes; nops", g.e.nops)
    if a.nops:
        for n, t in g.e.nop_log: print(n, t)
```

```python
import sys, os, math, struct, copy
sys.path.insert(0, os.path.dirname(os.path.abspath(__file__)))
from em import *

NAME = "interleave_layers__grouped_kv_mqa__dense_activation_gelu__prompt"
def f2u(x): return struct.unpack('<I', struct.pack('<f', x))[0]
def hx(x): return hex(x & 0xffffffff)

GF = 0x10000; KVB = 0x40000; W1S = 0x100000; W2S = 0x300000; WOS = 0x500000; WQS = 0x580000; STAMP = 0x600000; GRP = 0x800000
WSLIM = 0x800000
G_FL = 0; G_ST = 0x2000; G_X1 = 0x10000; G_X2 = 0x10000; G_O = 0x3c000; G_H = 0x20000; G_SZ = 0x58000; G_STR = 0x60000
BIG = 0x10000000
L_V = 0x10000; L_X = 0x10000; L_KVR = 0x20000; L_ST = 0x20000; L_CSR = 0x20800; L_CST = 0x20c00; L_ONES = 0x21000; L_WKV = 0x24000
LDS_BYTES = 0x28000
sWS, sG, sKV, sWQ, sTA, sTB = 4, 8, 12, 16, 20, 24
pX, pWQ, pWK, pWV, pWO, pW1, pB1, pW2, pB2, pOUT, pDBG, pWS = 28, 30, 32, 34, 36, 40, 42, 44, 46, 48, 50, 52
sg, sj, sw, sLayer, sMode, sMyF = 54, 55, 56, 57, 58, 59
sN = 60
sT0, sT1, sT2, sT3, sT4, sT5, sT6, sT7 = 62, 63, 64, 65, 66, 67, 68, 69
sCnt = 70; sOnes = 71
sM = 72
sP1K = 74
sW8K = 75
sW1K = 76
sFlSt = 77
sFlPo = 78
sKVFs = 79
sKVFp = 80
sQ = 81
sW1o = 85
sWOo = 87
sW2o = 89
sHs = 91
sHl = 93
sRow = 94
sKVst = 95
sWQo = 96
sWQl = 98
sSwD = 99
sAug = 100
sSwF = 101
sStS = 32; sStL = 33
F_O, F_X1, F_H, F_X2 = 0, 2, 4, 8
vL16, vL16x, vPoll, vN, vEW, vER, vIdx, vV = 1, 2, 3, 4, 6, 7, 10, 11
vFl, vP8 = 45, 46
vCSKV, vCSQ, vB2, vAUG = 12, 16, 24, 28
vT = 36
vACC = 48
def RES(mt): return vACC + 32 * mt
vF0 = 56; vF1 = 88
vWO = 112
vS = 176; vO = 208; vQ = 240
vLane = 0
vInc = vT + 2; vK2 = vT + 3; vJ = vT + 8; vMA = 65; vSA = 66; vMD = 67; vSD = 68
vSTAMP = 111 ; vSTAMP0 = 110
POLL_LIM = 1 << 17
RTL = {'attn0': 59, 'attn1': 60, 'f2done': 61}

C1 = -2.0 * math.sqrt(2.0 / math.pi) * math.log2(math.e)
C2 = 0.044715 * C1
QS = 0.25 * math.log2(math.e)


class Gen:
    def __init__(self, stamps=False, force_slow_attn=False, force_slow_mode=False, codepf=True, opt=None):
        self.opt = opt or {}
        self.e = Em(); self.stamps = stamps; self.fsa = force_slow_attn; self.fsm = force_slow_mode
        self.codepf = codepf
        self.nst = 0; self.stnames = []
    def I(self, t): return self.e.I(t)
    def srd(self, d, p, n):
        I = self.I
        I(f"s_mov_b32 s{d}, s{p}"); I(f"s_mov_b32 s{d+1}, s{p+1}")
        I(f"s_mov_b32 s{d+2}, {hx(n)}"); I(f"s_mov_b32 s{d+3}, 0x20000")
    def stamp(self, name):
        e = self.e
        dg = self.opt.get('diag')
        if dg and name in dg[:2]:
            lab = e.newlab("L_dg")
            if name != 'start': e.I(f"s_cmp_lg_u32 s{sLayer}, {dg[2][dg.index(name)]}"); e.I(f"s_cbranch_scc1 {lab}")
            e.wait_lg0()
            e.I(f"{'s_memtime' if dg[4] else 's_memrealtime'} s[{sM}:{sM+1}]"); e.wait_lg0(force=True)
            e.I(f"s_mov_b32 s0, s{sM}" if name == dg[0] else f"s_sub_u32 s1, s{sM}, s0")
            e.label(lab)
        if not self.stamps: return
        e.I(f"s_memtime s[{sM}:{sM+1}]"); e.wait_lg0(force=True)
        e.I(f"v_writelane_b32 v47, s{sM}, {self.nst}")
        self.stnames.append(name); self.nst += 1
        if name in RTL: self.rt(RTL[name])
    def rt(self, lane):
        if not self.stamps: return
        e = self.e
        e.I(f"s_memrealtime s[{sM}:{sM+1}]"); e.wait_lg0(force=True)
        e.I(f"v_writelane_b32 v47, s{sM}, {lane}")
    def ld(self, dst, voff, srd, soff, imm=0, fl="", w=4):
        mn = {4: "dwordx4", 2: "dwordx2", 1: "dword"}[w]
        return f"buffer_load_{mn} {dst}, v{voff}, s[{srd}:{srd+3}], {soff} offen" + (f" offset:{imm}" if imm else "") + (" " + fl if fl else "")
    def dma(self, voff, srd, soff, imm=0, fl=""):
        return f"buffer_load_dwordx4 v{voff}, s[{srd}:{srd+3}], {soff} offen" + (f" offset:{imm}" if imm else "") + (" " + fl if fl else "") + " lds"
    def st(self, src, voff, srd, soff, imm=0, fl="", w=4):
        mn = {4: "dwordx4", 2: "dwordx2", 1: "dword"}[w]
        return f"buffer_store_{mn} {src}, v{voff}, s[{srd}:{srd+3}], {soff} offen" + (f" offset:{imm}" if imm else "") + (" " + fl if fl else "")
    def dual(self, stores):
        e = self.e
        lab = e.newlab("L_sl"); back = e.newlab("L_bk")
        regs = []
        for s in stores: regs += regs_of(s)
        e._autowait(regs)
        e.I(f"s_cmp_lg_u32 s{sMode}, 0"); e.I(f"s_cbranch_scc1 {lab}")
        toks = [e.I(s) for s in stores]
        e.label(back)
        e.tail += [lab + ":", "    s_nop 7", "    s_nop 7"]
        e.tail += ["    " + (s + " sc1" if s.startswith("buffer_") else s) for s in stores]
        e.tail += [f"    s_branch {back}"]
        return toks
    def publish(self, slot):
        e = self.e
        e.wait_vm0()
        e.I("s_mov_b64 exec, 1")
        self.dual([self.st(V(vN, 2), vPoll, sG, f"s{sFlSt}", slot * 8, w=2)])
        e.I("s_mov_b64 exec, -1")
    def poll(self, srd, soff, imm, nl, kv=False):
        e = self.e
        lab = e.newlab("L_poll")
        if nl < 64: e.I(f"s_mov_b64 exec, {hex((1 << nl) - 1)}")
        e.I(f"s_mov_b32 s{sCnt}, 0")
        e.label(lab)
        e.I(self.ld(V(vT, 2), vPoll, srd, soff, imm, "sc1", w=2))
        e.I(f"s_add_u32 s{sCnt}, s{sCnt}, 1"); e.I(f"s_cmp_gt_u32 s{sCnt}, {POLL_LIM}"); e.I("s_cbranch_scc1 L_end")
        e.wait_vm0()
        if kv: e.I(f"v_and_b32 v{vT}, -16, v{vT}")
        e.I(f"v_cmp_ne_u64 vcc, s[{sN}:{sN+1}], {V(vT, 2)}")
        e.I(f"s_cbranch_vccnz {lab}")
        if nl < 64: e.I("s_mov_b64 exec, -1")
    def gpoll(self, slot): self.poll(sG, f"s{sFlPo}", slot * 8, 8)
    def pub(self, slot, toks):
        def f():
            self.e.wait(*toks)
            self.dual([self.st(V(vN, 2), vFl, sG, f"s{sFlSt}", slot * 8, w=2)])
        return (f, 24)
    def pissue(self, slot, r): return self.ld(V(r, 2), vP8, sG, f"s{sFlPo}", slot * 8, "sc1", w=2)
    def pcheck(self, slot, r):
        def f():
            e = self.e; lab = e.newlab("L_sp"); back = e.newlab("L_sb")
            e.I(f"v_cmp_ne_u64 vcc, s[{sN}:{sN+1}], {V(r, 2)}"); e.I(f"s_cbranch_vccnz {lab}"); e.label(back)
            e.tail += [lab + ":", f"    s_mov_b32 s{sCnt}, 0", lab + "a:", "    " + self.pissue(slot, r),
                       f"    s_add_u32 s{sCnt}, s{sCnt}, 1", f"    s_cmp_gt_u32 s{sCnt}, {POLL_LIM}", "    s_cbranch_scc1 L_end",
                       "    s_waitcnt vmcnt(0)", f"    v_cmp_ne_u64 vcc, s[{sN}:{sN+1}], {V(r, 2)}", f"    s_cbranch_vccnz {lab}a", f"    s_branch {back}"]
        return (f, 16)
    def cap(self, text, box):
        def f(): box.append(self.e.I(text))
        return (f, 10)
    def dcap(self, stores, box):
        def f(): box.extend(self.dual(stores))
        return (f, 8 + 10 * len(stores))
    def sched(self, mfmas, ev, fill=(), f0=0, f1=None, name=None):
        for g in self.opt.get('fst', {}).get(name, ()): ev.setdefault(g, []).append(self.stp(f"{name}.{g}"))
        self._sched(mfmas, ev, fill, f0, f1)
        if name and name not in self.opt.get('nost', ()): self.stamp(name)
    def _sched(self, mfmas, ev, fill, f0, f1):
        e = self.e; n = len(mfmas); fill = list(fill); f1 = n - 1 if f1 is None else f1
        evc = [sum(cost(x) for x in ev.get(i, [])) for i in range(n)]
        tot = sum(cost(x) for x in fill) + sum(evc[f0:f1 + 1]); done = 0
        e.seq(ev.get(-1, []))
        for i in range(n):
            e.I(mfmas[i]); e.seq(ev.get(i, []))
            if f0 <= i <= f1:
                done += evc[i]
                while fill and (done + cost(fill[0]) / 2 <= tot * (i - f0 + 1) / (f1 - f0 + 1) or i == f1):
                    done += cost(fill[0]); e.seq([fill.pop(0)])
    def rowstats(self, x, t, mt, box, pk=True):
        if pk:
            o = [f"v_pk_mul_f32 {V(t+2,2)}, {V(x,2)}, {V(x,2)}", f"v_pk_add_f32 {V(t,2)}, {V(x,2)}, {V(x+2,2)}"]
            for i in (2, 4, 6):
                o.append(f"v_pk_fma_f32 {V(t+2,2)}, {V(x+i,2)}, {V(x+i,2)}, {V(t+2,2)}")
                if i > 2: o.append(f"v_pk_add_f32 {V(t,2)}, {V(t,2)}, {V(x+i,2)}")
            o += [f"v_add_f32 v{t}, v{t}, v{t+1}", f"v_add_f32 v{t+2}, v{t+2}, v{t+3}"]
        else:
            o = [f"v_mul_f32 v{t+2}, v{x}, v{x}", f"v_add_f32 v{t}, v{x}, v{x+1}", f"v_fmac_f32 v{t+2}, v{x+1}, v{x+1}"]
            for i in range(2, 8): o += [f"v_add_f32 v{t}, v{t}, v{x+i}", f"v_fmac_f32 v{t+2}, v{x+i}, v{x+i}"]
        o.append(f"s_add_u32 s{sT2}, s{sStS}, {mt*0x2000}")
        o += [f"v_permlane32_swap_b32 v{t}, v{t+2}", f"v_add_f32 v{t}, v{t}, v{t+2}",
              self.dcap([self.st(V(t), vL16, sG, f"s{sT2}", w=1)], box)]
        return o
    def mf(self, d, a, b, c=None):
        return f"v_mfma_f32_32x32x16_bf16 {V(d,16)}, {a}, {b}, {V(d,16) if c is None else c}"
    def mf16(self, d, a, b, first):
        return f"v_mfma_f32_16x16x32_bf16 {V(d,4)}, {a}, {b}, {'0' if first else V(d,4)}"
    def exw(self, acc, area, ew=vEW):
        return [f"ds_write_b128 v{ew}, {V(acc+8*q+4*h,4)} offset:{area+(q-1)*2048+h*1024}" for q in (1, 2, 3) for h in (0, 1)]
    def exr(self, tmp, area, er=vER):
        return [f"ds_read_b128 {V(tmp+8*(q-1)+4*h,4)}, v{er+q-1} offset:{area+h*1024}" for q in (1, 2, 3) for h in (0, 1)]
    def exadd(self, dst, tmp, pk=True):
        if pk: return [f"v_pk_add_f32 {V(dst+i,2)}, {V(dst+i,2)}, {V(tmp+8*q+i,2)}" for q in range(3) for i in (0, 2, 4, 6)]
        return [f"v_add_f32 v{dst+i}, v{dst+i}, v{tmp+8*q+i}" for q in range(3) for i in range(8)]
    def pack(self, dst, src, n=4):
        return [f"v_cvt_pk_bf16_f32 v{dst+i}, v{src+2*i}, v{src+2*i+1}" for i in range(n)]
    def dots(self, s, q, x, n):
        out = []
        for i in range(n):
            out.append((f"v_dot2c_f32_bf16 v{s}, s{sOnes}, v{x+i}", 8))
            out.append((f"v_dot2c_f32_bf16 v{q}, v{x+i}, v{x+i}", 8))
        return out
    def stat_write(self, s, q, addr, mt):
        return [f"v_permlane32_swap_b32 v{s}, v{q}", f"v_add_f32 v{s}, v{s}, v{q}", f"ds_write_b32 v{addr}, v{s} offset:{mt*1024}"]
    def stat_fin(self, t, m, r, sd=None):
        o = [f"v_add_f32 v{t}, v{t}, v{t+1}", f"v_add_f32 v{t+2}, v{t+2}, v{t+3}", f"v_add_f32 v{t}, v{t}, v{t+2}",
             f"v_mul_f32 v{m}, {hx(f2u(1/512))}, v{t}", f"v_mul_f32 v{t}, {hx(f2u(1/512))}, v{t}",
             f"v_permlane32_swap_b32 v{m}, v{t}",
             f"v_fma_f32 v{t}, -v{m}, v{m}, v{t}", f"v_max_f32 v{t}, 0, v{t}", f"v_add_f32 v{t}, {hx(f2u(1e-5))}, v{t}",
             f"v_rsq_f32 v{r}, v{t}"]
        if sd is not None: o.append(f"v_mul_f32 v{sd}, v{t}, v{r}")
        return o

    def prologue(self):
        e = self.e; I = e.I
        if self.opt.get('diag', [0])[0] == 'first': I("s_memrealtime s[74:75]")
        I("s_cmp_ge_u32 s2, 256"); I("s_cbranch_scc1 L_end")
        I("s_load_dwordx16 s[28:43], s[0:1], 0"); I("s_load_dwordx8 s[44:51], s[0:1], 64"); I("s_load_dwordx2 s[52:53], s[0:1], 96")
        if self.stamps: I("v_mov_b32 v47, 0")
        I(f"v_lshrrev_b32 v{vT}, 6, v0"); I(f"v_and_b32 v{vLane}, 63, v0")
        I(f"v_readfirstlane_b32 s{sw}, v{vT}")
        I(f"s_and_b32 s{sg}, s2, 7"); I(f"s_lshl_b32 s{sg}, s{sg}, 2"); I(f"s_lshr_b32 s{sT0}, s2, 6"); I(f"s_add_u32 s{sg}, s{sg}, s{sT0}")
        I(f"s_lshr_b32 s{sj}, s2, 3"); I(f"s_and_b32 s{sj}, s{sj}, 7")
        I(f"s_and_b32 s{sw}, s{sw}, 3")
        I(f"v_lshlrev_b32 v{vL16}, 4, v{vLane}")
        I(f"v_lshrrev_b32 v{vT+4}, 4, v{vLane}"); I(f"v_and_b32 v{vT+5}, 15, v{vLane}")
        for qq in range(4):
            I(f"v_add_u32 v{vT+6}, {4*qq}, v{vT+4}")
            I(f"v_xor_b32 v{vT+7}, v{vT+6}, v{vT+5}")
            I(f"v_add_u32 v{vT+6}, {3*qq}, v{vT+4}")
            I(f"v_lshlrev_b32 v{vT+6}, 10, v{vT+6}")
            I(f"v_lshl_add_u32 v{vT+qq}, v{vT+7}, 4, v{vT+6}")
        if self.opt.get('diag', [0])[0] == 'first': e.wait_lg0(force=True); I("s_mov_b32 s0, s74")
        I(f"s_lshl_b32 s{sW1K}, s{sw}, 10"); I(f"s_lshl_b32 s{sW8K}, s{sw}, 13")
        I(f"s_lshl_b32 s{sT1}, s{sw}, 12")
        I(f"s_add_u32 m0, s{sT1}, {hx(L_WKV)}")
        I(f"s_lshl_b32 s{sT2}, s{sg}, 16"); I(f"s_lshl_b32 s{sT3}, s{sw}, 8"); I(f"s_add_u32 s{sT2}, s{sT2}, s{sT3}")
        I(f"s_lshl_b32 s{sT3}, s{sw}, 14")
        I(f"s_lshr_b32 s{sT4}, s{sj}, 1")
        e.wait_lg0(force=True)
        self.stamp("start"); self.rt(62)
        I(f"s_load_dwordx2 s[{sN}:{sN+1}], s[{pWS}:{pWS+1}], 0")
        I(f"s_bitcmp1_b32 s{sj}, 0"); I(f"s_cselect_b64 s[{sTB}:{sTB+1}], s[{pWV}:{pWV+1}], s[{pWK}:{pWK+1}]")
        I(f"s_mov_b32 s{sTB+2}, 16384"); I(f"s_mov_b32 s{sTB+3}, 0x20000")
        self.srd(sTA, pX, 0x200000)
        self.tk_wkv = [I(self.dma(vL16, sTB, f"s{sT1}", q * 1024)) for q in range(4)]
        self.tk_x = self.x_dma(0)
        if self.opt.get('pst'): self.stamp('p_x')
        self.srd(sWQ, pWQ, 0x80000)
        I(f"s_add_u32 s{sWQl}, s{sT3}, {hx(L_V)}")
        I(f"s_lshl_b32 s{sT5}, s{sw}, 17"); I(f"s_lshl_b32 s{sT6}, s{sj}, 7"); I(f"s_add_u32 s{sT5}, s{sT5}, s{sT6}")
        I(f"s_lshr_b32 s{sT6}, s{sw}, 1"); I(f"s_lshl_b32 s{sT6}, s{sT6}, 6")
        I(f"s_add_u32 s{sWQo}, s{sT5}, s{sT6}"); I(f"s_xor_b32 s{sT6}, s{sT6}, 64"); I(f"s_add_u32 s{sWQo+1}, s{sT5}, s{sT6}")
        if not self.opt.get('nowqp'):
            I(f"v_lshlrev_b32 v{vT+4}, 10, v{vLane}"); I(f"s_add_u32 s{sT6}, s{sT5}, 0x10000")
            for r in (sT5, sT6): I("!" + self.ld(V(vAUG + 2), vT + 4, sWQ, f"s{r}", 0, w=1))
        I(f"s_lshl_b32 s{sP1K}, s{sj}, 2"); I(f"s_add_u32 s{sP1K}, s{sP1K}, s{sw}")
        I(f"s_lshl_b32 s{sT5}, s{sP1K}, 5")
        I(f"s_lshl_b32 s{sRow}, s{sg}, 16"); I(f"s_add_u32 s{sRow}, s{sRow}, s{sT5}")
        if self.codepf:
            I(f"s_getpc_b64 s[{sT6}:{sT7}]")
            I(f"s_lshl_b32 s{sT5}, s{sP1K}, 11")
            I(f"s_add_u32 s{sT6}, s{sT6}, s{sT5}"); I(f"s_addc_u32 s{sT7}, s{sT7}, 0")
            I(f"v_and_b32 v{vT+8}, 15, v{vLane}"); I(f"v_lshlrev_b32 v{vT+8}, 7, v{vT+8}")
            I(f"v_mov_b32 v{vT+9}, s{sT7}"); I(f"v_add_co_u32 v{vT+8}, vcc, s{sT6}, v{vT+8}"); I(f"v_addc_co_u32 v{vT+9}, vcc, 0, v{vT+9}, vcc")
            I(f"s_cmp_ge_u32 s{sT5}, CODE_SPAN"); I("s_cbranch_scc1 L_nopf")
            e.begin_opt(); I(f"global_load_dword v{vAUG+1}, v[{vT+8}:{vT+9}], off"); e.end_opt()
            e.label("L_nopf")
        I(f"s_lshl_b32 s{sFlSt}, s{sP1K}, 7"); I(f"s_add_u32 s{sFlSt}, s{sFlSt}, {hx(G_FL)}")
        I(f"s_add_u32 s{sFlPo}, s{sW1K}, {hx(G_FL)}")
        I(f"s_lshl_b32 s{sP1K}, s{sP1K}, 10")
        self.srd(sWS, pWS, WSLIM)
        I(f"s_mul_i32 s{sT5}, s{sg}, {hx(G_STR)}"); I(f"s_add_u32 s{sT5}, s{sT5}, {hx(GRP)}")
        I(f"s_add_u32 s{sG}, s{pWS}, s{sT5}"); I(f"s_addc_u32 s{sG+1}, s{pWS+1}, 0"); I(f"s_mov_b32 s{sG+2}, {hx(G_SZ)}"); I(f"s_mov_b32 s{sG+3}, 0x20000")
        I(f"s_add_u32 s{sKV}, s{pWS}, {hx(KVB)}"); I(f"s_addc_u32 s{sKV+1}, s{pWS+1}, 0"); I(f"s_mov_b32 s{sKV+2}, 0x20000"); I(f"s_mov_b32 s{sKV+3}, 0x20000")
        I(f"s_mov_b32 s{sLayer}, 0"); I(f"s_mov_b32 s{sMode}, 1"); I(f"s_mov_b32 s{sOnes}, 0x3f803f80")
        I(f"s_lshr_b32 s{sT5}, s{sg}, 3"); I(f"s_and_b32 s{sT6}, s{sg}, 7")
        I(f"s_lshl_b32 s{sKVFs}, s{sT5}, 6"); I(f"s_lshl_b32 s{sT7}, s{sT6}, 2"); I(f"s_add_u32 s{sKVFs}, s{sKVFs}, s{sT7}")
        I(f"s_add_u32 s{sKVst}, s{sT7}, s{sT5}")
        I(f"s_lshr_b32 s{sT7}, s{sj}, 2"); I(f"s_lshl_b32 s{sT7}, s{sT7}, 5")
        I(f"s_add_u32 s{sKVFs}, s{sKVFs}, s{sT7}"); I(f"s_lshl1_add_u32 s{sKVst}, s{sT7}, s{sKVst}")
        I(f"s_and_b32 s{sT7}, s{sj}, 3"); I(f"s_add_u32 s{sKVFs}, s{sKVFs}, s{sT7}")
        I(f"s_lshl_b32 s{sKVFs}, s{sKVFs}, 7"); I(f"s_add_u32 s{sKVFs}, s{sKVFs}, {hx(GF)}")
        I(f"s_add_u32 s{sKVFp}, s{sW8K}, {hx(GF)}")
        I(f"s_lshl_b32 s{sKVst}, s{sKVst}, 10")
        I(f"s_and_b32 s{sT5}, s{sT4}, 1"); I(f"s_lshl_b32 s{sT5}, s{sT5}, 8"); I(f"s_and_b32 s{sT6}, s{sj}, 1")
        I(f"s_lshl_b32 s{sT5}, s{sT5}, s{sT6}"); I(f"s_lshl_b32 s{sT6}, s{sT6}, 15")
        I(f"s_add_u32 s{sKVst}, s{sKVst}, s{sT5}"); I(f"s_add_u32 s{sKVst}, s{sKVst}, s{sT6}")
        for q in range(4): I(f"s_xor_b32 s{sQ+q}, s{sW8K}, {q*8192}")
        I(f"s_mul_i32 s{sT5}, s{sj}, 7"); I(f"s_lshl_b32 s{sT6}, s{sw}, 1"); I(f"s_add_u32 s{sT5}, s{sT5}, s{sT6}")
        I(f"s_mul_i32 s{sW1o}, s{sT5}, {33*1024}"); I(f"s_add_u32 s{sW1o}, s{sW1o}, {hx(W1S)}")
        I(f"s_lshl_b32 s{sHs}, s{sT5}, 11"); I(f"s_add_u32 s{sHs}, s{sHs}, {hx(G_H)}")
        I(f"s_cmp_eq_u32 s{sw}, 3"); I(f"s_cselect_b32 s{sT6}, {hx(BIG)}, 0")
        I(f"s_add_u32 s{sW1o+1}, s{sW1o}, {33*1024}"); I(f"s_add_u32 s{sW1o+1}, s{sW1o+1}, s{sT6}")
        I(f"s_add_u32 s{sHs+1}, s{sHs}, 2048"); I(f"s_add_u32 s{sHs+1}, s{sHs+1}, s{sT6}")
        I(f"s_mul_i32 s{sHl}, s{sw}, {28*1024}")
        I(f"s_lshr_b32 s{sT6}, s{sw}, 1"); I(f"s_lshl_b32 s{sT5}, s{sj}, 1"); I(f"s_add_u32 s{sT5}, s{sT5}, s{sT6}")
        for n in range(2):
            if n: I(f"s_xor_b32 s{sT5}, s{sT5}, 1")
            I(f"s_lshl_b32 s{sWOo+n}, s{sT5}, 15"); I(f"s_add_u32 s{sWOo+n}, s{sWOo+n}, s{sW8K}"); I(f"s_add_u32 s{sWOo+n}, s{sWOo+n}, {hx(WOS)}")
            I(f"s_mul_i32 s{sW2o+n}, s{sT5}, {112*1024}"); I(f"s_add_u32 s{sW2o+n}, s{sW2o+n}, s{sHl}"); I(f"s_add_u32 s{sW2o+n}, s{sW2o+n}, {hx(W2S)}")
        I(f"s_add_u32 s{sHl}, s{sHl}, {hx(G_H)}")
        I(f"s_and_b32 s{sT5}, s{sw}, 1"); I(f"s_lshl_b32 s{sT5}, s{sT5}, 8"); I(f"v_xor_b32 v{vL16x}, s{sT5}, v{vL16}")
        I(f"v_lshlrev_b32 v{vPoll}, 7, v{vLane}")
        I(f"v_add_u32 v{vEW}, s{sWQl}, v{vL16}")
        for q in (1, 2, 3):
            I(f"v_xor_b32 v{vER+q-1}, {hx(q*0x4000)}, v{vEW}")
            if q > 1: I(f"v_add_u32 v{vER+q-1}, {(q-1)*2048}, v{vER+q-1}")
        I(f"v_mov_b32 v{vIdx}, 0xdddddddd")
        I(f"s_lshl_b32 s{sStS}, s{sj}, 8"); I(f"s_add_u32 s{sStS}, s{sStS}, s{sw}"); I(f"s_lshl_b32 s{sStS}, s{sStS}, 2"); I(f"s_add_u32 s{sStS}, s{sStS}, {hx(G_ST)}")
        I(f"s_lshl_b32 s{sStL}, s{sw}, 11"); I(f"s_add_u32 s{sStL}, s{sStL}, {hx(G_ST)}")

    def x_dma(self, i):
        I = self.I
        I(f"s_xor_b32 s{sT5}, s{sT4}, {i}")
        I(f"s_lshl_b32 s{sT6}, s{sT5}, 12"); I(f"s_add_u32 m0, s{sT6}, s{sT3}")
        I(f"s_lshl_b32 s{sT5}, s{sT5}, 14"); I(f"s_add_u32 s{sT5}, s{sT5}, s{sT2}")
        return [I(self.dma(vT + qq, sTA, f"s{sT5}", qq * 1024)) for qq in range(4)]
    def rowaddr(self, d, hh16):
        return [f"v_lshrrev_b32 v{hh16}, 5, v{vLane}", f"v_lshlrev_b32 v{hh16}, 4, v{hh16}", f"v_and_b32 v{d}, 31, v{vLane}",
                f"v_lshl_add_u32 v{d}, v{d}, 10, v{hh16}"]
    def wq_dma(self, va):
        o = [f"v_lshrrev_b32 v{va}, 2, v{vLane}", f"v_lshlrev_b32 v{va}, 10, v{va}", f"v_and_or_b32 v{va}, v{vL16}, 48, v{va}"]
        for ks in range(8):
            for n in range(2):
                o += [f"s_add_u32 m0, s{sWQl}, {(2*ks+n)*1024}", f"s_add_u32 s{sT7}, s{sWQo+n}, {ks*16384}", self.dma(va, sWQ, f"s{sT7}")]
        return o
    def traddr(self, d, t, swapw):
        o = [f"v_lshrrev_b32 v{d}, 5, v{vLane}", f"v_lshlrev_b32 v{d}, 9, v{d}",
             f"v_bfe_u32 v{t}, v{vLane}, 2, 2", f"v_lshl_or_b32 v{d}, v{t}, 6, v{d}",
             f"v_bfe_u32 v{t}, v{vL16x if swapw else vL16}, 8, 1", f"v_lshl_or_b32 v{d}, v{t}, 5, v{d}",
             f"v_and_b32 v{t}, 1, v{vLane}", f"v_lshl_or_b32 v{d}, v{t}, 4, v{d}",
             f"v_bfe_u32 v{t}, v{vLane}, 1, 1", f"v_lshl_or_b32 v{d}, v{t}, 3, v{d}",
             f"v_add_u32 v{d}, s{sWQl}, v{d}"]
        return o
    def wkv_reads(self, W, a=vT + 6):
        t = vT + 4
        o = [f"v_lshrrev_b32 v{a}, 4, v{vLane}", f"v_lshlrev_b32 v{a}, 8, v{a}", f"v_and_b32 v{t}, 15, v{vLane}",
             f"v_lshl_or_b32 v{a}, v{t}, 3, v{a}", f"s_lshl_b32 s{sT5}, s{sw}, 12", f"s_add_u32 s{sT5}, s{sT5}, {hx(L_WKV)}",
             f"v_add_u32 v{a}, s{sT5}, v{a}"]
        for s in range(4):
            for h in range(2): o.append(f"ds_read_b64_tr_b16 {V(W+4*s+2*h,2)}, v{a} offset:{s*1024+h*128}")
        return o
    def wq_reads(self):
        a = vT + 6
        o = self.traddr(a, vT + 7, True)
        for f in range(16):
            for h in range(2): o.append(f"ds_read_b64_tr_b16 {A(4*f+2*h,2)}, v{a} offset:{f*1024+h*256}")
        return o

    KW = 56; KA = 72; KC = 88; ONE = 104
    def branch2(self, f0, f1):
        e = self.e; I = e.I
        lv = e.newlab("L_kvv"); lj = e.newlab("L_kvj")
        I(f"s_bitcmp1_b32 s{sj}, 0"); I(f"s_cbranch_scc1 {lv}")
        e.begin_opt(); f0(); I(f"s_branch {lj}"); e.end_opt(); e.label(lv)
        e.begin_opt(); f1(); e.end_opt(); e.label(lj)
    def skip(self, conds, f):
        e = self.e; l = e.newlab("L_sk")
        for c in conds: e.I(c); e.I(f"s_cbranch_scc0 {l}")
        e.begin_opt(); f(); e.end_opt(); e.label(l)
    def kv_addr(self, base, t):
        I = self.I
        ah = self.KA; ga = ah + 2; sa = ah + 6; gs = sT6; n16 = ga + 1; q = ga + 2
        def fk():
            I(f"v_lshrrev_b32 v{ga}, 2, v{n16}"); I(f"v_lshlrev_b32 v{ga}, 8, v{ga}"); I(f"v_lshl_or_b32 v{ga}, v{n16}, 4, v{ga}")
            I(f"v_lshl_or_b32 v{ga}, v{t}, 2, v{ga}"); I(f"s_mov_b32 s{gs}, 0")
            I(f"v_lshlrev_b32 v{sa}, 9, v{sa}"); I(f"v_lshl_or_b32 v{sa}, v{n16}, 4, v{sa}")
        def fv():
            I(f"v_mul_u32_u24 v{ga}, 0x140, v{q}"); I(f"s_mov_b32 s{gs}, 20")
            I(f"v_lshlrev_b32 v{sa}, 8, v{sa}"); I(f"v_lshl_or_b32 v{sa}, v{t}, 4, v{sa}")
            I(f"v_bfe_u32 v{t}, v{n16}, 2, 1"); I(f"v_lshl_or_b32 v{sa}, v{t}, 7, v{sa}")
            I(f"v_bfe_u32 v{t}, v{n16}, 3, 1"); I(f"v_lshl_or_b32 v{sa}, v{t}, 6, v{sa}")
        def fin():
            self.branch2(fk, fv)
            I(f"v_and_b32 v{t}, 1, v{q}"); I(f"v_lshl_or_b32 v{sa}, v{t}, 3, v{sa}"); I(f"v_add_u32 v{ga}, {hx(base + 0xC00)}, v{ga}")
            for r in range(3): I(f"v_add_u32 v{ga+r+1}, s{gs}, v{ga+r}")
        return [f"v_add_u32 v{ah}, {hx(base)}, v{vL16}", f"v_lshl_add_u32 v{ah+1}, s{sw}, 12, v{ah}", f"v_and_b32 v{n16}, 15, v{vLane}",
                f"v_lshrrev_b32 v{q}, 4, v{vLane}", f"v_and_b32 v{t}, 3, v{vLane}", f"v_lshrrev_b32 v{sa}, 5, v{vLane}", (fin, 60)]
    def kv_mm(self, XK, first):
        I = self.I; acc, sm, cs, gr = (self.KC + 4 * i for i in range(4)); aw = self.KA + 1
        def f(typ):
            for s in range(4):
                x = V(XK + 4 * s, 4); w = V(self.KW + 4 * s, 4); one = V(self.ONE, 4)
                pr = (lambda a, b: (a, b)) if typ == 0 else (lambda a, b: (b, a))
                I(self.mf16(gr, x, x, s == 0)); I(self.mf16(acc, *pr(w, x), s == 0)); I(self.mf16(sm, *pr(one, x), s == 0))
                if first: I(self.mf16(cs, *pr(w, one), s == 0))
        self.e._autowait(regs_of(V(XK, 16)) + regs_of(V(self.KW, 16)))
        self.branch2(lambda: f(0), lambda: f(1))
        I(f"ds_write_b128 v{aw}, {V(gr,4)} offset:{0xC00}")
        def wr():
            I(f"ds_write_b128 v{aw}, {V(acc,4)}"); I(f"ds_write_b128 v{aw}, {V(sm,4)} offset:{0x400}")
            if first: I(f"ds_write_b128 v{aw}, {V(cs,4)} offset:{0x800}")
        self.skip([f"s_cmp_lg_u32 s{sw}, 0"], wr)
    def kv_fin(self, tg, first, box):
        e = self.e; I = e.I; acc, sm, cs = (self.KC + 4 * i for i in range(3)); ah = self.KA; ga = ah + 2; sa = ah + 6
        ts = tg + 16; ta = tg + 28; tc = tg + 40
        for w2 in range(4):
            for r in range(4): I(f"ds_read_b32 v{tg+4*w2+r}, v{ga+r} offset:{w2*0x1000}")
            if w2: I(f"ds_read_b128 {V(ts+4*(w2-1),4)}, v{ah} offset:{w2*0x1000+0x400}")
        for w2 in range(1, 4):
            I(f"ds_read_b128 {V(ta+4*(w2-1),4)}, v{ah} offset:{w2*0x1000}")
            if first: I(f"ds_read_b128 {V(tc+4*(w2-1),4)}, v{ah} offset:{w2*0x1000+0x800}")
        def padd(d, s): I(f"v_pk_add_f32 {V(d,2)}, {V(d,2)}, {V(s,2)}"); I(f"v_pk_add_f32 {V(d+2,2)}, {V(d+2,2)}, {V(s+2,2)}")
        for w2 in range(1, 4): padd(tg, tg + 4 * w2); padd(sm, ts + 4 * (w2 - 1))
        k = hx(f2u(1 / 512))
        for r in range(4): I(f"v_mul_f32 v{sm+r}, {k}, v{sm+r}")
        for r in range(4): I(f"v_mul_f32 v{tg+r}, {k}, v{tg+r}")
        for r in range(4): I(f"v_fma_f32 v{tg+r}, -v{sm+r}, v{sm+r}, v{tg+r}")
        for r in range(4): I(f"v_max_f32 v{tg+r}, 0, v{tg+r}")
        for r in range(4): I(f"v_add_f32 v{tg+r}, {hx(f2u(1e-5))}, v{tg+r}")
        for r in range(4): I(f"v_rsq_f32 v{tg+r}, v{tg+r}")
        for w2 in range(1, 4):
            padd(acc, ta + 4 * (w2 - 1))
            if first: padd(cs, tc + 4 * (w2 - 1))
        if first:
            for r in range(4): I(f"v_mov_b32 v{vCSKV+r}, v{cs+r}")
        for r in range(4): I(f"v_fma_f32 v{acc+r}, -v{sm+r}, v{vCSKV+r}, v{acc+r}")
        for r in range(4): I(f"v_mul_f32 v{acc+r}, v{acc+r}, v{tg+r}")
        e.seq(self.pack(acc, acc, 2))
        box.append(I(self.st(V(acc, 2), sa, sKV, f"s{sKVst}", 0, "sc1", w=2)))
        e.wait_lg0()
    def kv_flag(self, box, t):
        I = self.I
        I(f"v_mov_b32 v{t}, s{sMyF}"); I(f"v_mov_b32 v{t+1}, s{sN+1}")
        self.e.wait(*box)
        I("s_mov_b64 exec, 1"); I(self.st(V(t, 2), vPoll, sWS, f"s{sKVFs}", 0, "sc1", w=2)); I("s_mov_b64 exec, -1")
    def kvp_issue(self, r, off): return [f"s_add_u32 s{sT3}, s{sKVFp}, {off}", self.ld(V(r, 2), vSA, sWS, f"s{sT3}", 0, "sc1", w=2)]
    def kvp_check(self, r, off):
        def f():
            e = self.e; lab = e.newlab("L_kp"); back = e.newlab("L_kb")
            c = [f"v_and_b32 v{r}, -16, v{r}", f"v_cmp_ne_u64 vcc, s[{sN}:{sN+1}], {V(r, 2)}"]
            e.seq(c); e.I(f"s_cbranch_vccnz {lab}"); e.label(back)
            e.tail += [lab + ":", f"    s_mov_b32 s{sCnt}, 0", lab + "a:"] + ["    " + x for x in self.kvp_issue(r, off) + [
                       f"s_add_u32 s{sCnt}, s{sCnt}, 1", f"s_cmp_gt_u32 s{sCnt}, {POLL_LIM}", "s_cbranch_scc1 L_end", "s_waitcnt vmcnt(0)"] + c +
                       [f"s_cbranch_vccnz {lab}a", f"s_branch {back}"]]
        return (f, 20)
    def kvdma(self, i, v): return ([f"s_add_u32 m0, s{sW1K}, {hx((i&7)*4096 + (i>>3)*0x10000 + v*0x8000)}"], self.dma(vL16, sKV, "m0", 0, "sc1"))
    def lo_dma(self, box):
        o = []
        for i in range(2):
            for v in range(2): p, d = self.kvdma(i, v); o += p + [self.cap(d, box)]
        return o
    def qfin(self, mt, ac, m, r):
        return [f"v_mul_f32 v{r}, {hx(f2u(QS))}, v{r}"] + self.exadd(ac, ac + 8) + [f"v_fma_f32 v{ac+i}, -v{m}, v{vCSQ+i}, v{ac+i}" for i in range(8)] + \
               [f"v_mul_f32 v{ac+i}, v{ac+i}, v{r}" for i in range(8)] + self.pack(vQ + 4 * mt, ac)
    def attn_setup(self):
        t = 70
        def f():
            I = self.I
            I(f"v_and_b32 v{t}, 16, v{vLane}"); I(f"v_cmp_eq_u32 vcc, 0, v{t}")
            I(f"v_lshrrev_b32 v{t}, 5, v{vLane}"); I(f"v_lshlrev_b32 v{t}, 8, v{t}"); I(f"v_add_u32 v{t}, 0x8000, v{t}")
            I(f"v_mov_b32 v{t+1}, {hx(L_ONES)}"); I(f"v_cndmask_b32 v{vV}, v{t+1}, v{t}, vcc")
            I(f"v_mov_b32 v{t}, 0x1000"); I(f"v_cndmask_b32 v{vInc}, 0, v{t}, vcc")
        return [(f, 36), f"v_and_b32 v{t}, 0xf0, v{vL16}", f"v_or_b32 v{vV}, v{vV}, v{t}",
                f"v_and_b32 v{vMA}, 0x180, v{vPoll}", f"v_bfe_u32 v{t}, v{vLane}, 2, 1", f"v_lshl_or_b32 v{vMA}, v{t}, 12, v{vMA}",
                f"v_add_u32 v{vK2}, 0x10000, v{vL16}"] + [f"v_mov_b32 v{RES(0)+8+i}, 0" for i in range(8)]
    def zero_o(self): return [f"v_mov_b32 v{vO+i}, 0" for i in range(32)]

    def qkv1(self):
        e = self.e; I = e.I; op = self.opt.get
        XK = 240; X = 112; AQ = [208, 176]; ONE = self.ONE; SEL = 108; SM = [88, 92]; SQ = [96, 97]; CS = 56; RW = 228
        pst = (lambda n: self.stamp(n)) if op('pst') else (lambda n: None)
        for i in range(4): I(f"v_mov_b32 v{ONE+i}, s{sOnes}")
        I(f"v_lshrrev_b32 v{SEL}, 2, v{vLane}"); I(f"v_xor_b32 v{SEL}, v{SEL}, v{vLane}"); I(f"v_and_b32 v{SEL}, 4, v{SEL}")
        I(f"v_and_or_b32 v{SEL}, v{vLane}, 8, v{SEL}"); I(f"v_cmp_eq_u32 vcc, 0, v{SEL}")
        for i in range(4): I(f"v_cndmask_b32 v{SEL+i}, 0, v{ONE}, vcc")
        e.seq(self.kv_addr(L_KVR, vT + 4))
        a = self.KA + 7
        I(f"v_and_b32 v{vT+4}, 15, v{vLane}"); I(f"v_lshrrev_b32 v{vT+5}, 4, v{vLane}")
        I(f"v_xor_b32 v{vT+5}, v{vT+5}, v{vT+4}"); I(f"v_lshlrev_b32 v{vT+5}, 4, v{vT+5}")
        I(f"v_lshl_or_b32 v{a}, v{vT+4}, 8, v{vT+5}")
        I(f"s_lshl_b32 s{sT5}, s{sT4}, 12"); I(f"s_add_u32 s{sT5}, s{sT5}, s{sT3}"); I(f"v_add_u32 v{a}, s{sT5}, v{a}")
        tx = []; N1 = op('n1', 3)
        for i in range(1, 1 + N1): tx += self.x_dma(i)
        self.swz_setup()
        e.seq(self.rowaddr(vT + 5, vT + 6)); I(f"s_add_u32 s{sT6}, s{sRow}, 0x8000")
        I(self.ld(V(RW, 4), vT + 5, sTA, f"s{sRow}")); I(self.ld(V(RW + 4, 4), vT + 5, sTA, f"s{sT6}"))
        self.srd(sTB, pB2, 1024); I(f"s_lshr_b32 s{sT5}, s{sP1K}, 5")
        I(self.ld(V(vB2, 4), vT + 6, sTB, f"s{sT5}"))
        o = self.wkv_reads(self.KW); e.seq(o[:7])
        pst('p_end')
        e.wait(*self.tk_wkv); e.seq(o[7:]); e.wait(*self.tk_x)
        for s in range(4):
            if s: I(f"v_xor_b32 v{vT+4}, {s*64}, v{a}")
            I(f"ds_read_b128 {V(XK+4*s,4)}, v{vT+4 if s else a}")
        self.stamp("kvx")
        self.kv_mm(XK, True)
        e.wait_lg0(force=True); e.barrier()
        I(f"s_add_u32 s{sN}, s{sN}, 16"); I(f"s_addc_u32 s{sN+1}, s{sN+1}, 0"); I(f"s_and_b32 s{sN}, s{sN}, -16")
        I(f"s_getreg_b32 s{sT5}, hwreg(HW_REG_XCC_ID, 0, 4)"); I(f"s_or_b32 s{sMyF}, s{sN}, s{sT5}")
        kb = []; w0 = [f"s_cmp_eq_u32 s{sw}, 0"]
        self.skip(w0, lambda: self.kv_fin(176, True, kb))
        self.stamp("kvdone")
        for i in range(1 + N1, 4): tx += self.x_dma(i)
        wd = self.wq_dma(vT + 4); e.seq(wd[:3]); tw = []
        KF, XW = op('kf', (10, 2))
        ah = self.KA; st = ah + 1; ct = ah + 2; F = 240
        a = vT + 8
        I(f"v_and_b32 v{a+1}, 31, v{vLane}"); I(f"v_lshrrev_b32 v{a}, 5, v{vLane}"); I(f"v_xor_b32 v{a}, v{a}, v{a+1}")
        I(f"v_and_b32 v{a}, 15, v{a}"); I(f"v_lshlrev_b32 v{a}, 4, v{a}"); I(f"v_lshl_or_b32 v{a}, v{a+1}, 8, v{a}")
        I(f"v_add_u32 v{a}, s{sT3}, v{a}")
        I(f"v_mov_b32 v{vN}, s{sN}"); I(f"v_mov_b32 v{vN+1}, s{sN+1}")
        fill = [f"v_mov_b32 v{q}, 0" for q in SQ]
        for ks in range(8):
            fill += [f"v_dot2c_f32_bf16 v{SQ[mt]}, v{X+(mt*8+ks)*4+i}, v{X+(mt*8+ks)*4+i}" for i in range(4) for mt in range(2)]
        fill += [self.mf16(SM[mt], V(SEL, 4), V(X + (mt * 8 + ks) * 4, 4), ks == 0) for ks in range(8) for mt in range(2)]
        sa, sb = self.swz_a(st, SEL, F, 100)
        fill[66:66] = sa
        for mt in range(2):
            for i in range(4): fill += [f"v_lshlrev_b32 v{RES(mt)+2*i}, 16, v{RW+4*mt+i}", f"v_and_b32 v{RES(mt)+2*i+1}, 0xffff0000, v{RW+4*mt+i}"]
        o = self.wq_reads(); fill += o[:11]; o = o[11:]
        fill += [f"v_and_b32 v{vSA}, 0xf80, v{vPoll}", f"v_lshlrev_b32 v{vFl}, 20, v{vLane}", f"v_and_b32 v{vP8}, 0x380, v{vPoll}", f"v_lshl_add_u32 v{st}, s{sw}, 2, v{ah}"]
        for mt in range(2): fill += self.stat_write(SM[mt], SQ[mt], st, mt)
        NF = op('nf', 6)
        for f in range(16):
            if f == KF: self.skip(w0, lambda: self.kv_flag(kb, 98))
            if f == XW:
                pst('p_w8'); e.wait(*tx)
                for ks in range(8):
                    if ks: I(f"v_xor_b32 v{a+1}, {ks*32}, v{a}")
                    for mt in range(2): I(f"ds_read_b128 {V(X+(mt*8+ks)*4,4)}, v{a+(1 if ks else 0)} offset:{mt*8192}")
            e.seq(wd[3 + 3 * f:5 + 3 * f]); tw.append(I(wd[5 + 3 * f]))
            if f > XW: e.seq(fill[:NF]); fill = fill[NF:]
        pst('p_wq')
        def rds(ks): return [self.wt(tw[2 * ks:2 * ks + 2])] + o[4 * ks:4 * ks + 4]
        e.seq(fill + rds(0) + rds(1) + sb)
        self.stamp("wqrd")
        mm = []; ev = {}
        qm = lambda mt, ks: [self.mf(AQ[mt] + 16 * n, A((2 * ks + n) * 4, 4), V(X + (mt * 8 + ks) * 4, 4), '0' if ks == 0 else None) for n in range(2)]
        for ks in range(8):
            if ks < 6: ev[len(mm)] = rds(ks + 2)
            mm += qm(0, ks) + [self.mf16(CS + 4 * n, A((2 * ks + n) * 4, 4), V(SEL, 4), ks == 0) for n in range(2)]
        for ks in range(8): mm += qm(1, ks)
        add = lambda g, *it: ev.setdefault(g, []).extend(it)
        t0 = 88; TC = 112; sb = self.swz_b(100)
        add(1, self.bar(), *[f"ds_read_b128 {V(t0+4*mt,4)}, v{ah} offset:{mt*1024}" for mt in range(2)], sb[0])
        fill = [f"v_bfe_u32 v{ct}, v{vLane}, 2, 1", f"v_xor_b32 v{ct+1}, s{sw}, v{ct}", f"v_lshl_or_b32 v{ct}, v{ct+1}, 2, v{ct}", f"v_lshlrev_b32 v{ct}, 6, v{ct}",
                f"v_and_or_b32 v{ct}, v{vLane}, 48, v{ct}", f"v_add_u32 v{ct}, {hx(L_CST)}, v{ct}", f"v_xor_b32 v{ct+1}, 0x280, v{ct}",
                f"v_lshrrev_b32 v{ct+2}, 5, v{vLane}", f"v_lshlrev_b32 v{ct+2}, 4, v{ct+2}", f"v_lshl_add_u32 v{ct+2}, s{sw}, 8, v{ct+2}", f"v_add_u32 v{ct+2}, {hx(L_CST)}, v{ct+2}"]
        fill += sb[1:] + [f"v_and_b32 v{ONE+1}, 11, v{vLane}", f"v_cmp_eq_u32 vcc, 0, v{ONE+1}", f"v_add_u32 v{ct+3}, s{sW1K}, v{ah}"]
        fill += [f"v_cndmask_b32 v{ONE+i}, 0, v{ONE}, vcc" for i in (1, 2, 3, 0)] + [f"ds_write_b128 v{ct+3}, {V(ONE,4)} offset:{L_ONES-L_KVR}"]
        su = self.attn_setup(); fill += su[:7]
        for mt in range(2): fill += self.stat_fin(t0 + 4 * mt, 96 + 2 * mt, 97 + 2 * mt)
        add(21, f"s_and_b32 s{sT5}, s{sg}, 15", f"s_lshl_b32 s{sT5}, s{sT5}, 10", f"v_add_u32 v{vT+6}, s{sT5}, v{vT+6}",
            *[f"ds_read_b64_tr_b16 {V(vAUG+4+2*h,2)}, v{vT+6} offset:{h*256}" for h in range(2)],
            f"s_lshl_b32 s{sWQo}, s{sP1K}, 4", f"s_add_u32 s{sWQo}, s{sWQo}, {hx(WQS)}", f"s_add_u32 s{sT5}, s{sT5}, s{sWQo}",
            f"s_cmp_ge_u32 s{sg}, 16", f"s_cselect_b32 s{sT4}, {hx(BIG)}, s{sT5}")
        PI, PC = op('lp1', (24, 47)); lo = []
        add(PI, *self.kvp_issue(vT, 0))
        add(25, self.st(V(vAUG + 4, 4), vL16, sWS, f"s{sT4}", 0, "sc1"))
        chk = [self.kvp_check(vT, 0), self.stp("kvpoll")] + self.lo_dma(lo)
        self._sched(mm[:32], ev, fill, 2, 30)
        ev = {g - 32: it for g, it in ev.items() if g >= 32}
        w = self.exw(AQ[0], 0); r = self.exr(AQ[0] + 8, 0)
        add(0, *w[:2]); add(1, *w[2:4]); add(2, *w[4:])
        add(3, "s_mov_b32 exec_lo, 0x110011", "s_mov_b32 exec_hi, 0x110011", *[f"ds_write_b128 v{ct+n}, {V(CS+4*n,4)}" for n in range(2)], "s_mov_b64 exec, -1")
        c = [f"ds_read_b128 {V((TC+8*(q-1) if q else vCSQ)+4*h,4)}, v{ct+2} offset:{q*64+h*32}" for q in range(4) for h in range(2)]
        add(5, self.bar(), *c[:4]); add(6, *c[4:]); add(7, *r[:3]); add(8, *r[3:])
        if PC < 48: add(PC - 32, *chk)
        q0 = self.qfin(0, AQ[0], 96, 97)
        self._sched(mm[32:], ev, self.exadd(vCSQ, TC) + q0[:21], 9, 15)
        e.seq(q0[21:]); e.seq(self.exw(AQ[1], 0x1800))
        if PC == 48: e.seq(chk)
        z = self.zero_o(); e.seq(z[:16])
        e.seq([self.bar()])
        pst('p_bar')
        e.seq(self.exr(AQ[1] + 8, 0x1800) + z[16:] + su[7:])
        I(f"s_add_u32 s{sT5}, s{sW8K}, {hx(L_X)}"); I(f"v_add_u32 v{vEW}, s{sT5}, v{vL16}")
        for q in (1, 2, 3):
            I(f"v_xor_b32 v{vER+q-1}, {hx(q*0x2000)}, v{vEW}")
            if q > 1: I(f"v_add_u32 v{vER+q-1}, {(q-1)*2048}, v{vER+q-1}")
        e.seq(self.qfin(1, AQ[1], 98, 99))
        if PC > 48: e.seq(chk)
        self.stamp("qdone")
        e.wait(*lo); e.barrier()
        def swflag(): I(f"s_lshl_b32 s{sT2}, s{sg}, 7"); I(f"s_add_u32 s{sT2}, s{sT2}, s{sSwF}"); self.lane0(f"s{sT2}")
        self.skip(w0, swflag)
    def lane0(self, off):
        I = self.I
        I("s_mov_b64 exec, 1"); I(self.st(V(vN, 2), vPoll, sWS, off, 0, "sc1", w=2)); I("s_mov_b64 exec, -1")

    def q2_pre(self, ev, fill, TM, PK):
        op = self.opt.get; add = lambda g, *it: ev.setdefault(g, []).extend(it)
        b0 = []; a = self.KA + 7
        fill += self.xfin(0, TM, PK, G_X2, b0, False)
        pb, pi, pc = op('x2p', (30, 41, 51))
        o = self.wkv_reads(self.KW, a); add(23, *o[:7]); add(24, *o[7:11]); add(25, *o[11:])
        o = self.kv_addr(0x4000, vT + 4); add(26, *o[:6]); add(27, o[6])
        add(29, f"v_lshrrev_b32 v{a}, 4, v{vLane}", f"v_lshlrev_b32 v{a}, 9, v{a}", f"v_and_b32 v{vT+4}, 0xf0, v{vL16}", f"v_or_b32 v{a}, v{a}, v{vT+4}")
        add(pb, self.pub(F_X2, b0)); add(pi, self.pissue(F_X2, vT)); add(pc, self.pcheck(F_X2, vT))
        l = self.x2loads(0)
        for k, it in enumerate(l): add(pc + k // 2, *it)
    XK2 = 208; SB = [200, 104]
    def x2loads(self, mt):
        a = self.KA + 7
        o = [[f"s_bfe_u32 s{sT5}, s{sj}, 0x10001", f"s_lshl_b32 s{sT5}, s{sT5}, 8", f"s_add_u32 s{sT0}, s{sW8K}, {hx(G_X2 + mt*0x8000)}", f"s_add_u32 s{sT5}, s{sT5}, s{sT0}",
              f"s_cmp_{'lt' if mt else 'ge'}_u32 s{sj}, 4", f"s_cselect_b32 s{sT5}, {hx(BIG)}, s{sT5}", f"s_add_u32 s{sT6}, s{sT5}, 4096"], [], [], []]
        for s in range(4): o[s].append(self.ld(V(self.XK2 + 4 * s, 4), a, sG, f"s{sT5 + (s >> 1)}", (s & 1) * 2048, "sc1"))
        o.append([f"s_add_u32 s{sT3}, s{sStL}, {mt*0x2000}", self.ld(V(self.SB[mt], 4), vL16, sG, f"s{sT3}", 0, "sc1")])
        o.append([self.ld(V(self.SB[mt] + 4, 4), vL16, sG, f"s{sT3}", 1024, "sc1")])
        for ks in range(8): o.append(([f"s_add_u32 s{sT0}, s{sT0}, 4096"] if ks == 4 else []) + [self.ld(A(8 * (8 * mt + ks), 4), vL16, sG, f"s{sT0}", (ks % 4) * 1024, "sc1")])
        return o
    def qkv2(self, b1):
        e = self.e; I = e.I; op = self.opt.get
        AQ = [224, 176]; SB = self.SB; ah = vT + 6; ONE = self.ONE = 96
        def ssum(mt):
            t = SB[mt]
            return [f"v_add_f32 v{t+i}, v{t+i}, v{t+4+i}" for i in range(4)] + [f"v_add_f32 v{t}, v{t}, v{t+1}", f"v_add_f32 v{t+2}, v{t+2}, v{t+3}",
                    f"v_add_f32 v{t}, v{t}, v{t+2}", f"ds_write_b32 v{ah+1}, v{t} offset:{mt*1024}"]
        srd_ = lambda mt: f"ds_read_b128 {V(SB[mt],4)}, v{ah} offset:{mt*1024}"
        mm = lambda mt: [self.mf(AQ[mt] + 16 * n, V(vWO + (2 * ks + n) * 4, 4), A(8 * (8 * mt + ks), 4), '0' if ks == 0 else None) for ks in range(8) for n in range(2)]
        jc = [f"s_cmp_lt_u32 s{sj}, 4", f"s_cmp_ge_u32 s{sj}, 4"]; w0 = f"s_cmp_eq_u32 s{sw}, 0"
        for i in range(4): I(f"v_mov_b32 v{ONE+i}, s{sOnes}")
        I(f"s_add_u32 s{sKV}, s{sKV}, 0x20000"); I(f"s_addc_u32 s{sKV+1}, s{sKV+1}, 0")
        I(f"s_add_u32 s{sKVFs}, s{sKVFs}, 0x8000"); I(f"s_add_u32 s{sKVFp}, s{sKVFp}, 0x8000")
        I(f"s_mov_b32 s{sLayer}, 1"); I(f"s_mov_b32 s{sWQo}, {hx(BIG)}")
        e.seq(ssum(0))
        self.stamp("x2poll")
        self.skip([jc[0]], lambda: self.kv_mm(self.XK2, False))
        e.wait_lg0(force=True); e.barrier()
        self.stamp("kvx")
        e.seq([self.pub(F_X2 + 1, b1)])
        kb = []
        self.skip([jc[0], w0], lambda: self.kv_fin(176, False, kb))
        self.stamp("kvdone")
        self.sched(mm(0), {0: [srd_(0)], op('x2q', 9): [self.pissue(F_X2 + 1, vT)]}, self.stat_fin(SB[0], SB[0] + 4, SB[0] + 5), 3, 6)
        e.seq(self.exw(AQ[0], 0)); e.seq([self.pcheck(F_X2 + 1, vT)])
        self.skip([jc[0], w0], lambda: self.kv_flag(kb, vT))
        self.stamp("x2b")
        for o in self.x2loads(1): e.seq(o)
        I(f"s_add_u32 s{sFlSt}, s{sFlSt}, 4096"); I(f"s_add_u32 s{sFlPo}, s{sFlPo}, 4096")
        e.seq([self.bar()]); e.seq(self.exr(AQ[0] + 8, 0)); e.seq(self.qfin(0, AQ[0], SB[0] + 4, SB[0] + 5))
        self.stamp("q0")
        self.skip([jc[1]], lambda: self.kv_mm(self.XK2, False))
        PI, PC = op('lp2', (2, 16)); lo = []
        chk = [self.kvp_check(vT, 0), self.stp("kvpoll")] + self.lo_dma(lo)
        ev = {0: [f"v_and_b32 v{vSA}, 0xf80, v{vPoll}"]}; ev.setdefault(PI, []).extend(self.kvp_issue(vT, 0))
        self.sched(mm(1), ev, ssum(1) + self.attn_setup() + self.zero_o(), 1, 14)
        e.seq(self.exw(AQ[1], 0x8000))
        if PC == 16: e.seq(chk)
        e.wait_lg0(force=True); e.barrier()
        self.skip([jc[1], w0], lambda: self.kv_fin(112, False, []))
        I(srd_(1)); e.seq(self.exr(AQ[1] + 8, 0x8000)); e.seq(self.stat_fin(SB[1], SB[1] + 4, SB[1] + 5)); e.seq(self.qfin(1, AQ[1], SB[1] + 4, SB[1] + 5))
        if PC > 16: e.seq(chk)
        self.stamp("qdone")
        e.wait(*lo); e.barrier()

    def swz_setup(self):
        e = self.e; I = e.I
        l2 = e.newlab("L_sw2"); lo = e.newlab("L_swo"); lj = e.newlab("L_swj")
        I(f"s_mov_b32 s{sAug}, {hx(BIG)}"); I(f"s_mov_b32 s{sTB+3}, 0x20000")
        I(f"s_cmp_ge_u32 s{sg}, 14"); I(f"s_cbranch_scc1 {l2}")
        I(f"s_mov_b64 s[{sTB}:{sTB+1}], s[{pW1}:{pW1+1}]"); I(f"s_mov_b32 s{sTB+2}, {512*1792*2}")
        I(f"s_mov_b32 s{sT0}, 3584"); I(f"s_and_b32 s{sT1}, s{sg}, 1")
        I(f"s_mul_i32 s{sT5}, s{sj}, 7"); I(f"s_lshr_b32 s{sT6}, s{sg}, 1"); I(f"s_add_u32 s{sT5}, s{sT5}, s{sT6}")
        I(f"s_mul_i32 s{sSwD}, s{sT5}, {33*1024}"); I(f"s_add_u32 s{sSwD}, s{sSwD}, {hx(W1S)}")
        I(f"s_lshl_b32 s{sT6}, s{sT1}, 3"); I(f"s_add_u32 s{sT6}, s{sT6}, s{sSwD}"); I(f"s_add_u32 s{sT6}, s{sT6}, {32*1024}")
        I(f"s_cmp_eq_u32 s{sw}, 0"); I(f"s_cselect_b32 s{sAug}, s{sT6}, s{sAug}")
        I(f"s_branch {lj}")
        e.label(l2)
        I(f"s_mov_b32 s{sT0}, 1024"); I(f"s_lshl_b32 s{sT5}, s{sj}, 1")
        I(f"s_cmp_ge_u32 s{sg}, 28"); I(f"s_cbranch_scc1 {lo}")
        I(f"s_mov_b64 s[{sTB}:{sTB+1}], s[{pW2}:{pW2+1}]"); I(f"s_mov_b32 s{sTB+2}, {512*1792*2}")
        I(f"s_cmp_ge_u32 s{sg}, 21"); I(f"s_cselect_b32 s{sT6}, 21, 14"); I(f"s_addc_u32 s{sT5}, s{sT5}, 0")
        I(f"s_sub_u32 s{sT1}, s{sg}, s{sT6}")
        I(f"s_mul_i32 s{sSwD}, s{sT5}, {112*1024}"); I(f"s_add_u32 s{sSwD}, s{sSwD}, {hx(W2S)}")
        I(f"s_branch {lj}")
        e.label(lo)
        I(f"s_mov_b64 s[{sTB}:{sTB+1}], s[{pWO}:{pWO+1}]"); I(f"s_mov_b32 s{sTB+2}, 0x80000")
        I(f"s_and_b32 s{sT1}, s{sg}, 1"); I(f"s_bitcmp1_b32 s{sg}, 1"); I(f"s_addc_u32 s{sT5}, s{sT5}, 0")
        I(f"s_lshl_b32 s{sSwD}, s{sT5}, 15"); I(f"s_add_u32 s{sSwD}, s{sSwD}, {hx(WOS)}")
        e.label(lj)
        I(f"s_lshl_b32 s{sT1}, s{sT1}, 2"); I(f"s_add_u32 s{sT1}, s{sT1}, s{sw}")
        I(f"s_lshl_b32 s{sT6}, s{sT1}, 12"); I(f"s_add_u32 s{sSwD}, s{sSwD}, s{sT6}")
        I(f"s_lshl_b32 s{sT1}, s{sT1}, 6"); I(f"s_mul_i32 s{sT1}, s{sT1}, s{sT0}")
        I(f"s_lshl_b32 s{sT5}, s{sT5}, 6"); I(f"s_add_u32 s{sT1}, s{sT1}, s{sT5}")
        a = vT + 9
        I(f"v_lshrrev_b32 v{a}, 2, v{vLane}"); I(f"v_mul_lo_u32 v{a}, v{a}, s{sT0}"); I(f"v_and_or_b32 v{a}, v{vL16}, 48, v{a}")
        I(f"s_lshl_b32 s{sT0}, s{sT0}, 4")
        for f in range(4):
            if f: I(f"s_add_u32 s{sT1}, s{sT1}, s{sT0}")
            I(self.ld(A(64 + 4 * f, 4), a, sTB, f"s{sT1}"))
        b = vT + 10; t = vT + 8
        I(f"v_and_b32 v{b}, 0x13, v{vLane}"); I(f"v_bfe_u32 v{t}, v{vLane}, 2, 1"); I(f"v_lshl_or_b32 v{b}, v{t}, 3, v{b}")
        I(f"v_bfe_u32 v{t}, v{vLane}, 3, 1"); I(f"v_lshl_or_b32 v{b}, v{t}, 2, v{b}")
        I(f"v_lshrrev_b32 v{t}, 5, v{vLane}"); I(f"v_lshl_or_b32 v{b}, v{t}, 15, v{b}"); I(f"v_lshlrev_b32 v{b}, 1, v{b}")
        self.srd(sTB, pB1, 3584)
        I(f"buffer_load_ushort v{vAUG}, v{b}, s[{sTB}:{sTB+3}], s{sT5} offen")
        I(f"s_lshl_b32 s{sSwF}, s{sj}, 12"); I(f"s_add_u32 s{sSwF}, s{sSwF}, {hx(GF + 0x10000)}")
    def swz_a(self, st, SEL, F, c):
        a = vT + 6
        o = [f"v_add_u32 v{a}, s{sT3}, v{vL16}"] + [f"ds_write_b128 v{a}, {A(64+4*f,4)} offset:{f*1024}" for f in range(4)]
        o += self.traddr(a, vT + 7, False)[:-1] + [f"v_add_u32 v{a}, s{sT3}, v{a}"]
        o += [f"ds_read_b64_tr_b16 {V(F+4*f+2*h,2)}, v{a} offset:{f*1024+h*256}" for f in range(4) for h in range(2)]
        return o, [self.mf16(c, V(SEL, 4), V(F + 4 * f, 4), f == 0) for f in range(4)] + \
               [self.st(V(F + 4 * f, 4), vL16, sWS, f"s{sSwD}", f * 1024, "sc1") for f in range(4)] + [f"ds_write_b32 v{st}, v{c} offset:{L_CSR-L_KVR}"]
    def swz_b(self, t):
        return [f"ds_read_b128 {V(t,4)}, v{self.KA} offset:{L_CSR-L_KVR}",
                f"v_add_f32 v{t}, v{t}, v{t+1}", f"v_add_f32 v{t+2}, v{t+2}, v{t+3}", f"v_add_f32 v{t}, v{t}, v{t+2}",
                f"v_cvt_pk_bf16_f32 v{t+1}, v{t}, v{t}", f"v_lshlrev_b32 v{t+2}, 16, v{t+1}", f"v_sub_f32 v{t}, v{t}, v{t+2}",
                f"v_cvt_pk_bf16_f32 v{t}, v{t+2}, v{t}", f"v_and_b32 v{t+1}, 0xffff, v{t+1}", f"v_lshl_or_b32 v{t+1}, v{vAUG}, 16, v{t+1}",
                self.st(V(t, 2), vL16, sWS, f"s{sAug}", 0, "sc1", w=2)]

    OB = [[208, 212, 216, 220, 248, 252, 40, 240], [176 + 4 * i for i in range(8)]]
    UA = [0, 2, 4, 6, 7, 9, 11, 13]; UB = [1, 3, 5, 8, 10, 12]
    def ofin(self, mt, box):
        O = vO + 16 * mt
        def chk():
            I = self.I
            I(f"v_cmp_lt_f32 vcc, s{sT6}, v{O+8}"); I(f"v_cmp_gt_f32 s[{sT2}:{sT3}], s{sT7}, v{O+8}")
            I(f"s_and_b64 vcc, vcc, s[{sT2}:{sT3}]"); I("s_andn2_b64 vcc, exec, vcc"); I(f"s_cbranch_scc1 L_slow{mt}"); self.e.label(f"L_slowb{mt}")
        return [(chk, 20), f"v_rcp_f32 v{O+8}, v{O+8}", f"s_add_u32 s{sT2}, s{sP1K}, {hx(G_O + mt*0x8000)}"] + \
               [f"v_mul_f32 v{O+i}, v{O+i}, v{O+8}" for i in range(8)] + self.pack(vQ + 4 * mt, O) + \
               [self.dcap([self.st(V(vQ + 4 * mt, 4), vL16, sG, f"s{sT2}")], box)]
    def oload(self, mt):
        return [([f"s_add_u32 s{sT1}, s{sW8K}, {hx(G_O + mt*0x8000 + ks*1024)}"] if ks % 4 == 0 else []) +
                [self.ld(V(self.OB[mt][ks], 4), vL16, sG, f"s{sT1}", (ks % 4) * 1024, "sc1")] for ks in range(8)]
    def attention(self):
        e = self.e; I = e.I; op = self.opt.get
        Kf = [vF1, vF1 + 4]; Vf = [vF1 + 8, vF1 + 16]
        S_ = [vS, vS + 16]; O_ = [vO, vO + 16]
        e.wait_lg0(); pre = Tok(); e.vmq[:] = [pre]
        kvdma = self.kvdma
        lo, hi = (2.0 ** -64, 2.0 ** 64) if not self.fsa else (2.0 ** 64, 2.0 ** -64)
        I(f"s_mov_b32 s{sT6}, {hx(f2u(lo))}"); I(f"s_mov_b32 s{sT7}, {hx(f2u(hi))}")
        SK = op('sk', 12); NP = 64 - SK
        vm = [[] for _ in range(64)]
        lst = [kvdma(i, v) for i in range(2, 8) for v in range(2)]
        for n, it in enumerate(lst): vm[n // 3].append(it)
        HF, PI, PC = op('hi', (3, 10, 12)); SI, SC = op('sw', (4, 6))
        k = self.kvp_issue(vT, 4096)
        vm[PI].append((k[:1], k[1])); vm[SI].append(([], self.ld(V(vSD, 2), vSA, sWS, f"s{sSwF}", 0, "sc1", w=2)))
        for n in range(16): vm[PC + 1 + n * op('hn', 14) // 16].append(kvdma(8 + n // 2, n & 1))
        lst = []
        pw = [([f"s_lshl_b32 s{sT1}, s{sLayer}, {op('pwl', 28)}", f"s_add_u32 s{sT1}, s{sT1}, s{sP1K}"], "!" + self.ld(V(vJ), vL16, sG, f"s{sT1}", 0, "sc1", w=1))]
        for i in (5, 6, 7, 0, 1, 2, 3, 4, 8):
            pw.append(([f"s_add_u32 s{sT0}, s{sT1}, {hx(G_X1 + i * 0x8000)}"], "!" + self.ld(V(vJ), vL16, sG, f"s{sT0}", 0, "sc1", w=1)))
        if op('nopw'): pw = []
        wfl = op('wfl', 'sc1')
        for n in range(2):
            for ks in range(8):
                pre = [f"s_add_u32 s{sT5}, s{sWOo+n}, {ks*1024}"] if ks % 4 == 0 else []
                lst.append((pre, self.ld(V(vWO + (2 * ks + n) * 4, 4), vL16x, sWS, f"s{sT5}", (ks % 4) * 1024, wfl)))
        for n in range(2):
            for i in range(32):
                pre = []
                if i % 8 == 0: pre = [f"s_add_u32 s{sT5}, s{sW1o+n}, s{sQ+i//8}"]
                elif i % 4 == 0: pre = [f"s_add_u32 s{sT5}, s{sT5}, 4096"]
                lst.append((pre, self.ld(A((2 * i + n) * 4, 4), vL16, sWS, f"s{sT5}", (i % 4) * 1024, wfl)))
            lst.append(([f"s_add_u32 s{sT5}, s{sW1o+n}, {32*1024}"], self.ld(V(vAUG + 4 * n, 4), vL16, sWS, f"s{sT5}", 0, "sc1")))
        for k, u in enumerate(self.UB[2:]):
            for n in range(2):
                for h in range(2):
                    lst.append(([f"s_lshl1_add_u32 m0, s{sW8K}, {(k*2+n)*2048}", f"s_add_u32 s{sT5}, s{sW2o+n}, {u*2048}"] if h == 0 else [],
                                self.dma(vL16x, sWS, f"s{sT5}", h * 1024, wfl)))
        if op('now'): lst = []
        for n, it in enumerate(pw): lst.insert(op('pw0', 10) + n * op('pwstep', 10), it)
        vm[33].append(([f"s_andn2_b32 s{sT3}, s{sKVFs}, 0x1180"], self.ld(V(vMD), vMA, sWS, f"s{sT3}", 0, "sc1", w=1)))
        if self.codepf:
            def cpf():
                I(f"s_getpc_b64 s[{sT2}:{sT3}]"); e.label("L_cpf")
                I(f"s_min_u32 s{sT0}, s{sP1K}, L_end-L_post"); I(f"s_add_u32 s{sT0}, s{sT0}, L_post-L_cpf")
                I(f"s_add_u32 s{sT2}, s{sT2}, s{sT0}"); I(f"s_addc_u32 s{sT3}, s{sT3}, 0")
            lst.append(([cpf], f"!global_load_dword v{vJ}, v{vL16}, s[{sT2}:{sT3}]"))
        TL = op('tl', 8); tl = lst[len(lst) - TL:]; lst = lst[:len(lst) - TL]
        p0, p1 = op('wp', (SC + 1, NP - 1))
        free = sorted((p, k_) for p in range(p0, p1 + 1) if p not in range(PI - op('q', 2), PI) for k_ in range(len(vm[p]), 3))
        for n, it in enumerate(lst): vm[free[n * len(free) // len(lst)][0]].append(it)
        isk = lambda it: f"s[{sKV}:" in it[1]
        assert max(len(x) for x in vm) <= 3 and not any(('lds' in it[1] and not isk(it)) or f"v{vMD}," in it[1] for x in vm[:31] for it in x)
        assert not any(isk(it) for x in vm[27:] for it in x)
        kt = []
        def IV(x):
            t = I(x)
            if f"s[{sKV}:" in x: kt.append(t)
        slots = [(mt, t_) for t_ in range(NP) for mt in range(2)] + [(mt, t_) for mt in range(2) for t_ in range(NP, 64)]
        NS = len(slots)
        buf = lambda s_: (s_ >> 1) & 1 if s_ < 2 * NP else (s_ - NP) & 1
        new = lambda s_: s_ < NS and (s_ >= 2 * NP or s_ % 2 == 0)
        blk = [0]
        def rdK(s_):
            t_ = slots[s_][1]
            return I(f"ds_read_b128 {V(Kf[buf(s_)],4)}, v{vK2 if t_ >= 32 else vL16} offset:{(t_&31)*1024}")
        def rdV(s_, h):
            t_ = slots[s_][1]; b = (t_ >> 2) + (8 if t_ >= 32 else 0); d = b - blk[0]; blk[0] = b
            if d == 1: I(f"v_add_u32 v{vV}, v{vInc}, v{vV}")
            elif d: I(f"v_mad_i32_i24 v{vV}, v{vInc}, {d}, v{vV}")
            return I(f"ds_read_b128 {V(Vf[buf(s_)]+4*h,4)}, v{vV} offset:{(t_&3)*1024+h*512}")
        def smf(s_, h): I(f"v_smfmac_f32_32x32x32_bf16 {V(O_[slots[s_][0]],16)}, {V(Vf[buf(s_)]+4*h,4)}, {V(S_[s_&1]+8*h,8)}, v{vIdx}")
        def qk(s_): I(self.mf(S_[s_&1], V(Kf[buf(s_)], 4), V(vQ + 4 * slots[s_][0], 4), '0'))
        def ex(s_, a, b):
            for r in range(a, b): I(f"v_exp_f32 v{S_[s_&1]+r}, v{S_[s_&1]+r}")
        z = 2 * NP + SK; tv = {}; ob = []
        of = self.ofin(0, ob)
        tv[z + 1, 0] = of[:3]; tv[z + 1, 1] = of[3:11]; tv[z + 1, 2] = of[11:]
        pb, pi, pc = op('op', (11, 18, 25))
        for g, it in [(pb, [self.pub(F_O, ob)]), (pi, [self.pissue(F_O, vT)]), (pc, [self.pcheck(F_O, vT)])] + [(pc + k, x) for k, x in enumerate(self.oload(0))]:
            tv.setdefault((z + g // 3, g % 3), []).extend(it)
        for n, (p, x) in enumerate(tl): tv.setdefault((2 * NP + n * op('tls', 8) // TL, (n & 1) * 2), []).extend(p + [x])
        rdK(0); rdV(0, 0); rdV(0, 1)
        qk(0)
        self.stamp("attn0")
        tkK = tkV = None
        for s_ in range(NS):
            mt, t_ = slots[s_]; sk = s_ >= 2 * NP
            v_ = vm[t_] if (mt and not sk) else []
            vs = (s_ + 1 if sk else s_ + 2 if mt == 0 else NS)
            ex(s_, 0, 2)
            if s_: smf(s_ - 1, 1)
            if sk: e.wait(tkV)
            elif mt: e.wait(tkK)
            if new(s_ + 2): tkK = rdK(s_ + 2)
            if v_: IV(v_[0][1])
            if len(v_) > 2: e.seq(v_[1][0])
            e.seq(tv.get((s_, 0), []))
            ex(s_, 2, 5)
            if s_ + 1 < NS: qk(s_ + 1)
            if vs < NS: rdV(vs, 0)
            if len(v_) > 2: IV(v_[1][1])
            if len(v_) > 1: e.seq(v_[-1][0])
            e.seq(tv.get((s_, 1), []))
            ex(s_, 5, 10); smf(s_, 0)
            if not mt and not sk and vm[t_]: e.seq(vm[t_][0][0])
            if vs < NS: tkV = rdV(vs, 1)
            if mt and not sk:
                e.wait(tkV)
                if t_ in op('ast', ()): self.stamp(f"a{t_}")
                if t_ == HF: self.skip([f"s_cmp_gt_u32 s{sLayer}, s{sw}", f"s_cmp_ge_u32 s{sj}, 4"], lambda: self.kv_flag([pre], vT))
                if t_ == 6 or t_ == 30:
                    e.wait(*kt); e.barrier()
                if t_ == 30:
                    I(f"s_or_b32 s{sT2}, s{sLayer}, s{sw}"); I(f"s_or_b32 s{sT2}, s{sT2}, s2")
                    self.skip([f"s_cmp_eq_u32 s{sT2}, 0"], lambda: self.lane0("0"))
                if t_ == NP - 1:
                    I(f"v_cmp_ne_u32 vcc, s{sMyF}, v{vMD}"); I("s_cmp_lg_u64 vcc, 0")
                    I(f"s_cselect_b32 s{sMode}, 1, {1 if self.fsm else 0}")
                if t_ == PC: e.seq([self.kvp_check(vT, 4096)])
                if t_ == SC:
                    I(f"v_cmp_ne_u64 vcc, s[{sN}:{sN+1}], {V(vSD,2)}"); I("s_cbranch_vccnz L_swpoll"); e.label("L_swback")
                    e.tail += ["L_swpoll:", f"    s_mov_b32 s{sCnt}, 0", "L_swp2:", "    " + self.ld(V(vSD, 2), vSA, sWS, f"s{sSwF}", 0, "sc1", w=2),
                               f"    s_add_u32 s{sCnt}, s{sCnt}, 1", f"    s_cmp_gt_u32 s{sCnt}, {POLL_LIM}", "    s_cbranch_scc1 L_end",
                               "    s_waitcnt vmcnt(0)", f"    v_cmp_ne_u64 vcc, s[{sN}:{sN+1}], {V(vSD,2)}", "    s_cbranch_vccnz L_swp2", "    s_branch L_swback"]
            if len(v_) > 1: IV(v_[-1][1])
            e.seq(tv.get((s_, 2), []))
            ex(s_, 10, 16)
        smf(NS - 1, 1)
        self.slow_attn(0, 64, 56, 248, 60); self.slow_attn(1, vS, vF1, vF1 + 8, vF1 + 4)
        self.stamp("attn1")
        e.label("L_post")

    def slow_attn(self, mt, Sx, K, Vv, M):
        x = Em(); I = x.I; O = vO + 16 * mt; va = M + 2
        x.label(f"L_slow{mt}"); x.nop(16)
        I(f"v_and_b32 v{va}, 0x1f0, v{vV}")
        for h in range(2): I(f"ds_read_b128 {V(Vv+4*h,4)}, v{vV}")
        I(f"v_mov_b32 v{M}, 0xff800000"); x.wait_lg0()
        for ps in range(2):
            I(f"s_mov_b32 s{sCnt}, 0")
            x.label(f"L_sa{ps}_{mt}")
            I(f"s_and_b32 s{sT2}, s{sCnt}, 32"); I(f"s_add_u32 s{sT2}, s{sT2}, s{sCnt}"); I(f"s_lshl_b32 s{sT2}, s{sT2}, 10")
            I(self.ld(V(K, 4), vL16, sKV, f"s{sT2}", 0, "sc1"))
            if ps:
                I(f"s_add_u32 s{sT2}, s{sT2}, 0x8000"); I("s_mov_b32 exec_lo, 0xffff"); I("s_mov_b32 exec_hi, 0xffff")
                for h in range(2): I(self.ld(V(Vv + 4 * h, 4), va, sKV, f"s{sT2}", h * 512, "sc1"))
                I("s_mov_b64 exec, -1")
            x.wait_vm0(); x.nop(4)
            I(self.mf(Sx, V(K, 4), V(vQ + 4 * mt, 4), '0'))
            if ps == 0:
                for i in range(8): I(f"v_max3_f32 v{M}, v{Sx+2*i}, v{Sx+2*i+1}, v{M}")
            else:
                for i in range(16): I(f"v_sub_f32 v{Sx+i}, v{Sx+i}, v{M}")
                for i in range(16): I(f"v_exp_f32 v{Sx+i}, v{Sx+i}")
                for h in range(2): I(f"v_smfmac_f32_32x32x32_bf16 {V(O,16)}, {V(Vv+4*h,4)}, {V(Sx+8*h,8)}, v{vIdx}")
                x.nop(16)
            I(f"s_add_u32 s{sCnt}, s{sCnt}, 1"); I(f"s_cmp_lt_u32 s{sCnt}, 64"); I(f"s_cbranch_scc1 L_sa{ps}_{mt}")
            if ps == 0:
                I(f"v_mov_b32 v{M+1}, v{M}"); I(f"v_permlane32_swap_b32 v{M}, v{M+1}"); I(f"v_max_f32 v{M}, v{M}, v{M+1}")
                for i in range(16): I(f"v_mov_b32 v{O+i}, 0")
        if mt == 0:
            for i in range(8): I(f"v_mov_b32 v{RES(0)+8+i}, 0")
        x.nop(4)
        I(f"s_branch L_slowb{mt}")
        self.e.tail += x.lines

    def bar(self, *boxes):
        def f():
            if boxes:
                for b in boxes: self.e.wait(*b)
            else: self.e.wait_lg0()
            self.e.barrier()
        return (f, 10)
    def stp(self, name): return (lambda: self.stamp(name), 0)
    def wt(self, box): return (lambda: self.e.wait(*box), 4)
    def xfin(self, mt, TM, PK, base, box, pk, flag_stats=True):
        o = self.exadd(RES(mt), TM, pk) + self.pack(PK, RES(mt)) + [f"s_add_u32 s{sT2}, s{sP1K}, {hx(base + mt*0x8000)}"]
        o += [self.dcap([self.st(V(PK, 4), vL16, sG, f"s{sT2}")], box)]
        if flag_stats: o += self.rowstats(RES(mt), TM, mt, box, pk)
        return o
    CB = [64, 96]
    def xdma(self, mt, box):
        o = []; CB = self.CB
        for h in range(2):
            for i in range(4):
                o.append(([f"s_add_u32 m0, s{sW8K}, {hx(G_X1 + mt*0x8000 + h*4096)}"] if i == 0 else []) + [self.cap(self.dma(vL16, sG, "m0", i * 1024, "sc1"), box[h])])
        o.append([f"s_add_u32 s{sT3}, s{sStL}, {mt*0x2000}", self.ld(V(CB[mt], 4), vL16, sG, f"s{sT3}", 0, "sc1")])
        o.append([self.ld(V(CB[mt] + 4, 4), vL16, sG, f"s{sT3}", 1024, "sc1")])
        return o
    def wo(self):
        e = self.e; I = e.I; op = self.opt.get
        TM = 208; PR = vT
        def mm(mt): return [self.mf(vACC + 32 * mt + 16 * n, V(vWO + (2 * ks + n) * 4, 4), V(self.OB[mt][ks], 4), '0' if (ks == 0 and n == 1) else None)
                            for ks in range(8) for n in range(2)]
        ob = []; b0 = []; self.b1 = []; self.d0 = [[], []]
        z1 = [f"v_mov_b32 v{RES(1)+8+i}, 0" for i in range(8)]
        self.sched(mm(0), {7: [self.bar()] + z1[:2], 8: z1[2:], op('op1', 14): [self.pub(F_O + 1, ob)]}, self.ofin(1, ob), 1, 4, name='wo0')
        e.seq(self.exw(vACC, 0)); e.seq(self.ffn_setup()); e.seq([self.bar()])
        e.seq(self.exr(TM, 0)); I(self.pissue(F_O + 1, PR))
        e.seq(self.xfin(0, TM, 232, G_X1, b0, True))
        e.seq([self.pcheck(F_O + 1, PR)])
        self.stamp("opoll")
        for o in self.oload(1): e.seq(o)
        B = 236
        for i in range(4):
            I(f"v_lshlrev_b32 v{B}, 16, v{vB2+i}"); I(f"v_and_b32 v{B+1}, 0xffff0000, v{vB2+i}")
            I(f"v_pk_add_f32 {V(RES(0)+2*i,2)}, {V(RES(0)+2*i,2)}, {V(B,2)}")
        for i in range(8): I(f"v_mov_b32 v{RES(0)+8+i}, 0")
        e.seq([self.pub(F_X1, b0)])
        pi, pc = op('xp0', (6, 15))
        xd = self.xdma(0, self.d0)
        ev = {pi - 1: [self.bar()], pi: [self.pissue(F_X1, PR)], pc: [self.pcheck(F_X1, PR)]}
        for g in range(pc, 16): ev.setdefault(g, []).extend(xd.pop(0))
        self.sched(mm(1), ev, name='wo1')
        e.seq(xd.pop(0))
        e.seq(self.exw(vACC + 32, 0x8000))
        for o in xd: e.seq(o)
        e.seq([self.bar()])
        e.seq(self.exr(TM, 0x8000)); e.seq(self.xfin(1, TM, 236, G_X1, self.b1, True))
        self.stamp("wodone")

    def gelu(self, acc, k1, k2, sd, T, P, stores):
        o = []
        for b in range(4):
            a = acc + 4 * b; t = T + 4 * (b & 1)
            o += [f"v_mul_f32 v{t+i}, v{a+i}, v{a+i}" for i in range(4)]
            o += [f"v_fma_f32 v{t+i}, v{t+i}, v{k2}, v{k1}" for i in range(4)]
            o += [f"v_mul_f32 v{t+i}, v{t+i}, v{a+i}" for i in range(4)]
            o += [f"v_exp_f32 v{t+i}, v{t+i}" for i in range(4)]
            o += [f"v_fma_f32 v{t+i}, v{t+i}, v{sd}, v{sd}" for i in range(4)]
            o += [f"v_rcp_f32 v{t+i}, v{t+i}" for i in range(4)]
            o += [f"v_mul_f32 v{a+i}, v{a+i}, v{t+i}" for i in range(4)]
            o += self.pack(P + 2 * b, a, 2)
            if b & 1: o.append(stores(b >> 1, P + 4 * (b >> 1)))
        return o
    def ffn_setup(self):
        XQ = vT + 2; ah = vT + 6; o = []
        for q in range(4): o += [f"s_add_u32 s{sT5}, s{sQ+q}, {hx(L_V)}", f"v_add_u32 v{XQ+q}, s{sT5}, v{vL16}"]
        return o + [f"v_add_u32 v{ah}, {hx(L_ST)}, v{vL16}", f"s_lshl_b32 s{sT5}, s{sw}, 2", f"v_add_u32 v{ah+1}, s{sT5}, v{ah}"]
    def ffn(self):
        e = self.e; I = e.I; op = self.opt.get
        AC = [176, 192]; RG = 208; GT = 240; GP = 248
        XQ = vT + 2; ah = vT + 6; PR = vT
        CB = self.CB
        e.undef('v', 176, 80); e.undef('v', 72, 8); e.undef('v', 96, 16)
        KS = [2 * u + h for u in self.UA + self.UB for h in range(2)]
        def add(ev, g, *items): ev.setdefault(g, []).extend(items)
        def ssum(mt, box):
            t = CB[mt]
            return [f"v_add_f32 v{t+i}, v{t+i}, v{t+4+i}" for i in range(4)] + [f"v_add_f32 v{t}, v{t}, v{t+1}", f"v_add_f32 v{t+2}, v{t+2}, v{t+3}",
                    f"v_add_f32 v{t}, v{t}, v{t+2}", self.cap(f"ds_write_b32 v{ah+1}, v{t} offset:{mt*1024}", box)]
        def srd_(mt): return f"ds_read_b128 {V(CB[mt],4)}, v{ah} offset:{mt*1024}"
        def sfin(mt):
            t = CB[mt]; m = t + 8; r = t + 9; s_ = t + 10; b = t + 12
            return self.stat_fin(t, m, r, s_) + [
                f"v_cvt_pk_bf16_f32 v{b}, -v{m}, -v{m}", f"v_lshlrev_b32 v{t}, 16, v{b}", f"v_add_f32 v{t}, v{t}, v{m}",
                f"v_cvt_pk_bf16_f32 v{b+1}, -v{t}, v{s_}", f"v_and_b32 v{t+1}, 0xffff0000, v{b+1}", f"v_sub_f32 v{t+1}, v{s_}, v{t+1}",
                f"v_cvt_pk_bf16_f32 v{b+3}, -v{t}, v{t+1}", f"v_mov_b32 v{b+2}, v{b}",
                f"v_mul_f32 v{t}, v{r}, v{r}", f"v_mul_f32 v{m}, {hx(f2u(C1))}, v{r}", f"v_mul_f32 v{t}, {hx(f2u(0.044715))}, v{t}",
                f"v_mul_f32 v{r}, v{t}, v{m}"]
        rt = {}
        def rd(k):
            c, i = divmod(k, 32); rt[k] = []
            return (self.cap(f"ds_read_b128 {V(RG+4*(k%8),4)}, v{XQ+i//8} offset:{(c>>1)*0x8000+(i%8)*1024}", rt[k])[0], 5)
        def chain(c):
            n, mt = c & 1, c >> 1
            return [self.mf(AC[n], A((2 * i + n) * 4, 4), V(RG + 4 * (i % 8), 4), '0' if i == 0 else None) for i in range(32)] + \
                   [self.mf(AC[n], V(vAUG + 4 * n, 4), V(CB[mt] + 12, 4))]
        def w2r(f):
            if f < 16: return V(vWO + 4 * f, 4)
            if f < 40: return A(8 * (f - 16), 4)
            return A(8 * (f - 24) + 4, 4)
        blk = {}
        def gld(dst, voff, srd, base, sreg, extra, ks):
            o = []
            if blk.get(sreg) != (extra, ks // 4):
                blk[sreg] = (extra, ks // 4); o.append(f"s_add_u32 s{sreg}, s{base}, {hx(extra + (ks // 4) * 4096)}")
            return o + [self.ld(dst, voff, srd, f"s{sreg}", (ks % 4) * 1024, op('w2fl', 'sc1') if srd == sWS else "sc1")]
        def w2(f): return [] if op('now2') else gld(w2r(f), vL16x, sWS, sW2o + (f & 1), sT0 + (f & 1), 0, KS[f >> 1])
        HQ = [(mt, p) for mt in range(2) for p in range(28)]
        def hr(q): r = q % 24; return A(8 * (24 + r), 4) if r < 8 else A(8 * (r - 8) + 4, 4)
        def hl(q): return gld(hr(q), vL16, sG, sHl, sT4, HQ[q][0] * 0x1c000, KS[HQ[q][1]])
        hb = [[] for _ in range(4)]
        def gel(c):
            n, mt = c & 1, c >> 1
            def f(half, reg):
                def g_():
                    if mt: I(f"s_add_u32 s{sT2}, s{sHs+n}, 0x1c000")
                    hb[c].extend(self.dual([self.st(V(reg, 4), vL16, sG, f"s{sT2 if mt else sHs+n}", half * 1024)]))
                return (g_, 20)
            return self.gelu(AC[n], CB[mt] + 8, CB[mt] + 9, CB[mt] + 10, GT, GP, f)
        def spread(ev, items, g0, g1):
            for k, it in enumerate(items): add(ev, g0 + (k * (g1 - g0 + 1)) // len(items), *it)
        d0 = self.d0; d1 = [[], []]; sb = [[], []]
        for h in range(2):
            e.wait(*d0[h]); e.seq([rd(4 * h + i) for i in range(4)])
        ev = [{} for _ in range(8)]
        LEN = [33, 33, 33, 33, 32, 24, 32, 24]
        def at(c, g):
            while g >= LEN[c]: g -= LEN[c]; c += 1
            return ev[c], g
        def spr(c, items, g0, g1):
            for k, it in enumerate(items): add(*at(c, g0 + (k * (g1 - g0 + 1)) // len(items)), *it)
        B1 = 3
        s0 = ssum(0, sb[0]); add(ev[0], 0, *s0[:4]); add(ev[0], 1, *s0[4:]); add(ev[0], B1, self.bar(sb[0]), srd_(0))
        pb, pi, pc, pl, DW, B2 = op('xp1', (6, 19, 29, 42, 55, 59))
        add(*at(0, pb), self.pub(F_X1 + 1, self.b1)); add(*at(0, pi), self.pissue(F_X1 + 1, PR)); add(*at(0, pc), self.pcheck(F_X1 + 1, PR))
        spr(0, self.xdma(1, d1), pc, pl)
        s1 = ssum(1, sb[1]); add(*at(0, DW), self.wt(d1[1]), *s1[:4]); add(*at(0, DW + 1), *s1[4:]); add(*at(0, B2), self.bar(sb[1]), srd_(1))
        for (c, f0, f1, g0, g1) in op('w2', [(0, 0, 10, 7, 28), (1, 10, 16, 12, 31), (2, 16, 36, 0, 32), (3, 36, 40, 0, 5)]): spr(c, [w2(f) for f in range(f0, f1)], g0, g1)
        HP = op('hp', [(5, 36, 48, 77), (5, 34, 45, 68), (5, 26, 37, 68), (3, 26, 37, 60)])
        Q0 = [0, 16, 28, 44, 56]
        for c in range(4):
            pb, pi, pc, pl = HP[c]
            add(*at(c + 2, pb), self.pub(F_H + c, hb[c])); add(*at(c + 2, pi), self.pissue(F_H + c, PR)); add(*at(c + 2, pc), self.pcheck(F_H + c, PR))
            spr(c + 2, [hl(q) for q in range(Q0[c], Q0[c + 1])], pc, pl)
        def wq(f): return gld(V(vWO + 4 * f, 4), vL16, sWS, sWQo, sT1, 0, f)
        if op('wqp') is not None:
            add(*at(3, op('wqp', 3)), f"s_and_b32 s{sT5}, s{sg}, 3", f"s_lshl_b32 s{sT5}, s{sT5}, 12", f"s_add_u32 s{sT5}, s{sT5}, s{sWQo}",
                f"v_lshlrev_b32 v{vJ}, 6, v{vLane}", "!" + self.ld(V(vJ), vJ, sWS, f"s{sT5}", 0, "sc1", w=1))
        add(ev[4], 0, f"s_lshl_b32 s{sT5}, s{sW8K}, 1", f"v_add_u32 v{XQ}, s{sT5}, v{vL16}")
        spr(4, [[f"ds_read_b128 {w2r(f)}, v{XQ} offset:{((f-40)>>2)*4096 + (f&1)*2048 + ((f>>1)&1)*1024}"] for f in range(40, 56)], *op('w2l', (25, 36)))
        GE = op('ge', (27, 27, 27, 24))
        pos = lambda k: k + k // 32
        cnt = {}; gap = {}
        assert B2 >= pos(56)
        for k in range(8, 128):
            g = max(pos(k - 7), B1 if k < 64 else DW if k < 72 else B2)
            while cnt.get(g, 0) >= 2: g += 1
            cnt[g] = cnt.get(g, 0) + 1; gap[k] = g
            add(ev[g // 33], g % 33, rd(k))
        for k in range(8, 128, 4):
            g = pos(k) - 1
            if gap[k + 3] <= g - 2: add(ev[g // 33], g % 33, self.wt(rt[k + 3]))
        fill = sfin(0) + [f"v_mov_b32 v{RES(1)+8+i}, 0" for i in range(8)]
        for i in range(8): fill += [f"v_and_b32 v{GT}, 0xffff0000, v{vB2+i//2}" if i & 1 else f"v_lshlrev_b32 v{GT}, 16, v{vB2+i//2}", f"v_add_f32 v{RES(1)+i}, v{RES(1)+i}, v{GT}"]
        self.sched(chain(0), ev[0], fill, B1 + 3, 27, name="c0")
        sf = sfin(1); spr(0, [[x] for x in sf], B2 + 2, B2 + 7)
        self.sched(chain(1), ev[1], gel(0), 1, GE[0], name="c1")
        self.sched(chain(2), ev[2], gel(1), 1, GE[1], name="c2")
        self.sched(chain(3), ev[3], gel(2), 1, GE[2], name="c3")
        def part(c):
            return [self.mf(vACC + 32 * HQ[q][0] + 16 * n, w2r(2 * HQ[q][1] + n), hr(q), '0' if (HQ[q][1] == 0 and n == 1) else None) for q in range(Q0[c], Q0[c + 1]) for n in range(2)]
        self.sched(part(0), ev[4], gel(3), 1, GE[3], name="A0")
        self.sched(part(1), ev[5], name="B0")
        TM = 176; PK = 248
        w = self.exw(vACC, 0); r = self.exr(TM, 0); XB, F1 = op('x2b', (7, 21))
        for g, it in {1: w[:2], 2: w[2:4], 3: w[4:], XB: [self.bar()] + r[:3], XB + 1: r[3:]}.items(): add(ev[6], g, *it)
        I(f"s_cmp_lg_u32 s{sLayer}, 0"); I("s_cbranch_scc1 L_final")
        snap = (e.now, copy.deepcopy(e.h), list(e.vmq), list(e.lgq), set(e.und), self.nst)
        def last(ex, fill, fin):
            for g, it in ex.items():
                if g < 56: ev_, g_ = at(6, g); ev_[g_] = ev_.get(g_, []) + it
            self.sched(part(2), ev[6], fill, XB + 3, F1, name='A1')
            self.sched(part(3), ev[7], name='B1')
            e.seq(ex.get(56, []))
            e.seq(self.exw(vACC + 32, 0x8000))
            for g in range(57, 64): e.seq(ex.get(g, []))
            e.wait_lg0(); e.barrier()
            e.seq(self.exr(TM, 0x8000)); e.seq(fin)
            self.stamp("f2done")
        keep = [dict(ev[6]), dict(ev[7])]
        ex = {}; fill = []; b1 = []
        g0, g1 = op('wq', (31, 48))
        for f in range(16): add(ex, g0 + f * (g1 - g0 + 1) // 16, *wq(f))
        self.q2_pre(ex, fill, TM, PK)
        last(ex, fill, self.xfin(1, TM, PK + 4, G_X2, b1, True))
        if self.stamps: self.dump_stamps(0)
        self.qkv2(b1)
        e.nop(4); I("s_branch L_loop")
        e.label("L_final")
        e.now, e.h, e.vmq[:], e.lgq[:], e.und, self.nst = snap; e.mf_t = None
        ev[6], ev[7] = keep; names = list(self.stnames)
        if op('wb'):
            I(f"s_lshr_b32 s{sT5}, s2, 3"); I(f"s_or_b32 s{sT5}, s{sT5}, s{sw}"); I("s_cbranch_scc1 L_nowb")
            e.begin_opt(); I("!buffer_wbl2 sc1"); e.end_opt(); e.label("L_nowb")
        ofl = op('ofl', '')
        fin = lambda mt, pk: self.exadd(RES(mt), TM, pk) + self.pack(PK + 4 * mt, RES(mt)) + [self.st(V(PK + 4 * mt, 4), vT + 5, sTA, f"s{sT6 if mt else sRow}", fl=ofl)]
        last({4: [lambda: self.srd(sTA, pOUT, 0x200000), f"s_add_u32 s{sT6}, s{sRow}, 0x8000"], 5: self.rowaddr(vT + 5, vT + 4)}, fin(0, False), fin(1, True))
        self.stnames = names
        if self.stamps: self.rt(63); self.dump_stamps(256)
        if not self.opt.get('nofw'): e.wait_vm0()
        dg = self.opt.get('diag')
        if dg:
            if dg[4]: I("s_lshr_b32 s1, s1, 4")
            I(f"s_mul_i32 s1, s1, {dg[3]}"); I("s_min_u32 s1, s1, 50000")
            I(f"s_memrealtime s[{sM}:{sM+1}]"); e.wait_lg0(force=True); I(f"s_mov_b32 s0, s{sM}")
            e.label("L_dgs")
            I(f"s_memrealtime s[{sM}:{sM+1}]"); e.wait_lg0(force=True); I(f"s_sub_u32 s3, s{sM}, s0"); I("s_cmp_lt_u32 s3, s1"); I("s_cbranch_scc1 L_dgs")
        e.label("L_end")
        I("s_endpgm")
    def dump_stamps(self, off):
        I = self.I
        I(f"s_lshl_b32 s{sT5}, s2, 2"); I(f"s_add_u32 s{sT5}, s{sT5}, s{sw}"); I(f"s_lshl_b32 s{sT5}, s{sT5}, 9"); I(f"s_add_u32 s{sT5}, s{sT5}, {hx(STAMP)}")
        I(f"v_lshlrev_b32 v{vT+2}, 2, v{vLane}")
        I(self.st("v47", vT + 2, sWS, f"s{sT5}", off, w=1))

    def build(self):
        e = self.e
        self.prologue()
        self.qkv1()
        e.label("L_loop")
        self.attention(); self.wo(); self.ffn()
        ref = open(f"cdna_kernels/{NAME}.s.ref").read()
        head = ref[:ref.index("; @launch")]
        out = head + f"; @launch grid=(256,1,1) block=(256,1,1) lds={LDS_BYTES}\n"
        out += f""".amdgcn_target "amdgcn-amd-amdhsa--gfx950"
.text
.globl {NAME}_kernel
.p2align 8
.type {NAME}_kernel,@function
{NAME}_kernel:
"""
        body = e.text()
        out += body + "L_codeend:\n    s_endpgm\n"
        out += f""".section .rodata,"a"
.p2align 6
.amdhsa_kernel {NAME}_kernel
  .amdhsa_next_free_vgpr 512
  .amdhsa_next_free_sgpr 102
  .amdhsa_accum_offset 256
  .amdhsa_group_segment_fixed_size 0
  .amdhsa_kernarg_size 104
  .amdhsa_user_sgpr_count 2
  .amdhsa_user_sgpr_kernarg_segment_ptr 1
  .amdhsa_system_sgpr_workgroup_id_x 1
.end_amdhsa_kernel
"""
        out = out.replace("CODE_SPAN", "(L_end-L_nopf-2048)")
        return out

if __name__ == "__main__":
    import argparse
    ap = argparse.ArgumentParser()
    ap.add_argument("-o", default=f"cdna_kernels/{NAME}.s")
    ap.add_argument("--stamps", action="store_true"); ap.add_argument("--fsa", action="store_true"); ap.add_argument("--fsm", action="store_true")
    ap.add_argument("--nopf", action="store_true"); ap.add_argument("--nops", action="store_true")
    ap.add_argument("--opt", default="{}")
    a = ap.parse_args()
    g = Gen(stamps=a.stamps, force_slow_attn=a.fsa, force_slow_mode=a.fsm, codepf=not a.nopf, opt=eval(a.opt))
    txt = g.build()
    if a.stamps: txt = txt.replace("; @launch", "; stamps: " + ",".join(g.stnames) + "\n; @launch", 1)
    open(a.o, "w").write(txt)
    print("written", a.o, len(txt), "bytes; nops", g.e.nops)
    if a.nops:
        for n, t in g.e.nop_log: print(n, t)
```

```python
import sys, os, math, struct, copy
sys.path.insert(0, os.path.dirname(os.path.abspath(__file__)))
from em import *

NAME = "interleave_layers__grouped_kv_mqa__dense_activation_gelu__prompt"
def f2u(x): return struct.unpack('<I', struct.pack('<f', x))[0]
def hx(x): return hex(x & 0xffffffff)

GF = 0x10000; KVB = 0x40000; W1S = 0x100000; W2S = 0x300000; WOS = 0x500000; WQS = 0x580000; STAMP = 0x600000; GRP = 0x800000
WSLIM = 0x800000
G_FL = 0; G_ST = 0x2000; G_X1 = 0x10000; G_X2 = 0x10000; G_O = 0x3c000; G_H = 0x20000; G_SZ = 0x58000; G_STR = 0x60000
BIG = 0x10000000
L_V = 0x10000; L_X = 0x10000; L_KVR = 0x20000; L_ST = 0x20000; L_CSR = 0x20800; L_CST = 0x20c00; L_ONES = 0x21000; L_WKV = 0x24000
LDS_BYTES = 0x28000
sWS, sG, sKV, sWQ, sTA, sTB = 4, 8, 12, 16, 20, 24
pX, pWQ, pWK, pWV, pWO, pW1, pB1, pW2, pB2, pOUT, pDBG, pWS = 28, 30, 32, 34, 36, 40, 42, 44, 46, 48, 50, 52
sg, sj, sw, sLayer, sMode, sMyF = 54, 55, 56, 57, 58, 59
sN = 60
sT0, sT1, sT2, sT3, sT4, sT5, sT6, sT7 = 62, 63, 64, 65, 66, 67, 68, 69
sCnt = 70; sOnes = 71
sM = 72
sP1K = 74
sW8K = 75
sW1K = 76
sFlSt = 77
sFlPo = 78
sKVFs = 79
sKVFp = 80
sQ = 81
sW1o = 85
sWOo = 87
sW2o = 89
sHs = 91
sHl = 93
sRow = 94
sKVst = 95
sWQo = 96
sWQl = 98
sSwD = 99
sAug = 100
sSwF = 101
sStS = 32; sStL = 33
F_O, F_X1, F_H, F_X2 = 0, 2, 4, 8
vL16, vL16x, vPoll, vN, vEW, vER, vIdx, vV = 1, 2, 3, 4, 6, 7, 10, 11
vFl, vP8 = 45, 46
vCSKV, vCSQ, vB2, vAUG = 12, 16, 24, 28
vT = 36
vACC = 48
def RES(mt): return vACC + 32 * mt
vF0 = 56; vF1 = 88
vWO = 112
vS = 176; vO = 208; vQ = 240
vLane = 0
vInc = vT + 2; vK2 = vT + 3; vJ = vT + 8; vMA = 65; vSA = 66; vMD = 67; vSD = 68
vSTAMP = 111 ; vSTAMP0 = 110
POLL_LIM = 1 << 17
RTL = {'attn0': 59, 'attn1': 60, 'f2done': 61}

C1 = -2.0 * math.sqrt(2.0 / math.pi) * math.log2(math.e)
C2 = 0.044715 * C1
QS = 0.25 * math.log2(math.e)


class Gen:
    def __init__(self, stamps=False, force_slow_attn=False, force_slow_mode=False, codepf=True, opt=None):
        self.opt = opt or {}
        self.e = Em(); self.stamps = stamps; self.fsa = force_slow_attn; self.fsm = force_slow_mode
        self.codepf = codepf
        self.nst = 0; self.stnames = []
    def I(self, t): return self.e.I(t)
    def srd(self, d, p, n):
        I = self.I
        I(f"s_mov_b32 s{d}, s{p}"); I(f"s_mov_b32 s{d+1}, s{p+1}")
        I(f"s_mov_b32 s{d+2}, {hx(n)}"); I(f"s_mov_b32 s{d+3}, 0x20000")
    def stamp(self, name):
        e = self.e
        dg = self.opt.get('diag')
        if dg and name in dg[:2]:
            lab = e.newlab("L_dg")
            if name != 'start': e.I(f"s_cmp_lg_u32 s{sLayer}, {dg[2][dg.index(name)]}"); e.I(f"s_cbranch_scc1 {lab}")
            e.wait_lg0()
            e.I(f"{'s_memtime' if dg[4] else 's_memrealtime'} s[{sM}:{sM+1}]"); e.wait_lg0(force=True)
            e.I(f"s_mov_b32 s0, s{sM}" if name == dg[0] else f"s_sub_u32 s1, s{sM}, s0")
            e.label(lab)
        if not self.stamps: return
        e.I(f"s_memtime s[{sM}:{sM+1}]"); e.wait_lg0(force=True)
        e.I(f"v_writelane_b32 v47, s{sM}, {self.nst}")
        self.stnames.append(name); self.nst += 1
        if name in RTL: self.rt(RTL[name])
    def rt(self, lane):
        if not self.stamps: return
        e = self.e
        e.I(f"s_memrealtime s[{sM}:{sM+1}]"); e.wait_lg0(force=True)
        e.I(f"v_writelane_b32 v47, s{sM}, {lane}")
    def ld(self, dst, voff, srd, soff, imm=0, fl="", w=4):
        mn = {4: "dwordx4", 2: "dwordx2", 1: "dword"}[w]
        return f"buffer_load_{mn} {dst}, v{voff}, s[{srd}:{srd+3}], {soff} offen" + (f" offset:{imm}" if imm else "") + (" " + fl if fl else "")
    def dma(self, voff, srd, soff, imm=0, fl=""):
        return f"buffer_load_dwordx4 v{voff}, s[{srd}:{srd+3}], {soff} offen" + (f" offset:{imm}" if imm else "") + (" " + fl if fl else "") + " lds"
    def st(self, src, voff, srd, soff, imm=0, fl="", w=4):
        mn = {4: "dwordx4", 2: "dwordx2", 1: "dword"}[w]
        return f"buffer_store_{mn} {src}, v{voff}, s[{srd}:{srd+3}], {soff} offen" + (f" offset:{imm}" if imm else "") + (" " + fl if fl else "")
    def dual(self, stores):
        e = self.e
        lab = e.newlab("L_sl"); back = e.newlab("L_bk")
        regs = []
        for s in stores: regs += regs_of(s)
        e._autowait(regs)
        e.I(f"s_cmp_lg_u32 s{sMode}, 0"); e.I(f"s_cbranch_scc1 {lab}")
        toks = [e.I(s) for s in stores]
        e.label(back)
        e.tail += [lab + ":", "    s_nop 7", "    s_nop 7"]
        e.tail += ["    " + (s + " sc1" if s.startswith("buffer_") else s) for s in stores]
        e.tail += [f"    s_branch {back}"]
        return toks
    def publish(self, slot):
        e = self.e
        e.wait_vm0()
        e.I("s_mov_b64 exec, 1")
        self.dual([self.st(V(vN, 2), vPoll, sG, f"s{sFlSt}", slot * 8, w=2)])
        e.I("s_mov_b64 exec, -1")
    def poll(self, srd, soff, imm, nl, kv=False):
        e = self.e
        lab = e.newlab("L_poll")
        if nl < 64: e.I(f"s_mov_b64 exec, {hex((1 << nl) - 1)}")
        e.I(f"s_mov_b32 s{sCnt}, 0")
        e.label(lab)
        e.I(self.ld(V(vT, 2), vPoll, srd, soff, imm, "sc1", w=2))
        e.I(f"s_add_u32 s{sCnt}, s{sCnt}, 1"); e.I(f"s_cmp_gt_u32 s{sCnt}, {POLL_LIM}"); e.I("s_cbranch_scc1 L_end")
        e.wait_vm0()
        if kv: e.I(f"v_and_b32 v{vT}, -16, v{vT}")
        e.I(f"v_cmp_ne_u64 vcc, s[{sN}:{sN+1}], {V(vT, 2)}")
        e.I(f"s_cbranch_vccnz {lab}")
        if nl < 64: e.I("s_mov_b64 exec, -1")
    def gpoll(self, slot): self.poll(sG, f"s{sFlPo}", slot * 8, 8)
    def pub(self, slot, toks):
        def f():
            self.e.wait(*toks)
            self.dual([self.st(V(vN, 2), vFl, sG, f"s{sFlSt}", slot * 8, w=2)])
        return (f, 24)
    def pissue(self, slot, r): return self.ld(V(r, 2), vP8, sG, f"s{sFlPo}", slot * 8, "sc1", w=2)
    def pcheck(self, slot, r):
        def f():
            e = self.e; lab = e.newlab("L_sp"); back = e.newlab("L_sb")
            e.I(f"v_cmp_ne_u64 vcc, s[{sN}:{sN+1}], {V(r, 2)}"); e.I(f"s_cbranch_vccnz {lab}"); e.label(back)
            e.tail += [lab + ":", f"    s_mov_b32 s{sCnt}, 0", lab + "a:", "    " + self.pissue(slot, r),
                       f"    s_add_u32 s{sCnt}, s{sCnt}, 1", f"    s_cmp_gt_u32 s{sCnt}, {POLL_LIM}", "    s_cbranch_scc1 L_end",
                       "    s_waitcnt vmcnt(0)", f"    v_cmp_ne_u64 vcc, s[{sN}:{sN+1}], {V(r, 2)}", f"    s_cbranch_vccnz {lab}a", f"    s_branch {back}"]
        return (f, 16)
    def cap(self, text, box):
        def f(): box.append(self.e.I(text))
        return (f, 10)
    def dcap(self, stores, box):
        def f(): box.extend(self.dual(stores))
        return (f, 8 + 10 * len(stores))
    def sched(self, mfmas, ev, fill=(), f0=0, f1=None, name=None):
        for g in self.opt.get('fst', {}).get(name, ()): ev.setdefault(g, []).append(self.stp(f"{name}.{g}"))
        self._sched(mfmas, ev, fill, f0, f1)
        if name and name not in self.opt.get('nost', ()): self.stamp(name)
    def _sched(self, mfmas, ev, fill, f0, f1):
        e = self.e; n = len(mfmas); fill = list(fill); f1 = n - 1 if f1 is None else f1
        evc = [sum(cost(x) for x in ev.get(i, [])) for i in range(n)]
        tot = sum(cost(x) for x in fill) + sum(evc[f0:f1 + 1]); done = 0
        e.seq(ev.get(-1, []))
        for i in range(n):
            e.I(mfmas[i]); e.seq(ev.get(i, []))
            if f0 <= i <= f1:
                done += evc[i]
                while fill and (done + cost(fill[0]) / 2 <= tot * (i - f0 + 1) / (f1 - f0 + 1) or i == f1):
                    done += cost(fill[0]); e.seq([fill.pop(0)])
    def rowstats(self, x, t, mt, box, pk=True):
        if pk:
            o = [f"v_pk_mul_f32 {V(t+2,2)}, {V(x,2)}, {V(x,2)}", f"v_pk_add_f32 {V(t,2)}, {V(x,2)}, {V(x+2,2)}"]
            for i in (2, 4, 6):
                o.append(f"v_pk_fma_f32 {V(t+2,2)}, {V(x+i,2)}, {V(x+i,2)}, {V(t+2,2)}")
                if i > 2: o.append(f"v_pk_add_f32 {V(t,2)}, {V(t,2)}, {V(x+i,2)}")
            o += [f"v_add_f32 v{t}, v{t}, v{t+1}", f"v_add_f32 v{t+2}, v{t+2}, v{t+3}"]
        else:
            o = [f"v_mul_f32 v{t+2}, v{x}, v{x}", f"v_add_f32 v{t}, v{x}, v{x+1}", f"v_fmac_f32 v{t+2}, v{x+1}, v{x+1}"]
            for i in range(2, 8): o += [f"v_add_f32 v{t}, v{t}, v{x+i}", f"v_fmac_f32 v{t+2}, v{x+i}, v{x+i}"]
        o.append(f"s_add_u32 s{sT2}, s{sStS}, {mt*0x2000}")
        o += [f"v_permlane32_swap_b32 v{t}, v{t+2}", f"v_add_f32 v{t}, v{t}, v{t+2}",
              self.dcap([self.st(V(t), vL16, sG, f"s{sT2}", w=1)], box)]
        return o
    def mf(self, d, a, b, c=None):
        return f"v_mfma_f32_32x32x16_bf16 {V(d,16)}, {a}, {b}, {V(d,16) if c is None else c}"
    def mf16(self, d, a, b, first):
        return f"v_mfma_f32_16x16x32_bf16 {V(d,4)}, {a}, {b}, {'0' if first else V(d,4)}"
    def exw(self, acc, area, ew=vEW):
        return [f"ds_write_b128 v{ew}, {V(acc+8*q+4*h,4)} offset:{area+(q-1)*2048+h*1024}" for q in (1, 2, 3) for h in (0, 1)]
    def exr(self, tmp, area, er=vER):
        return [f"ds_read_b128 {V(tmp+8*(q-1)+4*h,4)}, v{er+q-1} offset:{area+h*1024}" for q in (1, 2, 3) for h in (0, 1)]
    def exadd(self, dst, tmp, pk=True):
        if pk: return [f"v_pk_add_f32 {V(dst+i,2)}, {V(dst+i,2)}, {V(tmp+8*q+i,2)}" for q in range(3) for i in (0, 2, 4, 6)]
        return [f"v_add_f32 v{dst+i}, v{dst+i}, v{tmp+8*q+i}" for q in range(3) for i in range(8)]
    def pack(self, dst, src, n=4):
        return [f"v_cvt_pk_bf16_f32 v{dst+i}, v{src+2*i}, v{src+2*i+1}" for i in range(n)]
    def dots(self, s, q, x, n):
        out = []
        for i in range(n):
            out.append((f"v_dot2c_f32_bf16 v{s}, s{sOnes}, v{x+i}", 8))
            out.append((f"v_dot2c_f32_bf16 v{q}, v{x+i}, v{x+i}", 8))
        return out
    def stat_write(self, s, q, addr, mt):
        return [f"v_permlane32_swap_b32 v{s}, v{q}", f"v_add_f32 v{s}, v{s}, v{q}", f"ds_write_b32 v{addr}, v{s} offset:{mt*1024}"]
    def stat_fin(self, t, m, r, sd=None):
        o = [f"v_add_f32 v{t}, v{t}, v{t+1}", f"v_add_f32 v{t+2}, v{t+2}, v{t+3}", f"v_add_f32 v{t}, v{t}, v{t+2}",
             f"v_mul_f32 v{m}, {hx(f2u(1/512))}, v{t}", f"v_mul_f32 v{t}, {hx(f2u(1/512))}, v{t}",
             f"v_permlane32_swap_b32 v{m}, v{t}",
             f"v_fma_f32 v{t}, -v{m}, v{m}, v{t}", f"v_max_f32 v{t}, 0, v{t}", f"v_add_f32 v{t}, {hx(f2u(1e-5))}, v{t}",
             f"v_rsq_f32 v{r}, v{t}"]
        if sd is not None: o.append(f"v_mul_f32 v{sd}, v{t}, v{r}")
        return o

    def prologue(self):
        e = self.e; I = e.I
        if self.opt.get('diag', [0])[0] == 'first': I("s_memrealtime s[74:75]")
        I("s_cmp_ge_u32 s2, 256"); I("s_cbranch_scc1 L_end")
        I("s_load_dwordx16 s[28:43], s[0:1], 0"); I("s_load_dwordx8 s[44:51], s[0:1], 64"); I("s_load_dwordx2 s[52:53], s[0:1], 96")
        if self.stamps: I("v_mov_b32 v47, 0")
        I(f"v_lshrrev_b32 v{vT}, 6, v0"); I(f"v_and_b32 v{vLane}, 63, v0")
        I(f"v_readfirstlane_b32 s{sw}, v{vT}")
        I(f"s_and_b32 s{sg}, s2, 7"); I(f"s_lshl_b32 s{sg}, s{sg}, 2"); I(f"s_lshr_b32 s{sT0}, s2, 6"); I(f"s_add_u32 s{sg}, s{sg}, s{sT0}")
        I(f"s_lshr_b32 s{sj}, s2, 3"); I(f"s_and_b32 s{sj}, s{sj}, 7")
        I(f"s_and_b32 s{sw}, s{sw}, 3")
        I(f"v_lshlrev_b32 v{vL16}, 4, v{vLane}")
        I(f"v_lshrrev_b32 v{vT+4}, 4, v{vLane}"); I(f"v_and_b32 v{vT+5}, 15, v{vLane}")
        for qq in range(4):
            I(f"v_add_u32 v{vT+6}, {4*qq}, v{vT+4}")
            I(f"v_xor_b32 v{vT+7}, v{vT+6}, v{vT+5}")
            I(f"v_add_u32 v{vT+6}, {3*qq}, v{vT+4}")
            I(f"v_lshlrev_b32 v{vT+6}, 10, v{vT+6}")
            I(f"v_lshl_add_u32 v{vT+qq}, v{vT+7}, 4, v{vT+6}")
        if self.opt.get('diag', [0])[0] == 'first': e.wait_lg0(force=True); I("s_mov_b32 s0, s74")
        I(f"s_lshl_b32 s{sW1K}, s{sw}, 10"); I(f"s_lshl_b32 s{sW8K}, s{sw}, 13")
        I(f"s_lshl_b32 s{sT1}, s{sw}, 12")
        I(f"s_add_u32 m0, s{sT1}, {hx(L_WKV)}")
        I(f"s_lshl_b32 s{sT2}, s{sg}, 16"); I(f"s_lshl_b32 s{sT3}, s{sw}, 8"); I(f"s_add_u32 s{sT2}, s{sT2}, s{sT3}")
        I(f"s_lshl_b32 s{sT3}, s{sw}, 14")
        I(f"s_lshr_b32 s{sT4}, s{sj}, 1")
        e.wait_lg0(force=True)
        self.stamp("start"); self.rt(62)
        I(f"s_load_dwordx2 s[{sN}:{sN+1}], s[{pWS}:{pWS+1}], 0")
        I(f"s_bitcmp1_b32 s{sj}, 0"); I(f"s_cselect_b64 s[{sTB}:{sTB+1}], s[{pWV}:{pWV+1}], s[{pWK}:{pWK+1}]")
        I(f"s_mov_b32 s{sTB+2}, 16384"); I(f"s_mov_b32 s{sTB+3}, 0x20000")
        self.srd(sTA, pX, 0x200000)
        self.tk_wkv = [I(self.dma(vL16, sTB, f"s{sT1}", q * 1024)) for q in range(4)]
        self.tk_x = self.x_dma(0)
        self.srd(sWQ, pWQ, 0x80000)
        I(f"s_add_u32 s{sWQl}, s{sT3}, {hx(L_V)}")
        I(f"s_lshl_b32 s{sT5}, s{sw}, 17"); I(f"s_lshl_b32 s{sT6}, s{sj}, 7"); I(f"s_add_u32 s{sT5}, s{sT5}, s{sT6}")
        I(f"s_lshr_b32 s{sT6}, s{sw}, 1"); I(f"s_lshl_b32 s{sT6}, s{sT6}, 6")
        I(f"s_add_u32 s{sWQo}, s{sT5}, s{sT6}"); I(f"s_xor_b32 s{sT6}, s{sT6}, 64"); I(f"s_add_u32 s{sWQo+1}, s{sT5}, s{sT6}")
        if self.opt.get('wqp0', 1):
            I(f"s_lshr_b32 s{sT5}, s2, 3"); I(f"s_lshl_b32 s{sT5}, s{sT5}, 14"); I(f"s_add_u32 s{sT5}, s{sT5}, s{sT1}")
            I(f"v_lshlrev_b32 v{vT+4}, 6, v{vLane}"); I("!" + self.ld(V(vAUG + 2), vT + 4, sWQ, f"s{sT5}", 0, w=1))
        I(f"s_lshl_b32 s{sP1K}, s{sj}, 2"); I(f"s_add_u32 s{sP1K}, s{sP1K}, s{sw}")
        I(f"s_lshl_b32 s{sT5}, s{sP1K}, 5")
        I(f"s_lshl_b32 s{sRow}, s{sg}, 16"); I(f"s_add_u32 s{sRow}, s{sRow}, s{sT5}")
        if self.codepf:
            I(f"s_getpc_b64 s[{sT6}:{sT7}]")
            I(f"s_lshl_b32 s{sT5}, s{sP1K}, 11")
            I(f"s_add_u32 s{sT6}, s{sT6}, s{sT5}"); I(f"s_addc_u32 s{sT7}, s{sT7}, 0")
            I(f"v_and_b32 v{vT+8}, 15, v{vLane}"); I(f"v_lshlrev_b32 v{vT+8}, 7, v{vT+8}")
            I(f"v_mov_b32 v{vT+9}, s{sT7}"); I(f"v_add_co_u32 v{vT+8}, vcc, s{sT6}, v{vT+8}"); I(f"v_addc_co_u32 v{vT+9}, vcc, 0, v{vT+9}, vcc")
            I(f"s_cmp_ge_u32 s{sT5}, CODE_SPAN"); I("s_cbranch_scc1 L_nopf")
            e.begin_opt(); I(f"global_load_dword v{vAUG+1}, v[{vT+8}:{vT+9}], off"); e.end_opt()
            e.label("L_nopf")
        I(f"s_lshl_b32 s{sFlSt}, s{sP1K}, 7"); I(f"s_add_u32 s{sFlSt}, s{sFlSt}, {hx(G_FL)}")
        I(f"s_add_u32 s{sFlPo}, s{sW1K}, {hx(G_FL)}")
        I(f"s_lshl_b32 s{sP1K}, s{sP1K}, 10")
        self.srd(sWS, pWS, WSLIM)
        I(f"s_mul_i32 s{sT5}, s{sg}, {hx(G_STR)}"); I(f"s_add_u32 s{sT5}, s{sT5}, {hx(GRP)}")
        I(f"s_add_u32 s{sG}, s{pWS}, s{sT5}"); I(f"s_addc_u32 s{sG+1}, s{pWS+1}, 0"); I(f"s_mov_b32 s{sG+2}, {hx(G_SZ)}"); I(f"s_mov_b32 s{sG+3}, 0x20000")
        I(f"s_add_u32 s{sKV}, s{pWS}, {hx(KVB)}"); I(f"s_addc_u32 s{sKV+1}, s{pWS+1}, 0"); I(f"s_mov_b32 s{sKV+2}, 0x20000"); I(f"s_mov_b32 s{sKV+3}, 0x20000")
        I(f"s_mov_b32 s{sLayer}, 0"); I(f"s_mov_b32 s{sMode}, 1"); I(f"s_mov_b32 s{sOnes}, 0x3f803f80")
        I(f"s_lshr_b32 s{sT5}, s{sg}, 3"); I(f"s_and_b32 s{sT6}, s{sg}, 7")
        I(f"s_lshl_b32 s{sKVFs}, s{sT5}, 6"); I(f"s_lshl_b32 s{sT7}, s{sT6}, 2"); I(f"s_add_u32 s{sKVFs}, s{sKVFs}, s{sT7}")
        I(f"s_add_u32 s{sKVst}, s{sT7}, s{sT5}")
        I(f"s_lshr_b32 s{sT7}, s{sj}, 2"); I(f"s_lshl_b32 s{sT7}, s{sT7}, 5")
        I(f"s_add_u32 s{sKVFs}, s{sKVFs}, s{sT7}"); I(f"s_lshl1_add_u32 s{sKVst}, s{sT7}, s{sKVst}")
        I(f"s_and_b32 s{sT7}, s{sj}, 3"); I(f"s_add_u32 s{sKVFs}, s{sKVFs}, s{sT7}")
        I(f"s_lshl_b32 s{sKVFs}, s{sKVFs}, 7"); I(f"s_add_u32 s{sKVFs}, s{sKVFs}, {hx(GF)}")
        I(f"s_add_u32 s{sKVFp}, s{sW8K}, {hx(GF)}")
        I(f"s_lshl_b32 s{sKVst}, s{sKVst}, 10")
        I(f"s_and_b32 s{sT5}, s{sT4}, 1"); I(f"s_lshl_b32 s{sT5}, s{sT5}, 8"); I(f"s_and_b32 s{sT6}, s{sj}, 1")
        I(f"s_lshl_b32 s{sT5}, s{sT5}, s{sT6}"); I(f"s_lshl_b32 s{sT6}, s{sT6}, 15")
        I(f"s_add_u32 s{sKVst}, s{sKVst}, s{sT5}"); I(f"s_add_u32 s{sKVst}, s{sKVst}, s{sT6}")
        for q in range(4): I(f"s_xor_b32 s{sQ+q}, s{sW8K}, {q*8192}")
        I(f"s_mul_i32 s{sT5}, s{sj}, 7"); I(f"s_lshl_b32 s{sT6}, s{sw}, 1"); I(f"s_add_u32 s{sT5}, s{sT5}, s{sT6}")
        I(f"s_mul_i32 s{sW1o}, s{sT5}, {33*1024}"); I(f"s_add_u32 s{sW1o}, s{sW1o}, {hx(W1S)}")
        I(f"s_lshl_b32 s{sHs}, s{sT5}, 11"); I(f"s_add_u32 s{sHs}, s{sHs}, {hx(G_H)}")
        I(f"s_cmp_eq_u32 s{sw}, 3"); I(f"s_cselect_b32 s{sT6}, {hx(BIG)}, 0")
        I(f"s_add_u32 s{sW1o+1}, s{sW1o}, {33*1024}"); I(f"s_add_u32 s{sW1o+1}, s{sW1o+1}, s{sT6}")
        I(f"s_add_u32 s{sHs+1}, s{sHs}, 2048"); I(f"s_add_u32 s{sHs+1}, s{sHs+1}, s{sT6}")
        I(f"s_mul_i32 s{sHl}, s{sw}, {28*1024}")
        I(f"s_lshr_b32 s{sT6}, s{sw}, 1"); I(f"s_lshl_b32 s{sT5}, s{sj}, 1"); I(f"s_add_u32 s{sT5}, s{sT5}, s{sT6}")
        for n in range(2):
            if n: I(f"s_xor_b32 s{sT5}, s{sT5}, 1")
            I(f"s_lshl_b32 s{sWOo+n}, s{sT5}, 15"); I(f"s_add_u32 s{sWOo+n}, s{sWOo+n}, s{sW8K}"); I(f"s_add_u32 s{sWOo+n}, s{sWOo+n}, {hx(WOS)}")
            I(f"s_mul_i32 s{sW2o+n}, s{sT5}, {112*1024}"); I(f"s_add_u32 s{sW2o+n}, s{sW2o+n}, s{sHl}"); I(f"s_add_u32 s{sW2o+n}, s{sW2o+n}, {hx(W2S)}")
        I(f"s_add_u32 s{sHl}, s{sHl}, {hx(G_H)}")
        I(f"s_and_b32 s{sT5}, s{sw}, 1"); I(f"s_lshl_b32 s{sT5}, s{sT5}, 8"); I(f"v_xor_b32 v{vL16x}, s{sT5}, v{vL16}")
        I(f"v_lshlrev_b32 v{vPoll}, 7, v{vLane}")
        I(f"v_add_u32 v{vEW}, s{sWQl}, v{vL16}")
        for q in (1, 2, 3):
            I(f"v_xor_b32 v{vER+q-1}, {hx(q*0x4000)}, v{vEW}")
            if q > 1: I(f"v_add_u32 v{vER+q-1}, {(q-1)*2048}, v{vER+q-1}")
        I(f"v_mov_b32 v{vIdx}, 0xdddddddd")
        I(f"s_lshl_b32 s{sStS}, s{sj}, 8"); I(f"s_add_u32 s{sStS}, s{sStS}, s{sw}"); I(f"s_lshl_b32 s{sStS}, s{sStS}, 2"); I(f"s_add_u32 s{sStS}, s{sStS}, {hx(G_ST)}")
        I(f"s_lshl_b32 s{sStL}, s{sw}, 11"); I(f"s_add_u32 s{sStL}, s{sStL}, {hx(G_ST)}")

    def x_dma(self, i):
        I = self.I
        I(f"s_xor_b32 s{sT5}, s{sT4}, {i}")
        I(f"s_lshl_b32 s{sT6}, s{sT5}, 12"); I(f"s_add_u32 m0, s{sT6}, s{sT3}")
        I(f"s_lshl_b32 s{sT5}, s{sT5}, 14"); I(f"s_add_u32 s{sT5}, s{sT5}, s{sT2}")
        return [I(self.dma(vT + qq, sTA, f"s{sT5}", qq * 1024)) for qq in range(4)]
    def rowaddr(self, d, hh16):
        return [f"v_lshrrev_b32 v{hh16}, 5, v{vLane}", f"v_lshlrev_b32 v{hh16}, 4, v{hh16}", f"v_and_b32 v{d}, 31, v{vLane}",
                f"v_lshl_add_u32 v{d}, v{d}, 10, v{hh16}"]
    def wq_dma(self, va):
        o = [f"v_lshrrev_b32 v{va}, 2, v{vLane}", f"v_lshlrev_b32 v{va}, 10, v{va}", f"v_and_or_b32 v{va}, v{vL16}, 48, v{va}"]
        for ks in range(8):
            for n in range(2):
                o += [f"s_add_u32 m0, s{sWQl}, {(2*ks+n)*1024}", f"s_add_u32 s{sT7}, s{sWQo+n}, {ks*16384}", self.dma(va, sWQ, f"s{sT7}")]
        return o
    def traddr(self, d, t, swapw):
        o = [f"v_lshrrev_b32 v{d}, 5, v{vLane}", f"v_lshlrev_b32 v{d}, 9, v{d}",
             f"v_bfe_u32 v{t}, v{vLane}, 2, 2", f"v_lshl_or_b32 v{d}, v{t}, 6, v{d}",
             f"v_bfe_u32 v{t}, v{vL16x if swapw else vL16}, 8, 1", f"v_lshl_or_b32 v{d}, v{t}, 5, v{d}",
             f"v_and_b32 v{t}, 1, v{vLane}", f"v_lshl_or_b32 v{d}, v{t}, 4, v{d}",
             f"v_bfe_u32 v{t}, v{vLane}, 1, 1", f"v_lshl_or_b32 v{d}, v{t}, 3, v{d}",
             f"v_add_u32 v{d}, s{sWQl}, v{d}"]
        return o
    def wkv_reads(self, W, a=vT + 6):
        t = vT + 4
        o = [f"v_lshrrev_b32 v{a}, 4, v{vLane}", f"v_lshlrev_b32 v{a}, 8, v{a}", f"v_and_b32 v{t}, 15, v{vLane}",
             f"v_lshl_or_b32 v{a}, v{t}, 3, v{a}", f"s_lshl_b32 s{sT5}, s{sw}, 12", f"s_add_u32 s{sT5}, s{sT5}, {hx(L_WKV)}",
             f"v_add_u32 v{a}, s{sT5}, v{a}"]
        for s in range(4):
            for h in range(2): o.append(f"ds_read_b64_tr_b16 {V(W+4*s+2*h,2)}, v{a} offset:{s*1024+h*128}")
        return o
    def wq_reads(self):
        a = vT + 6
        o = self.traddr(a, vT + 7, True)
        for f in range(16):
            for h in range(2): o.append(f"ds_read_b64_tr_b16 {A(4*f+2*h,2)}, v{a} offset:{f*1024+h*256}")
        return o

    KW = 56; KA = 72; KC = 88; ONE = 104
    def branch2(self, f0, f1):
        e = self.e; I = e.I
        lv = e.newlab("L_kvv"); lj = e.newlab("L_kvj")
        I(f"s_bitcmp1_b32 s{sj}, 0"); I(f"s_cbranch_scc1 {lv}")
        e.begin_opt(); f0(); I(f"s_branch {lj}"); e.end_opt(); e.label(lv)
        e.begin_opt(); f1(); e.end_opt(); e.label(lj)
    def skip(self, conds, f):
        e = self.e; l = e.newlab("L_sk")
        for c in conds: e.I(c); e.I(f"s_cbranch_scc0 {l}")
        e.begin_opt(); f(); e.end_opt(); e.label(l)
    def kv_addr(self, base, t):
        I = self.I
        ah = self.KA; ga = ah + 2; sa = ah + 6; gs = sT6; n16 = ga + 1; q = ga + 2
        def fk():
            I(f"v_lshrrev_b32 v{ga}, 2, v{n16}"); I(f"v_lshlrev_b32 v{ga}, 8, v{ga}"); I(f"v_lshl_or_b32 v{ga}, v{n16}, 4, v{ga}")
            I(f"v_lshl_or_b32 v{ga}, v{t}, 2, v{ga}"); I(f"s_mov_b32 s{gs}, 0")
            I(f"v_lshlrev_b32 v{sa}, 9, v{sa}"); I(f"v_lshl_or_b32 v{sa}, v{n16}, 4, v{sa}")
        def fv():
            I(f"v_mul_u32_u24 v{ga}, 0x140, v{q}"); I(f"s_mov_b32 s{gs}, 20")
            I(f"v_lshlrev_b32 v{sa}, 8, v{sa}"); I(f"v_lshl_or_b32 v{sa}, v{t}, 4, v{sa}")
            I(f"v_bfe_u32 v{t}, v{n16}, 2, 1"); I(f"v_lshl_or_b32 v{sa}, v{t}, 7, v{sa}")
            I(f"v_bfe_u32 v{t}, v{n16}, 3, 1"); I(f"v_lshl_or_b32 v{sa}, v{t}, 6, v{sa}")
        def fin():
            self.branch2(fk, fv)
            I(f"v_and_b32 v{t}, 1, v{q}"); I(f"v_lshl_or_b32 v{sa}, v{t}, 3, v{sa}"); I(f"v_add_u32 v{ga}, {hx(base + 0xC00)}, v{ga}")
            for r in range(3): I(f"v_add_u32 v{ga+r+1}, s{gs}, v{ga+r}")
        return [f"v_add_u32 v{ah}, {hx(base)}, v{vL16}", f"v_lshl_add_u32 v{ah+1}, s{sw}, 12, v{ah}", f"v_and_b32 v{n16}, 15, v{vLane}",
                f"v_lshrrev_b32 v{q}, 4, v{vLane}", f"v_and_b32 v{t}, 3, v{vLane}", f"v_lshrrev_b32 v{sa}, 5, v{vLane}", (fin, 60)]
    def kv_mm(self, XK, first):
        I = self.I; acc, sm, cs, gr = (self.KC + 4 * i for i in range(4)); aw = self.KA + 1
        def f(typ):
            for s in range(4):
                x = V(XK + 4 * s, 4); w = V(self.KW + 4 * s, 4); one = V(self.ONE, 4)
                pr = (lambda a, b: (a, b)) if typ == 0 else (lambda a, b: (b, a))
                I(self.mf16(gr, x, x, s == 0)); I(self.mf16(acc, *pr(w, x), s == 0)); I(self.mf16(sm, *pr(one, x), s == 0))
                if first: I(self.mf16(cs, *pr(w, one), s == 0))
        self.e._autowait(regs_of(V(XK, 16)) + regs_of(V(self.KW, 16)))
        self.branch2(lambda: f(0), lambda: f(1))
        I(f"ds_write_b128 v{aw}, {V(gr,4)} offset:{0xC00}")
        def wr():
            I(f"ds_write_b128 v{aw}, {V(acc,4)}"); I(f"ds_write_b128 v{aw}, {V(sm,4)} offset:{0x400}")
            if first: I(f"ds_write_b128 v{aw}, {V(cs,4)} offset:{0x800}")
        self.skip([f"s_cmp_lg_u32 s{sw}, 0"], wr)
    def kv_fin(self, tg, first, box):
        e = self.e; I = e.I; acc, sm, cs = (self.KC + 4 * i for i in range(3)); ah = self.KA; ga = ah + 2; sa = ah + 6
        ts = tg + 16; ta = tg + 28; tc = tg + 40
        for w2 in range(4):
            for r in range(4): I(f"ds_read_b32 v{tg+4*w2+r}, v{ga+r} offset:{w2*0x1000}")
            if w2: I(f"ds_read_b128 {V(ts+4*(w2-1),4)}, v{ah} offset:{w2*0x1000+0x400}")
        for w2 in range(1, 4):
            I(f"ds_read_b128 {V(ta+4*(w2-1),4)}, v{ah} offset:{w2*0x1000}")
            if first: I(f"ds_read_b128 {V(tc+4*(w2-1),4)}, v{ah} offset:{w2*0x1000+0x800}")
        def padd(d, s): I(f"v_pk_add_f32 {V(d,2)}, {V(d,2)}, {V(s,2)}"); I(f"v_pk_add_f32 {V(d+2,2)}, {V(d+2,2)}, {V(s+2,2)}")
        for w2 in range(1, 4): padd(tg, tg + 4 * w2); padd(sm, ts + 4 * (w2 - 1))
        k = hx(f2u(1 / 512))
        for r in range(4): I(f"v_mul_f32 v{sm+r}, {k}, v{sm+r}")
        for r in range(4): I(f"v_mul_f32 v{tg+r}, {k}, v{tg+r}")
        for r in range(4): I(f"v_fma_f32 v{tg+r}, -v{sm+r}, v{sm+r}, v{tg+r}")
        for r in range(4): I(f"v_max_f32 v{tg+r}, 0, v{tg+r}")
        for r in range(4): I(f"v_add_f32 v{tg+r}, {hx(f2u(1e-5))}, v{tg+r}")
        for r in range(4): I(f"v_rsq_f32 v{tg+r}, v{tg+r}")
        for w2 in range(1, 4):
            padd(acc, ta + 4 * (w2 - 1))
            if first: padd(cs, tc + 4 * (w2 - 1))
        if first:
            for r in range(4): I(f"v_mov_b32 v{vCSKV+r}, v{cs+r}")
        for r in range(4): I(f"v_fma_f32 v{acc+r}, -v{sm+r}, v{vCSKV+r}, v{acc+r}")
        for r in range(4): I(f"v_mul_f32 v{acc+r}, v{acc+r}, v{tg+r}")
        e.seq(self.pack(acc, acc, 2))
        box.append(I(self.st(V(acc, 2), sa, sKV, f"s{sKVst}", 0, "sc1", w=2)))
        e.wait_lg0()
    def kv_flag(self, box, t):
        I = self.I
        I(f"v_mov_b32 v{t}, s{sMyF}"); I(f"v_mov_b32 v{t+1}, s{sN+1}")
        self.e.wait(*box)
        I("s_mov_b64 exec, 1"); I(self.st(V(t, 2), vPoll, sWS, f"s{sKVFs}", 0, "sc1", w=2)); I("s_mov_b64 exec, -1")
    def kvp_issue(self, r, off): return [f"s_add_u32 s{sT3}, s{sKVFp}, {off}", self.ld(V(r, 2), vSA, sWS, f"s{sT3}", 0, "sc1", w=2)]
    def kvp_check(self, r, off):
        def f():
            e = self.e; lab = e.newlab("L_kp"); back = e.newlab("L_kb")
            c = [f"v_and_b32 v{r}, -16, v{r}", f"v_cmp_ne_u64 vcc, s[{sN}:{sN+1}], {V(r, 2)}"]
            e.seq(c); e.I(f"s_cbranch_vccnz {lab}"); e.label(back)
            e.tail += [lab + ":", f"    s_mov_b32 s{sCnt}, 0", lab + "a:"] + ["    " + x for x in self.kvp_issue(r, off) + [
                       f"s_add_u32 s{sCnt}, s{sCnt}, 1", f"s_cmp_gt_u32 s{sCnt}, {POLL_LIM}", "s_cbranch_scc1 L_end", "s_waitcnt vmcnt(0)"] + c +
                       [f"s_cbranch_vccnz {lab}a", f"s_branch {back}"]]
        return (f, 20)
    def kvdma(self, i, v): return ([f"s_add_u32 m0, s{sW1K}, {hx((i&7)*4096 + (i>>3)*0x10000 + v*0x8000)}"], self.dma(vL16, sKV, "m0", 0, "sc1"))
    def lo_dma(self, box):
        o = []
        for i in range(2):
            for v in range(2): p, d = self.kvdma(i, v); o += p + [self.cap(d, box)]
        return o
    def qfin(self, mt, ac, m, r):
        return [f"v_mul_f32 v{r}, {hx(f2u(QS))}, v{r}"] + self.exadd(ac, ac + 8) + [f"v_fma_f32 v{ac+i}, -v{m}, v{vCSQ+i}, v{ac+i}" for i in range(8)] + \
               [f"v_mul_f32 v{ac+i}, v{ac+i}, v{r}" for i in range(8)] + self.pack(vQ + 4 * mt, ac)
    def attn_setup(self):
        t = 70
        def f():
            I = self.I
            I(f"v_and_b32 v{t}, 16, v{vLane}"); I(f"v_cmp_eq_u32 vcc, 0, v{t}")
            I(f"v_lshrrev_b32 v{t}, 5, v{vLane}"); I(f"v_lshlrev_b32 v{t}, 8, v{t}"); I(f"v_add_u32 v{t}, 0x8000, v{t}")
            I(f"v_mov_b32 v{t+1}, {hx(L_ONES)}"); I(f"v_cndmask_b32 v{vV}, v{t+1}, v{t}, vcc")
            I(f"v_mov_b32 v{t}, 0x1000"); I(f"v_cndmask_b32 v{vInc}, 0, v{t}, vcc")
        return [(f, 36), f"v_and_b32 v{t}, 0xf0, v{vL16}", f"v_or_b32 v{vV}, v{vV}, v{t}",
                f"v_and_b32 v{vMA}, 0x180, v{vPoll}", f"v_bfe_u32 v{t}, v{vLane}, 2, 1", f"v_lshl_or_b32 v{vMA}, v{t}, 12, v{vMA}",
                f"v_add_u32 v{vK2}, 0x10000, v{vL16}"] + [f"v_mov_b32 v{RES(0)+8+i}, 0" for i in range(8)]
    def zero_o(self): return [f"v_mov_b32 v{vO+i}, 0" for i in range(32)]

    def qkv1(self):
        e = self.e; I = e.I; op = self.opt.get
        XK = 240; X = 112; AQ = [208, 176]; ONE = self.ONE; SEL = 108; SM = [88, 92]; SQ = [96, 97]; CS = 56; RW = 248
        pst = (lambda n: self.stamp(n)) if op('pst') else (lambda n: None)
        for i in range(4): I(f"v_mov_b32 v{ONE+i}, s{sOnes}")
        I(f"v_lshrrev_b32 v{SEL}, 2, v{vLane}"); I(f"v_xor_b32 v{SEL}, v{SEL}, v{vLane}"); I(f"v_and_b32 v{SEL}, 4, v{SEL}")
        I(f"v_and_or_b32 v{SEL}, v{vLane}, 8, v{SEL}"); I(f"v_cmp_eq_u32 vcc, 0, v{SEL}")
        for i in range(4): I(f"v_cndmask_b32 v{SEL+i}, 0, v{ONE}, vcc")
        e.seq(self.kv_addr(L_KVR, vT + 4))
        a = self.KA + 7
        I(f"v_and_b32 v{vT+4}, 15, v{vLane}"); I(f"v_lshrrev_b32 v{vT+5}, 4, v{vLane}")
        I(f"v_xor_b32 v{vT+5}, v{vT+5}, v{vT+4}"); I(f"v_lshlrev_b32 v{vT+5}, 4, v{vT+5}")
        I(f"v_lshl_or_b32 v{a}, v{vT+4}, 8, v{vT+5}")
        I(f"s_lshl_b32 s{sT5}, s{sT4}, 12"); I(f"s_add_u32 s{sT5}, s{sT5}, s{sT3}"); I(f"v_add_u32 v{a}, s{sT5}, v{a}")
        tx = []; N1 = op('n1', 0)
        for i in range(1, 1 + N1): tx += self.x_dma(i)
        sl = self.swz_setup()
        o = self.wkv_reads(self.KW); e.seq(o[:7])
        pst('p_end')
        e.wait(*self.tk_wkv); e.seq(o[7:]); e.wait(*self.tk_x)
        for s in range(4):
            if s: I(f"v_xor_b32 v{vT+4}, {s*64}, v{a}")
            I(f"ds_read_b128 {V(XK+4*s,4)}, v{vT+4 if s else a}")
        self.stamp("kvx")
        self.kv_mm(XK, True)
        e.wait_lg0(force=True); e.barrier()
        I(f"s_add_u32 s{sN}, s{sN}, 16"); I(f"s_addc_u32 s{sN+1}, s{sN+1}, 0"); I(f"s_and_b32 s{sN}, s{sN}, -16")
        I(f"s_getreg_b32 s{sT5}, hwreg(HW_REG_XCC_ID, 0, 4)"); I(f"s_or_b32 s{sMyF}, s{sN}, s{sT5}")
        kb = []; w0 = [f"s_cmp_eq_u32 s{sw}, 0"]
        FP, KF, XW = op('kf', (0, 8, 4))
        def kvev(k):
            if k == FP: self.skip(w0, lambda: self.kv_fin(176, True, kb)); self.stamp("kvdone")
            if k == KF: self.skip(w0, lambda: self.kv_flag(kb, 98))
        assert FP >= N1 - 3 and FP <= XW
        for i in range(1 + N1, 4): kvev(i - 4); tx += self.x_dma(i)
        wd = self.wq_dma(vT + 4); e.seq(wd[:3]); tw = []
        ah = self.KA; st = ah + 1; ct = ah + 2; F = 144
        a = 228
        I(f"v_and_b32 v{a+1}, 31, v{vLane}"); I(f"v_lshrrev_b32 v{a}, 5, v{vLane}"); I(f"v_xor_b32 v{a}, v{a}, v{a+1}")
        I(f"v_and_b32 v{a}, 15, v{a}"); I(f"v_lshlrev_b32 v{a}, 4, v{a}"); I(f"v_lshl_or_b32 v{a}, v{a+1}, 8, v{a}")
        I(f"v_add_u32 v{a}, s{sT3}, v{a}")
        I(f"v_mov_b32 v{vN}, s{sN}"); I(f"v_mov_b32 v{vN+1}, s{sN+1}")
        fill = [f"v_mov_b32 v{q}, 0" for q in SQ]
        for ks in range(8):
            fill += [f"v_dot2c_f32_bf16 v{SQ[mt]}, v{X+(mt*8+ks)*4+i}, v{X+(mt*8+ks)*4+i}" for i in range(4) for mt in range(2)]
        fill += [self.mf16(SM[mt], V(SEL, 4), V(X + (mt * 8 + ks) * 4, 4), ks == 0) for ks in range(8) for mt in range(2)]
        sa, sb = self.swz_a(st, SEL, F, 100)
        o = self.wq_reads(); fill += o[:11]; o = o[11:]
        fill += [f"v_and_b32 v{vSA}, 0xf80, v{vPoll}", f"v_lshl_add_u32 v{st}, s{sw}, 2, v{ah}"]
        for mt in range(2): fill += self.stat_write(SM[mt], SQ[mt], st, mt)
        NF = op('nf', 6)
        for f in range(16):
            kvev(f)
            if f == XW:
                pst('p_w8'); e.wait(*tx)
                for ks in range(8):
                    if ks: I(f"v_xor_b32 v{a+1}, {ks*32}, v{a}")
                    for mt in range(2): I(f"ds_read_b128 {V(X+(mt*8+ks)*4,4)}, v{a+(1 if ks else 0)} offset:{mt*8192}")
            e.seq(wd[3 + 3 * f:5 + 3 * f]); tw.append(I(wd[5 + 3 * f]))
            if f > XW: e.seq(fill[:NF]); fill = fill[NF:]
        kvev(16); pst('p_wq')
        def rds(ks): return [self.wt(tw[2 * ks:2 * ks + 2])] + o[4 * ks:4 * ks + 4]
        rl = self.rowaddr(vT + 5, vT + 4) + [f"s_add_u32 s{sT6}, s{sRow}, 0x8000", self.ld(V(RW, 4), vT + 5, sTA, f"s{sRow}"), self.ld(V(RW + 4, 4), vT + 5, sTA, f"s{sT6}")]
        sl += [lambda: self.srd(sTB, pB2, 1024), f"s_lshr_b32 s{sT5}, s{sP1K}, 5", self.ld(V(vB2, 4), vT + 4, sTB, f"s{sT5}"),
               f"v_lshlrev_b32 v{vFl}, 20, v{vLane}", f"v_and_b32 v{vP8}, 0x380, v{vPoll}"]
        SP = op('sp', 2)
        e.seq(rl + (sl if SP < 0 else []) + fill + rds(0) + rds(1))
        self.stamp("wqrd")
        mm = []; ev = {}
        qm = lambda mt, ks: [self.mf(AQ[mt] + 16 * n, A((2 * ks + n) * 4, 4), V(X + (mt * 8 + ks) * 4, 4), '0' if ks == 0 else None) for n in range(2)]
        for ks in range(8):
            if ks < 6: ev[len(mm)] = rds(ks + 2)
            mm += qm(0, ks) + [self.mf16(CS + 4 * n, A((2 * ks + n) * 4, 4), V(SEL, 4), ks == 0) for n in range(2)]
        for ks in range(8): mm += qm(1, ks)
        add = lambda g, *it: ev.setdefault(g, []).extend(it)
        t0 = 88; TC = 112
        add(1, self.bar(), *[f"ds_read_b128 {V(t0+4*mt,4)}, v{ah} offset:{mt*1024}" for mt in range(2)])
        if 0 <= SP < 48: add(SP, *sl)
        fill = [f"v_bfe_u32 v{ct}, v{vLane}, 2, 1", f"v_xor_b32 v{ct+1}, s{sw}, v{ct}", f"v_lshl_or_b32 v{ct}, v{ct+1}, 2, v{ct}", f"v_lshlrev_b32 v{ct}, 6, v{ct}",
                f"v_and_or_b32 v{ct}, v{vLane}, 48, v{ct}", f"v_add_u32 v{ct}, {hx(L_CST)}, v{ct}", f"v_xor_b32 v{ct+1}, 0x280, v{ct}",
                f"v_lshrrev_b32 v{ct+2}, 5, v{vLane}", f"v_lshlrev_b32 v{ct+2}, 4, v{ct+2}", f"v_lshl_add_u32 v{ct+2}, s{sw}, 8, v{ct+2}", f"v_add_u32 v{ct+2}, {hx(L_CST)}, v{ct+2}"]
        fill += [f"v_and_b32 v{ONE+1}, 11, v{vLane}", f"v_cmp_eq_u32 vcc, 0, v{ONE+1}", f"v_add_u32 v{ct+3}, s{sW1K}, v{ah}"]
        fill += [f"v_cndmask_b32 v{ONE+i}, 0, v{ONE}, vcc" for i in (1, 2, 3, 0)] + [f"ds_write_b128 v{ct+3}, {V(ONE,4)} offset:{L_ONES-L_KVR}"]
        su = self.attn_setup(); fill += su[:7]
        for mt in range(2): fill += self.stat_fin(t0 + 4 * mt, 96 + 2 * mt, 97 + 2 * mt)
        for mt in range(2):
            for i in range(4): fill += [f"v_lshlrev_b32 v{RES(mt)+2*i}, 16, v{RW+4*mt+i}", f"v_and_b32 v{RES(mt)+2*i+1}, 0xffff0000, v{RW+4*mt+i}"]
        add(21, f"s_and_b32 s{sT5}, s{sg}, 15", f"s_lshl_b32 s{sT5}, s{sT5}, 10", f"v_add_u32 v{vT+6}, s{sT5}, v{vT+6}",
            *[f"ds_read_b64_tr_b16 {V(vAUG+4+2*h,2)}, v{vT+6} offset:{h*256}" for h in range(2)],
            f"s_lshl_b32 s{sWQo}, s{sP1K}, 4", f"s_add_u32 s{sWQo}, s{sWQo}, {hx(WQS)}", f"s_add_u32 s{sT5}, s{sT5}, s{sWQo}",
            f"s_cmp_ge_u32 s{sg}, 16", f"s_cselect_b32 s{sT4}, {hx(BIG)}, s{sT5}")
        PI, PC = op('lp1', (24, 49)); lo = []
        add(PI, *self.kvp_issue(vT, 0))
        chk = [self.kvp_check(vT, 0), self.stp("kvpoll")] + self.lo_dma(lo) + (sl if SP == 48 else [])
        self._sched(mm[:32], ev, fill, 2, 30)
        ev = {g - 32: it for g, it in ev.items() if g >= 32}
        w = self.exw(AQ[0], 0); r = self.exr(AQ[0] + 8, 0)
        add(0, *w[:2]); add(1, *w[2:4]); add(2, *w[4:])
        add(3, "s_mov_b32 exec_lo, 0x110011", "s_mov_b32 exec_hi, 0x110011", *[f"ds_write_b128 v{ct+n}, {V(CS+4*n,4)}" for n in range(2)], "s_mov_b64 exec, -1")
        c = [f"ds_read_b128 {V((TC+8*(q-1) if q else vCSQ)+4*h,4)}, v{ct+2} offset:{q*64+h*32}" for q in range(4) for h in range(2)]
        add(5, self.bar(), *c[:4]); add(6, *c[4:]); add(7, *r[:3]); add(8, *r[3:])
        if PC < 48: add(PC - 32, *chk)
        q0 = self.qfin(0, AQ[0], 96, 97)
        self._sched(mm[32:], ev, self.exadd(vCSQ, TC) + q0[:21], 9, 15)
        e.seq(q0[21:]); e.seq(self.exw(AQ[1], 0x1800))
        if PC == 48: e.seq(chk)
        z = self.zero_o(); e.seq(z[:16])
        e.seq([self.bar()])
        pst('p_bar')
        e.seq(self.exr(AQ[1] + 8, 0x1800) + z[16:] + su[7:])
        I(f"s_add_u32 s{sT5}, s{sW8K}, {hx(L_X)}"); I(f"v_add_u32 v{vEW}, s{sT5}, v{vL16}")
        for q in (1, 2, 3):
            I(f"v_xor_b32 v{vER+q-1}, {hx(q*0x2000)}, v{vEW}")
            if q > 1: I(f"v_add_u32 v{vER+q-1}, {(q-1)*2048}, v{vER+q-1}")
        e.seq(self.qfin(1, AQ[1], 98, 99))
        if PC > 48: e.seq(chk)
        self.stamp("qdone")
        e.seq(sa + sb + [self.st(V(vAUG + 4, 4), vL16, sWS, f"s{sT4}", 0, "sc1")])
        e.wait(*lo); e.wait_lg0(); e.barrier()
        self.skip(w0, lambda: e.seq(self.swz_b(100)))
    def lane0(self, off):
        I = self.I
        I("s_mov_b64 exec, 1"); I(self.st(V(vN, 2), vPoll, sWS, off, 0, "sc1", w=2)); I("s_mov_b64 exec, -1")

    def q2_pre(self, ev, fill, TM, PK):
        op = self.opt.get; add = lambda g, *it: ev.setdefault(g, []).extend(it)
        b0 = []; a = self.KA + 7
        fill += self.xfin(0, TM, PK, G_X2, b0, False)
        pb, pi, pc = op('x2p', (30, 41, 51))
        o = self.wkv_reads(self.KW, a); add(23, *o[:7]); add(24, *o[7:11]); add(25, *o[11:])
        o = self.kv_addr(0x4000, vT + 4); add(26, *o[:6]); add(27, o[6])
        add(29, f"v_lshrrev_b32 v{a}, 4, v{vLane}", f"v_lshlrev_b32 v{a}, 9, v{a}", f"v_and_b32 v{vT+4}, 0xf0, v{vL16}", f"v_or_b32 v{a}, v{a}, v{vT+4}")
        add(pb, self.pub(F_X2, b0)); add(pi, self.pissue(F_X2, vT)); add(pc, self.pcheck(F_X2, vT))
        l = self.x2loads(0)
        for k, it in enumerate(l): add(pc + k // 2, *it)
    XK2 = 208; SB = [200, 104]
    def x2loads(self, mt):
        a = self.KA + 7
        o = [[f"s_bfe_u32 s{sT5}, s{sj}, 0x10001", f"s_lshl_b32 s{sT5}, s{sT5}, 8", f"s_add_u32 s{sT0}, s{sW8K}, {hx(G_X2 + mt*0x8000)}", f"s_add_u32 s{sT5}, s{sT5}, s{sT0}",
              f"s_cmp_{'lt' if mt else 'ge'}_u32 s{sj}, 4", f"s_cselect_b32 s{sT5}, {hx(BIG)}, s{sT5}", f"s_add_u32 s{sT6}, s{sT5}, 4096"], [], [], []]
        for s in range(4): o[s].append(self.ld(V(self.XK2 + 4 * s, 4), a, sG, f"s{sT5 + (s >> 1)}", (s & 1) * 2048, "sc1"))
        o.append([f"s_add_u32 s{sT3}, s{sStL}, {mt*0x2000}", self.ld(V(self.SB[mt], 4), vL16, sG, f"s{sT3}", 0, "sc1")])
        o.append([self.ld(V(self.SB[mt] + 4, 4), vL16, sG, f"s{sT3}", 1024, "sc1")])
        for ks in range(8): o.append(([f"s_add_u32 s{sT0}, s{sT0}, 4096"] if ks == 4 else []) + [self.ld(A(8 * (8 * mt + ks), 4), vL16, sG, f"s{sT0}", (ks % 4) * 1024, "sc1")])
        return o
    def qkv2(self, b1):
        e = self.e; I = e.I; op = self.opt.get
        AQ = [224, 176]; SB = self.SB; ah = vT + 6; ONE = self.ONE = 96
        def ssum(mt):
            t = SB[mt]
            return [f"v_add_f32 v{t+i}, v{t+i}, v{t+4+i}" for i in range(4)] + [f"v_add_f32 v{t}, v{t}, v{t+1}", f"v_add_f32 v{t+2}, v{t+2}, v{t+3}",
                    f"v_add_f32 v{t}, v{t}, v{t+2}", f"ds_write_b32 v{ah+1}, v{t} offset:{mt*1024}"]
        srd_ = lambda mt: f"ds_read_b128 {V(SB[mt],4)}, v{ah} offset:{mt*1024}"
        mm = lambda mt: [self.mf(AQ[mt] + 16 * n, V(vWO + (2 * ks + n) * 4, 4), A(8 * (8 * mt + ks), 4), '0' if ks == 0 else None) for ks in range(8) for n in range(2)]
        jc = [f"s_cmp_lt_u32 s{sj}, 4", f"s_cmp_ge_u32 s{sj}, 4"]; w0 = f"s_cmp_eq_u32 s{sw}, 0"
        for i in range(4): I(f"v_mov_b32 v{ONE+i}, s{sOnes}")
        I(f"s_add_u32 s{sKV}, s{sKV}, 0x20000"); I(f"s_addc_u32 s{sKV+1}, s{sKV+1}, 0")
        I(f"s_add_u32 s{sKVFs}, s{sKVFs}, 0x8000"); I(f"s_add_u32 s{sKVFp}, s{sKVFp}, 0x8000")
        I(f"s_mov_b32 s{sLayer}, 1"); I(f"s_mov_b32 s{sWQo}, {hx(BIG)}")
        e.seq(ssum(0))
        self.stamp("x2poll")
        self.skip([jc[0]], lambda: self.kv_mm(self.XK2, False))
        e.wait_lg0(force=True); e.barrier()
        self.stamp("kvx")
        e.seq([self.pub(F_X2 + 1, b1)])
        kb = []
        self.skip([jc[0], w0], lambda: self.kv_fin(176, False, kb))
        self.stamp("kvdone")
        self.sched(mm(0), {0: [srd_(0)], op('x2q', 9): [self.pissue(F_X2 + 1, vT)]}, self.stat_fin(SB[0], SB[0] + 4, SB[0] + 5), 3, 6)
        e.seq(self.exw(AQ[0], 0)); e.seq([self.pcheck(F_X2 + 1, vT)])
        self.skip([jc[0], w0], lambda: self.kv_flag(kb, vT))
        self.stamp("x2b")
        for o in self.x2loads(1): e.seq(o)
        I(f"s_add_u32 s{sFlSt}, s{sFlSt}, 4096"); I(f"s_add_u32 s{sFlPo}, s{sFlPo}, 4096")
        e.seq([self.bar()]); e.seq(self.exr(AQ[0] + 8, 0)); e.seq(self.qfin(0, AQ[0], SB[0] + 4, SB[0] + 5))
        self.stamp("q0")
        self.skip([jc[1]], lambda: self.kv_mm(self.XK2, False))
        PI, PC = op('lp2', (8, 17)); lo = []
        chk = [self.kvp_check(vT, 0), self.stp("kvpoll")] + self.lo_dma(lo)
        ev = {0: [f"v_and_b32 v{vSA}, 0xf80, v{vPoll}"]}; ev.setdefault(PI, []).extend(self.kvp_issue(vT, 0))
        self.sched(mm(1), ev, ssum(1) + self.attn_setup() + self.zero_o(), 1, 14)
        e.seq(self.exw(AQ[1], 0x8000))
        if PC == 16: e.seq(chk)
        e.wait_lg0(force=True); e.barrier()
        self.skip([jc[1], w0], lambda: self.kv_fin(112, False, []))
        I(srd_(1)); e.seq(self.exr(AQ[1] + 8, 0x8000)); e.seq(self.stat_fin(SB[1], SB[1] + 4, SB[1] + 5)); e.seq(self.qfin(1, AQ[1], SB[1] + 4, SB[1] + 5))
        if PC > 16: e.seq(chk)
        self.stamp("qdone")
        e.wait(*lo); e.barrier()

    def swz_setup(self):
        e = self.e; I = e.I
        l2 = e.newlab("L_sw2"); lo = e.newlab("L_swo"); lj = e.newlab("L_swj")
        I(f"s_mov_b32 s{sAug}, {hx(BIG)}"); I(f"s_mov_b32 s{sTB+3}, 0x20000")
        I(f"s_cmp_ge_u32 s{sg}, 14"); I(f"s_cbranch_scc1 {l2}")
        I(f"s_mov_b64 s[{sTB}:{sTB+1}], s[{pW1}:{pW1+1}]"); I(f"s_mov_b32 s{sTB+2}, {512*1792*2}")
        I(f"s_mov_b32 s{sT0}, 3584"); I(f"s_and_b32 s{sT1}, s{sg}, 1")
        I(f"s_mul_i32 s{sT5}, s{sj}, 7"); I(f"s_lshr_b32 s{sT6}, s{sg}, 1")
        if not self.opt.get('nopair'):
            I(f"s_bitcmp1_b32 s{sj}, 0"); I(f"s_addc_u32 s{sT6}, s{sT6}, 0"); I(f"s_cmp_eq_u32 s{sT6}, 7"); I(f"s_cselect_b32 s{sT6}, 0, s{sT6}")
        I(f"s_add_u32 s{sT5}, s{sT5}, s{sT6}")
        I(f"s_mul_i32 s{sSwD}, s{sT5}, {33*1024}"); I(f"s_add_u32 s{sSwD}, s{sSwD}, {hx(W1S)}")
        I(f"s_lshl_b32 s{sT6}, s{sT1}, 3"); I(f"s_add_u32 s{sT6}, s{sT6}, s{sSwD}"); I(f"s_add_u32 s{sT6}, s{sT6}, {32*1024}")
        I(f"s_cmp_eq_u32 s{sw}, 0"); I(f"s_cselect_b32 s{sAug}, s{sT6}, s{sAug}")
        I(f"s_branch {lj}")
        e.label(l2)
        I(f"s_mov_b32 s{sT0}, 1024"); I(f"s_lshl_b32 s{sT5}, s{sj}, 1")
        I(f"s_cmp_ge_u32 s{sg}, 28"); I(f"s_cbranch_scc1 {lo}")
        I(f"s_mov_b64 s[{sTB}:{sTB+1}], s[{pW2}:{pW2+1}]"); I(f"s_mov_b32 s{sTB+2}, {512*1792*2}")
        if self.opt.get('nopair'):
            I(f"s_cmp_ge_u32 s{sg}, 21"); I(f"s_cselect_b32 s{sT6}, 21, 14"); I(f"s_addc_u32 s{sT5}, s{sT5}, 0"); I(f"s_sub_u32 s{sT1}, s{sg}, s{sT6}")
        else:
            I(f"s_bitcmp1_b32 s{sg}, 0"); I(f"s_addc_u32 s{sT5}, s{sT5}, 0"); I(f"s_lshr_b32 s{sT1}, s{sg}, 1"); I(f"s_sub_u32 s{sT1}, s{sT1}, 7")
        I(f"s_mul_i32 s{sSwD}, s{sT5}, {112*1024}"); I(f"s_add_u32 s{sSwD}, s{sSwD}, {hx(W2S)}")
        I(f"s_branch {lj}")
        e.label(lo)
        I(f"s_mov_b64 s[{sTB}:{sTB+1}], s[{pWO}:{pWO+1}]"); I(f"s_mov_b32 s{sTB+2}, 0x80000")
        I(f"s_and_b32 s{sT1}, s{sg}, 1"); I(f"s_bitcmp1_b32 s{sg}, 1"); I(f"s_addc_u32 s{sT5}, s{sT5}, 0")
        I(f"s_lshl_b32 s{sSwD}, s{sT5}, 15"); I(f"s_add_u32 s{sSwD}, s{sSwD}, {hx(WOS)}")
        e.label(lj)
        I(f"s_lshl_b32 s{sT1}, s{sT1}, 2"); I(f"s_add_u32 s{sT1}, s{sT1}, s{sw}")
        I(f"s_lshl_b32 s{sT6}, s{sT1}, 12"); I(f"s_add_u32 s{sSwD}, s{sSwD}, s{sT6}")
        I(f"s_lshl_b32 s{sT1}, s{sT1}, 6"); I(f"s_mul_i32 s{sT1}, s{sT1}, s{sT0}")
        I(f"s_lshl_b32 s{sT5}, s{sT5}, 6"); I(f"s_add_u32 s{sT1}, s{sT1}, s{sT5}")
        a = vT + 9
        I(f"v_lshrrev_b32 v{a}, 2, v{vLane}"); I(f"v_mul_lo_u32 v{a}, v{a}, s{sT0}"); I(f"v_and_or_b32 v{a}, v{vL16}, 48, v{a}")
        I(f"s_lshl_b32 s{sT0}, s{sT0}, 4")
        o = []
        for f in range(4): o += ([f"s_add_u32 s{sT1}, s{sT1}, s{sT0}"] if f else []) + [self.ld(A(64 + 4 * f, 4), a, sTB, f"s{sT1}")]
        b = vT + 10; t = vT + 8
        I(f"v_and_b32 v{b}, 0x13, v{vLane}"); I(f"v_bfe_u32 v{t}, v{vLane}, 2, 1"); I(f"v_lshl_or_b32 v{b}, v{t}, 3, v{b}")
        I(f"v_bfe_u32 v{t}, v{vLane}, 3, 1"); I(f"v_lshl_or_b32 v{b}, v{t}, 2, v{b}")
        I(f"v_lshrrev_b32 v{t}, 5, v{vLane}"); I(f"v_lshl_or_b32 v{b}, v{t}, 15, v{b}"); I(f"v_lshlrev_b32 v{b}, 1, v{b}")
        I(f"v_add_u32 v{b}, s{sT5}, v{b}")
        I(f"s_lshl_b32 s{sSwF}, s{sj}, 12"); I(f"s_add_u32 s{sSwF}, s{sSwF}, {hx(GF + 0x10000)}")
        return o + [lambda: self.srd(sTB, pB1, 3584), f"buffer_load_ushort v{vAUG}, v{b}, s[{sTB}:{sTB+3}], 0 offen"]
    def swz_a(self, st, SEL, F, c):
        a = vT + 6
        o = [f"v_add_u32 v{a-1}, s{sWQl}, v{vL16}"] + self.traddr(a, vT + 7, False)
        o += [f"ds_write_b128 v{a-1}, {A(64+4*f,4)} offset:{0x3000+f*1024}" for f in range(4)]
        o += [f"ds_read_b64_tr_b16 {V(F+4*f+2*h,2)}, v{a} offset:{0x3000+f*1024+h*256}" for f in range(4) for h in range(2)]
        return o, [self.mf16(c, V(SEL, 4), V(F + 4 * f, 4), f == 0) for f in range(4)] + \
               [self.st(V(F + 4 * f, 4), vL16, sWS, f"s{sSwD}", f * 1024, "sc1") for f in range(4)] + [f"ds_write_b32 v{st}, v{c} offset:{L_CSR-L_KVR}"]
    def swz_b(self, t):
        return [f"ds_read_b128 {V(t,4)}, v{self.KA} offset:{L_CSR-L_KVR}",
                f"v_add_f32 v{t}, v{t}, v{t+1}", f"v_add_f32 v{t+2}, v{t+2}, v{t+3}", f"v_add_f32 v{t}, v{t}, v{t+2}",
                f"v_cvt_pk_bf16_f32 v{t+1}, v{t}, v{t}", f"v_lshlrev_b32 v{t+2}, 16, v{t+1}", f"v_sub_f32 v{t}, v{t}, v{t+2}",
                f"v_cvt_pk_bf16_f32 v{t}, v{t+2}, v{t}", f"v_and_b32 v{t+1}, 0xffff, v{t+1}", f"v_lshl_or_b32 v{t+1}, v{vAUG}, 16, v{t+1}",
                self.st(V(t, 2), vL16, sWS, f"s{sAug}", 0, "sc1", w=2)]

    OB = [[208, 212, 216, 220, 248, 252, 40, 240], [176 + 4 * i for i in range(8)]]
    UA = [0, 2, 4, 6, 7, 9, 11, 13]; UB = [1, 3, 5, 8, 10, 12]
    def ofin(self, mt, box):
        O = vO + 16 * mt
        def chk():
            I = self.I
            I(f"v_cmp_lt_f32 vcc, s{sT6}, v{O+8}"); I(f"v_cmp_gt_f32 s[{sT2}:{sT3}], s{sT7}, v{O+8}")
            I(f"s_and_b64 vcc, vcc, s[{sT2}:{sT3}]"); I("s_andn2_b64 vcc, exec, vcc"); I(f"s_cbranch_scc1 L_slow{mt}"); self.e.label(f"L_slowb{mt}")
        return [(chk, 20), f"v_rcp_f32 v{O+8}, v{O+8}", f"s_add_u32 s{sT2}, s{sP1K}, {hx(G_O + mt*0x8000)}"] + \
               [f"v_mul_f32 v{O+i}, v{O+i}, v{O+8}" for i in range(8)] + self.pack(vQ + 4 * mt, O) + \
               [self.dcap([self.st(V(vQ + 4 * mt, 4), vL16, sG, f"s{sT2}")], box)]
    def oload(self, mt):
        return [([f"s_add_u32 s{sT1}, s{sW8K}, {hx(G_O + mt*0x8000 + ks*1024)}"] if ks % 4 == 0 else []) +
                [self.ld(V(self.OB[mt][ks], 4), vL16, sG, f"s{sT1}", (ks % 4) * 1024, "sc1")] for ks in range(8)]
    def attention(self):
        e = self.e; I = e.I; op = self.opt.get
        Kf = [vF1, vF1 + 4]; Vf = [vF1 + 8, vF1 + 16]
        S_ = [vS, vS + 16]; O_ = [vO, vO + 16]
        e.wait_lg0(); pre = Tok(); e.vmq[:] = [pre]
        kvdma = self.kvdma
        lo, hi = (2.0 ** -64, 2.0 ** 64) if not self.fsa else (2.0 ** 64, 2.0 ** -64)
        I(f"s_mov_b32 s{sT6}, {hx(f2u(lo))}"); I(f"s_mov_b32 s{sT7}, {hx(f2u(hi))}")
        SK = op('sk', 12); NP = 64 - SK
        vm = [[] for _ in range(64)]
        lst = [kvdma(i, v) for i in range(2, 8) for v in range(2)]
        for n, it in enumerate(lst): vm[n // 3].append(it)
        HF, PI, PC = op('hi', (3, 8, 10)); SI, SC = op('sw', (9, 11))
        k = self.kvp_issue(vT, 4096)
        vm[PI].append((k[:1], k[1])); vm[SI].append(([], self.ld(V(vSD, 2), vSA, sWS, f"s{sSwF}", 0, "sc1", w=2)))
        for n in range(16): vm[PC + 1 + n * op('hn', 14) // 16].append(kvdma(8 + n // 2, n & 1))
        lst = []
        pw = [([f"s_lshl_b32 s{sT1}, s{sLayer}, {op('pwl', 28)}", f"s_add_u32 s{sT1}, s{sT1}, s{sP1K}"], "!" + self.ld(V(vJ), vL16, sG, f"s{sT1}", 0, "sc1", w=1))]
        for i in (5, 6, 7, 0, 1, 2, 3, 4, 8):
            pw.append(([f"s_add_u32 s{sT0}, s{sT1}, {hx(G_X1 + i * 0x8000)}"], "!" + self.ld(V(vJ), vL16, sG, f"s{sT0}", 0, "sc1", w=1)))
        if op('nopw'): pw = []
        wfl = op('wfl', 'sc1')
        for n in range(2):
            for ks in range(8):
                pre = [f"s_add_u32 s{sT5}, s{sWOo+n}, {ks*1024}"] if ks % 4 == 0 else []
                lst.append((pre, self.ld(V(vWO + (2 * ks + n) * 4, 4), vL16x, sWS, f"s{sT5}", (ks % 4) * 1024, wfl)))
        for n in range(2):
            for i in range(32):
                pre = []
                if i % 8 == 0: pre = [f"s_add_u32 s{sT5}, s{sW1o+n}, s{sQ+i//8}"]
                elif i % 4 == 0: pre = [f"s_add_u32 s{sT5}, s{sT5}, 4096"]
                lst.append((pre, self.ld(A((2 * i + n) * 4, 4), vL16, sWS, f"s{sT5}", (i % 4) * 1024, wfl)))
            lst.append(([f"s_add_u32 s{sT5}, s{sW1o+n}, {32*1024}"], self.ld(V(vAUG + 4 * n, 4), vL16, sWS, f"s{sT5}", 0, "sc1")))
        for k, u in enumerate(self.UB[2:]):
            for n in range(2):
                for h in range(2):
                    lst.append(([f"s_lshl1_add_u32 m0, s{sW8K}, {(k*2+n)*2048}", f"s_add_u32 s{sT5}, s{sW2o+n}, {u*2048}"] if h == 0 else [],
                                self.dma(vL16x, sWS, f"s{sT5}", h * 1024, wfl)))
        if op('now'): lst = []
        for n, it in enumerate(pw): lst.insert(op('pw0', 10) + n * op('pwstep', 10), it)
        for n, p in enumerate(op('pf2', ())):
            lst.insert(p, ([f"s_and_b32 s{sT0}, s{sg}, 3", f"s_mul_i32 s{sT0}, s{sT0}, {7168 if n < 4 else 4096}", f"s_add_u32 s{sT0}, s{sT0}, s{sW2o + (n & 1) if n < 4 else sWQo}"],
                           "!" + self.ld(V(vJ), vSA, sWS, f"s{sT0}", (n >> 1) * 3584 if n < 4 else 0, "sc1", w=1)))
        vm[33].append(([f"s_andn2_b32 s{sT3}, s{sKVFs}, 0x1180"], self.ld(V(vMD), vMA, sWS, f"s{sT3}", 0, "sc1", w=1)))
        if self.codepf:
            def cpf():
                I(f"s_getpc_b64 s[{sT2}:{sT3}]"); e.label("L_cpf")
                I(f"s_min_u32 s{sT0}, s{sP1K}, L_end-L_post"); I(f"s_add_u32 s{sT0}, s{sT0}, L_post-L_cpf")
                I(f"s_add_u32 s{sT2}, s{sT2}, s{sT0}"); I(f"s_addc_u32 s{sT3}, s{sT3}, 0")
            lst.append(([cpf], f"!global_load_dword v{vJ}, v{vL16}, s[{sT2}:{sT3}]"))
        TL = op('tl', 16); tl = lst[len(lst) - TL:]; lst = lst[:len(lst) - TL]
        p0, p1 = op('wp', (SC + 1, NP - 1))
        free = sorted((p, k_) for p in range(p0, p1 + 1) if p not in range(PI - op('q', 2), PI) for k_ in range(len(vm[p]), 3))
        for n, it in enumerate(lst): vm[free[n * len(free) // len(lst)][0]].append(it)
        isk = lambda it: f"s[{sKV}:" in it[1]
        assert max(len(x) for x in vm) <= 3 and not any(('lds' in it[1] and not isk(it)) or f"v{vMD}," in it[1] for x in vm[:31] for it in x)
        assert not any(isk(it) for x in vm[27:] for it in x)
        kt = []
        def IV(x):
            t = I(x)
            if f"s[{sKV}:" in x: kt.append(t)
        slots = [(mt, t_) for t_ in range(NP) for mt in range(2)] + [(mt, t_) for mt in range(2) for t_ in range(NP, 64)]
        NS = len(slots)
        buf = lambda s_: (s_ >> 1) & 1 if s_ < 2 * NP else (s_ - NP) & 1
        new = lambda s_: s_ < NS and (s_ >= 2 * NP or s_ % 2 == 0)
        blk = [0]
        def rdK(s_):
            t_ = slots[s_][1]
            return I(f"ds_read_b128 {V(Kf[buf(s_)],4)}, v{vK2 if t_ >= 32 else vL16} offset:{(t_&31)*1024}")
        def rdV(s_, h):
            t_ = slots[s_][1]; b = (t_ >> 2) + (8 if t_ >= 32 else 0); d = b - blk[0]; blk[0] = b
            if d == 1: I(f"v_add_u32 v{vV}, v{vInc}, v{vV}")
            elif d: I(f"v_mad_i32_i24 v{vV}, v{vInc}, {d}, v{vV}")
            return I(f"ds_read_b128 {V(Vf[buf(s_)]+4*h,4)}, v{vV} offset:{(t_&3)*1024+h*512}")
        def smf(s_, h): I(f"v_smfmac_f32_32x32x32_bf16 {V(O_[slots[s_][0]],16)}, {V(Vf[buf(s_)]+4*h,4)}, {V(S_[s_&1]+8*h,8)}, v{vIdx}")
        def qk(s_): I(self.mf(S_[s_&1], V(Kf[buf(s_)], 4), V(vQ + 4 * slots[s_][0], 4), '0'))
        def ex(s_, a, b):
            for r in range(a, b): I(f"v_exp_f32 v{S_[s_&1]+r}, v{S_[s_&1]+r}")
        z = 2 * NP + SK; tv = {}; ob = []
        of = self.ofin(0, ob)
        tv[z + 1, 0] = of[:3]; tv[z + 1, 1] = of[3:11]; tv[z + 1, 2] = of[11:]
        pb, pi, pc = op('op', (11, 18, 25))
        for g, it in [(pb, [self.pub(F_O, ob)]), (pi, [self.pissue(F_O, vT)]), (pc, [self.pcheck(F_O, vT)])] + [(pc + k, x) for k, x in enumerate(self.oload(0))]:
            tv.setdefault((z + g // 3, g % 3), []).extend(it)
        for n, (p, x) in enumerate(tl): tv.setdefault((2 * NP + n * op('tls', 8) // TL, (n & 1) * 2), []).extend(p + [x])
        rdK(0); rdV(0, 0); rdV(0, 1)
        qk(0)
        self.stamp("attn0")
        tkK = tkV = None
        for s_ in range(NS):
            mt, t_ = slots[s_]; sk = s_ >= 2 * NP
            v_ = vm[t_] if (mt and not sk) else []
            vs = (s_ + 1 if sk else s_ + 2 if mt == 0 else NS)
            ex(s_, 0, 2)
            if s_: smf(s_ - 1, 1)
            if sk: e.wait(tkV)
            elif mt: e.wait(tkK)
            if new(s_ + 2): tkK = rdK(s_ + 2)
            if v_: IV(v_[0][1])
            if len(v_) > 2: e.seq(v_[1][0])
            e.seq(tv.get((s_, 0), []))
            ex(s_, 2, 5)
            if s_ + 1 < NS: qk(s_ + 1)
            if vs < NS: rdV(vs, 0)
            if len(v_) > 2: IV(v_[1][1])
            if len(v_) > 1: e.seq(v_[-1][0])
            e.seq(tv.get((s_, 1), []))
            ex(s_, 5, 10); smf(s_, 0)
            if not mt and not sk and vm[t_]: e.seq(vm[t_][0][0])
            if vs < NS: tkV = rdV(vs, 1)
            if mt and not sk:
                e.wait(tkV)
                if t_ in op('ast', ()): self.stamp(f"a{t_}")
                if t_ == HF: self.skip([f"s_cmp_gt_u32 s{sLayer}, s{sw}", f"s_cmp_ge_u32 s{sj}, 4"], lambda: self.kv_flag([pre], vT))
                if t_ == 6 or t_ == 30:
                    e.wait(*kt); e.barrier()
                if t_ == 6:
                    def swflag(): I(f"s_lshl_b32 s{sT2}, s{sg}, 7"); I(f"s_add_u32 s{sT2}, s{sT2}, s{sSwF}"); self.lane0(f"s{sT2}")
                    I(f"s_or_b32 s{sT2}, s{sLayer}, s{sw}"); self.skip([f"s_cmp_eq_u32 s{sT2}, 0"], swflag)
                if t_ == 30:
                    I(f"s_or_b32 s{sT2}, s{sLayer}, s{sw}"); I(f"s_or_b32 s{sT2}, s{sT2}, s2")
                    self.skip([f"s_cmp_eq_u32 s{sT2}, 0"], lambda: self.lane0("0"))
                if t_ == NP - 1:
                    I(f"v_cmp_ne_u32 vcc, s{sMyF}, v{vMD}"); I("s_cmp_lg_u64 vcc, 0")
                    I(f"s_cselect_b32 s{sMode}, 1, {1 if self.fsm else 0}")
                if t_ == PC: e.seq([self.kvp_check(vT, 4096)])
                if t_ == SC:
                    I(f"v_cmp_ne_u64 vcc, s[{sN}:{sN+1}], {V(vSD,2)}"); I("s_cbranch_vccnz L_swpoll"); e.label("L_swback")
                    e.tail += ["L_swpoll:", f"    s_mov_b32 s{sCnt}, 0", "L_swp2:", "    " + self.ld(V(vSD, 2), vSA, sWS, f"s{sSwF}", 0, "sc1", w=2),
                               f"    s_add_u32 s{sCnt}, s{sCnt}, 1", f"    s_cmp_gt_u32 s{sCnt}, {POLL_LIM}", "    s_cbranch_scc1 L_end",
                               "    s_waitcnt vmcnt(0)", f"    v_cmp_ne_u64 vcc, s[{sN}:{sN+1}], {V(vSD,2)}", "    s_cbranch_vccnz L_swp2", "    s_branch L_swback"]
            if len(v_) > 1: IV(v_[-1][1])
            e.seq(tv.get((s_, 2), []))
            ex(s_, 10, 16)
        smf(NS - 1, 1)
        self.slow_attn(0, 64, 56, 248, 60); self.slow_attn(1, vS, vF1, vF1 + 8, vF1 + 4)
        self.stamp("attn1")
        e.label("L_post")

    def slow_attn(self, mt, Sx, K, Vv, M):
        x = Em(); I = x.I; O = vO + 16 * mt; va = M + 2
        x.label(f"L_slow{mt}"); x.nop(16)
        I(f"v_and_b32 v{va}, 0x1f0, v{vV}")
        for h in range(2): I(f"ds_read_b128 {V(Vv+4*h,4)}, v{vV}")
        I(f"v_mov_b32 v{M}, 0xff800000"); x.wait_lg0()
        for ps in range(2):
            I(f"s_mov_b32 s{sCnt}, 0")
            x.label(f"L_sa{ps}_{mt}")
            I(f"s_and_b32 s{sT2}, s{sCnt}, 32"); I(f"s_add_u32 s{sT2}, s{sT2}, s{sCnt}"); I(f"s_lshl_b32 s{sT2}, s{sT2}, 10")
            I(self.ld(V(K, 4), vL16, sKV, f"s{sT2}", 0, "sc1"))
            if ps:
                I(f"s_add_u32 s{sT2}, s{sT2}, 0x8000"); I("s_mov_b32 exec_lo, 0xffff"); I("s_mov_b32 exec_hi, 0xffff")
                for h in range(2): I(self.ld(V(Vv + 4 * h, 4), va, sKV, f"s{sT2}", h * 512, "sc1"))
                I("s_mov_b64 exec, -1")
            x.wait_vm0(); x.nop(4)
            I(self.mf(Sx, V(K, 4), V(vQ + 4 * mt, 4), '0'))
            if ps == 0:
                for i in range(8): I(f"v_max3_f32 v{M}, v{Sx+2*i}, v{Sx+2*i+1}, v{M}")
            else:
                for i in range(16): I(f"v_sub_f32 v{Sx+i}, v{Sx+i}, v{M}")
                for i in range(16): I(f"v_exp_f32 v{Sx+i}, v{Sx+i}")
                for h in range(2): I(f"v_smfmac_f32_32x32x32_bf16 {V(O,16)}, {V(Vv+4*h,4)}, {V(Sx+8*h,8)}, v{vIdx}")
                x.nop(16)
            I(f"s_add_u32 s{sCnt}, s{sCnt}, 1"); I(f"s_cmp_lt_u32 s{sCnt}, 64"); I(f"s_cbranch_scc1 L_sa{ps}_{mt}")
            if ps == 0:
                I(f"v_mov_b32 v{M+1}, v{M}"); I(f"v_permlane32_swap_b32 v{M}, v{M+1}"); I(f"v_max_f32 v{M}, v{M}, v{M+1}")
                for i in range(16): I(f"v_mov_b32 v{O+i}, 0")
        if mt == 0:
            for i in range(8): I(f"v_mov_b32 v{RES(0)+8+i}, 0")
        x.nop(4)
        I(f"s_branch L_slowb{mt}")
        self.e.tail += x.lines

    def bar(self, *boxes):
        def f():
            if boxes:
                for b in boxes: self.e.wait(*b)
            else: self.e.wait_lg0()
            self.e.barrier()
        return (f, 10)
    def stp(self, name): return (lambda: self.stamp(name), 0)
    def wt(self, box): return (lambda: self.e.wait(*box), 4)
    def xfin(self, mt, TM, PK, base, box, pk, flag_stats=True):
        o = self.exadd(RES(mt), TM, pk) + self.pack(PK, RES(mt)) + [f"s_add_u32 s{sT2}, s{sP1K}, {hx(base + mt*0x8000)}"]
        o += [self.dcap([self.st(V(PK, 4), vL16, sG, f"s{sT2}")], box)]
        if flag_stats: o += self.rowstats(RES(mt), TM, mt, box, pk)
        return o
    CB = [64, 96]
    def xdma(self, mt, box):
        o = []; CB = self.CB
        for h in range(2):
            for i in range(4):
                o.append(([f"s_add_u32 m0, s{sW8K}, {hx(G_X1 + mt*0x8000 + h*4096)}"] if i == 0 else []) + [self.cap(self.dma(vL16, sG, "m0", i * 1024, "sc1"), box[h])])
        o.append([f"s_add_u32 s{sT3}, s{sStL}, {mt*0x2000}", self.ld(V(CB[mt], 4), vL16, sG, f"s{sT3}", 0, "sc1")])
        o.append([self.ld(V(CB[mt] + 4, 4), vL16, sG, f"s{sT3}", 1024, "sc1")])
        return o
    def wo(self):
        e = self.e; I = e.I; op = self.opt.get
        TM = 208; PR = vT
        def mm(mt): return [self.mf(vACC + 32 * mt + 16 * n, V(vWO + (2 * ks + n) * 4, 4), V(self.OB[mt][ks], 4), '0' if (ks == 0 and n == 1) else None)
                            for ks in range(8) for n in range(2)]
        ob = []; b0 = []; self.b1 = []; self.d0 = [[], []]
        z1 = [f"v_mov_b32 v{RES(1)+8+i}, 0" for i in range(8)]
        self.sched(mm(0), {7: [self.bar()] + z1[:2], 8: z1[2:], op('op1', 14): [self.pub(F_O + 1, ob)]}, self.ofin(1, ob), 1, 4, name='wo0')
        e.seq(self.exw(vACC, 0)); e.seq(self.ffn_setup()); e.seq([self.bar()])
        e.seq(self.exr(TM, 0)); I(self.pissue(F_O + 1, PR))
        e.seq(self.xfin(0, TM, 232, G_X1, b0, True))
        e.seq([self.pcheck(F_O + 1, PR)])
        self.stamp("opoll")
        for o in self.oload(1): e.seq(o)
        B = 236
        for i in range(4):
            I(f"v_lshlrev_b32 v{B}, 16, v{vB2+i}"); I(f"v_and_b32 v{B+1}, 0xffff0000, v{vB2+i}")
            I(f"v_pk_add_f32 {V(RES(0)+2*i,2)}, {V(RES(0)+2*i,2)}, {V(B,2)}")
        for i in range(8): I(f"v_mov_b32 v{RES(0)+8+i}, 0")
        e.seq([self.pub(F_X1, b0)])
        pi, pc = op('xp0', (6, 15))
        xd = self.xdma(0, self.d0)
        ev = {pi - 1: [self.bar()], pi: [self.pissue(F_X1, PR)], pc: [self.pcheck(F_X1, PR)]}
        for g in range(pc, 16): ev.setdefault(g, []).extend(xd.pop(0))
        self.sched(mm(1), ev, name='wo1')
        e.seq(xd.pop(0))
        e.seq(self.exw(vACC + 32, 0x8000))
        for o in xd: e.seq(o)
        e.seq([self.bar()])
        e.seq(self.exr(TM, 0x8000)); e.seq(self.xfin(1, TM, 236, G_X1, self.b1, True))
        self.stamp("wodone")

    def gelu(self, acc, k1, k2, sd, T, P, stores):
        o = []
        for b in range(4):
            a = acc + 4 * b; t = T + 4 * (b & 1)
            o += [f"v_mul_f32 v{t+i}, v{a+i}, v{a+i}" for i in range(4)]
            o += [f"v_fma_f32 v{t+i}, v{t+i}, v{k2}, v{k1}" for i in range(4)]
            o += [f"v_mul_f32 v{t+i}, v{t+i}, v{a+i}" for i in range(4)]
            o += [f"v_exp_f32 v{t+i}, v{t+i}" for i in range(4)]
            o += [f"v_fma_f32 v{t+i}, v{t+i}, v{sd}, v{sd}" for i in range(4)]
            o += [f"v_rcp_f32 v{t+i}, v{t+i}" for i in range(4)]
            o += [f"v_mul_f32 v{a+i}, v{a+i}, v{t+i}" for i in range(4)]
            o += self.pack(P + 2 * b, a, 2)
            if b & 1: o.append(stores(b >> 1, P + 4 * (b >> 1)))
        return o
    def ffn_setup(self):
        XQ = vT + 2; ah = vT + 6; o = []
        for q in range(4): o += [f"s_add_u32 s{sT5}, s{sQ+q}, {hx(L_V)}", f"v_add_u32 v{XQ+q}, s{sT5}, v{vL16}"]
        return o + [f"v_add_u32 v{ah}, {hx(L_ST)}, v{vL16}", f"s_lshl_b32 s{sT5}, s{sw}, 2", f"v_add_u32 v{ah+1}, s{sT5}, v{ah}"]
    def ffn(self):
        e = self.e; I = e.I; op = self.opt.get
        AC = [176, 192]; RG = 208; GT = 240; GP = 248
        XQ = vT + 2; ah = vT + 6; PR = vT
        CB = self.CB
        e.undef('v', 176, 80); e.undef('v', 72, 8); e.undef('v', 96, 16)
        KS = [2 * u + h for u in self.UA + self.UB for h in range(2)]
        def add(ev, g, *items): ev.setdefault(g, []).extend(items)
        def ssum(mt, box):
            t = CB[mt]
            return [f"v_add_f32 v{t+i}, v{t+i}, v{t+4+i}" for i in range(4)] + [f"v_add_f32 v{t}, v{t}, v{t+1}", f"v_add_f32 v{t+2}, v{t+2}, v{t+3}",
                    f"v_add_f32 v{t}, v{t}, v{t+2}", self.cap(f"ds_write_b32 v{ah+1}, v{t} offset:{mt*1024}", box)]
        def srd_(mt): return f"ds_read_b128 {V(CB[mt],4)}, v{ah} offset:{mt*1024}"
        def sfin(mt):
            t = CB[mt]; m = t + 8; r = t + 9; s_ = t + 10; b = t + 12
            return self.stat_fin(t, m, r, s_) + [
                f"v_cvt_pk_bf16_f32 v{b}, -v{m}, -v{m}", f"v_lshlrev_b32 v{t}, 16, v{b}", f"v_add_f32 v{t}, v{t}, v{m}",
                f"v_cvt_pk_bf16_f32 v{b+1}, -v{t}, v{s_}", f"v_and_b32 v{t+1}, 0xffff0000, v{b+1}", f"v_sub_f32 v{t+1}, v{s_}, v{t+1}",
                f"v_cvt_pk_bf16_f32 v{b+3}, -v{t}, v{t+1}", f"v_mov_b32 v{b+2}, v{b}",
                f"v_mul_f32 v{t}, v{r}, v{r}", f"v_mul_f32 v{m}, {hx(f2u(C1))}, v{r}", f"v_mul_f32 v{t}, {hx(f2u(0.044715))}, v{t}",
                f"v_mul_f32 v{r}, v{t}, v{m}"]
        rt = {}
        def rd(k):
            c, i = divmod(k, 32); rt[k] = []
            return (self.cap(f"ds_read_b128 {V(RG+4*(k%8),4)}, v{XQ+i//8} offset:{(c>>1)*0x8000+(i%8)*1024}", rt[k])[0], 5)
        def chain(c):
            n, mt = c & 1, c >> 1
            return [self.mf(AC[n], A((2 * i + n) * 4, 4), V(RG + 4 * (i % 8), 4), '0' if i == 0 else None) for i in range(32)] + \
                   [self.mf(AC[n], V(vAUG + 4 * n, 4), V(CB[mt] + 12, 4))]
        def w2r(f):
            if f < 16: return V(vWO + 4 * f, 4)
            if f < 40: return A(8 * (f - 16), 4)
            return A(8 * (f - 24) + 4, 4)
        blk = {}
        def gld(dst, voff, srd, base, sreg, extra, ks):
            o = []
            if blk.get(sreg) != (extra, ks // 4):
                blk[sreg] = (extra, ks // 4); o.append(f"s_add_u32 s{sreg}, s{base}, {hx(extra + (ks // 4) * 4096)}")
            return o + [self.ld(dst, voff, srd, f"s{sreg}", (ks % 4) * 1024, op('w2fl', 'sc1') if srd == sWS else "sc1")]
        def w2(f): return [] if op('now2') else gld(w2r(f), vL16x, sWS, sW2o + (f & 1), sT0 + (f & 1), 0, KS[f >> 1])
        HQ = [(mt, p) for mt in range(2) for p in range(28)]
        def hr(q): r = q % 24; return A(8 * (24 + r), 4) if r < 8 else A(8 * (r - 8) + 4, 4)
        def hl(q): return gld(hr(q), vL16, sG, sHl, sT4, HQ[q][0] * 0x1c000, KS[HQ[q][1]])
        hb = [[] for _ in range(4)]
        def gel(c):
            n, mt = c & 1, c >> 1
            def f(half, reg):
                def g_():
                    if mt: I(f"s_add_u32 s{sT2}, s{sHs+n}, 0x1c000")
                    hb[c].extend(self.dual([self.st(V(reg, 4), vL16, sG, f"s{sT2 if mt else sHs+n}", half * 1024)]))
                return (g_, 20)
            return self.gelu(AC[n], CB[mt] + 8, CB[mt] + 9, CB[mt] + 10, GT, GP, f)
        def spread(ev, items, g0, g1):
            for k, it in enumerate(items): add(ev, g0 + (k * (g1 - g0 + 1)) // len(items), *it)
        d0 = self.d0; d1 = [[], []]; sb = [[], []]
        for h in range(2):
            e.wait(*d0[h]); e.seq([rd(4 * h + i) for i in range(4)])
        ev = [{} for _ in range(8)]
        LEN = [33, 33, 33, 33, 32, 24, 32, 24]
        def at(c, g):
            while g >= LEN[c]: g -= LEN[c]; c += 1
            return ev[c], g
        def spr(c, items, g0, g1):
            for k, it in enumerate(items): add(*at(c, g0 + (k * (g1 - g0 + 1)) // len(items)), *it)
        B1 = 3
        s0 = ssum(0, sb[0]); add(ev[0], 0, *s0[:4]); add(ev[0], 1, *s0[4:]); add(ev[0], B1, self.bar(sb[0]), srd_(0))
        pb, pi, pc, pl, DW, B2 = op('xp1', (6, 19, 29, 42, 55, 59))
        add(*at(0, pb), self.pub(F_X1 + 1, self.b1)); add(*at(0, pi), self.pissue(F_X1 + 1, PR)); add(*at(0, pc), self.pcheck(F_X1 + 1, PR))
        spr(0, self.xdma(1, d1), pc, pl)
        s1 = ssum(1, sb[1]); add(*at(0, DW), self.wt(d1[1]), *s1[:4]); add(*at(0, DW + 1), *s1[4:]); add(*at(0, B2), self.bar(sb[1]), srd_(1))
        for (c, f0, f1, g0, g1) in op('w2', [(0, 0, 10, 7, 28), (1, 10, 16, 12, 31), (2, 16, 36, 0, 32), (3, 36, 40, 0, 5)]): spr(c, [w2(f) for f in range(f0, f1)], g0, g1)
        HP = op('hp', [(5, 36, 48, 77), (5, 34, 45, 68), (5, 26, 37, 68), (3, 26, 37, 60)])
        Q0 = [0, 16, 28, 44, 56]
        for c in range(4):
            pb, pi, pc, pl = HP[c]
            add(*at(c + 2, pb), self.pub(F_H + c, hb[c])); add(*at(c + 2, pi), self.pissue(F_H + c, PR)); add(*at(c + 2, pc), self.pcheck(F_H + c, PR))
            spr(c + 2, [hl(q) for q in range(Q0[c], Q0[c + 1])], pc, pl)
        def wq(f): return gld(V(vWO + 4 * f, 4), vL16, sWS, sWQo, sT1, 0, f)
        if op('wqp') is not None:
            add(*at(3, op('wqp', 3)), f"s_and_b32 s{sT5}, s{sg}, 3", f"s_lshl_b32 s{sT5}, s{sT5}, 12", f"s_add_u32 s{sT5}, s{sT5}, s{sWQo}",
                f"v_lshlrev_b32 v{vJ}, 6, v{vLane}", "!" + self.ld(V(vJ), vJ, sWS, f"s{sT5}", 0, "sc1", w=1))
        add(ev[4], 0, f"s_lshl_b32 s{sT5}, s{sW8K}, 1", f"v_add_u32 v{XQ}, s{sT5}, v{vL16}")
        spr(4, [[f"ds_read_b128 {w2r(f)}, v{XQ} offset:{((f-40)>>2)*4096 + (f&1)*2048 + ((f>>1)&1)*1024}"] for f in range(40, 56)], *op('w2l', (25, 36)))
        GE = op('ge', (27, 27, 27, 24))
        pos = lambda k: k + k // 32
        cnt = {}; gap = {}
        assert B2 >= pos(56)
        for k in range(8, 128):
            g = max(pos(k - 7), B1 if k < 64 else DW if k < 72 else B2)
            while cnt.get(g, 0) >= 2: g += 1
            cnt[g] = cnt.get(g, 0) + 1; gap[k] = g
            add(ev[g // 33], g % 33, rd(k))
        for k in range(8, 128, 4):
            g = pos(k) - 1
            if gap[k + 3] <= g - 2: add(ev[g // 33], g % 33, self.wt(rt[k + 3]))
        fill = sfin(0) + [f"v_mov_b32 v{RES(1)+8+i}, 0" for i in range(8)]
        for i in range(8): fill += [f"v_and_b32 v{GT}, 0xffff0000, v{vB2+i//2}" if i & 1 else f"v_lshlrev_b32 v{GT}, 16, v{vB2+i//2}", f"v_add_f32 v{RES(1)+i}, v{RES(1)+i}, v{GT}"]
        self.sched(chain(0), ev[0], fill, B1 + 3, 27, name="c0")
        sf = sfin(1); spr(0, [[x] for x in sf], B2 + 2, B2 + 7)
        self.sched(chain(1), ev[1], gel(0), 1, GE[0], name="c1")
        self.sched(chain(2), ev[2], gel(1), 1, GE[1], name="c2")
        self.sched(chain(3), ev[3], gel(2), 1, GE[2], name="c3")
        def part(c):
            return [self.mf(vACC + 32 * HQ[q][0] + 16 * n, w2r(2 * HQ[q][1] + n), hr(q), '0' if (HQ[q][1] == 0 and n == 1) else None) for q in range(Q0[c], Q0[c + 1]) for n in range(2)]
        self.sched(part(0), ev[4], gel(3), 1, GE[3], name="A0")
        self.sched(part(1), ev[5], name="B0")
        TM = 176; PK = 248
        w = self.exw(vACC, 0); r = self.exr(TM, 0); XB, F1 = op('x2b', (7, 21))
        for g, it in {1: w[:2], 2: w[2:4], 3: w[4:], XB: [self.bar()] + r[:3], XB + 1: r[3:]}.items(): add(ev[6], g, *it)
        I(f"s_cmp_lg_u32 s{sLayer}, 0"); I("s_cbranch_scc1 L_final")
        snap = (e.now, copy.deepcopy(e.h), list(e.vmq), list(e.lgq), set(e.und), self.nst)
        def last(ex, fill, fin):
            for g, it in ex.items():
                if g < 56: ev_, g_ = at(6, g); ev_[g_] = ev_.get(g_, []) + it
            self.sched(part(2), ev[6], fill, XB + 3, F1, name='A1')
            self.sched(part(3), ev[7], name='B1')
            e.seq(ex.get(56, []))
            e.seq(self.exw(vACC + 32, 0x8000))
            for g in range(57, 64): e.seq(ex.get(g, []))
            e.wait_lg0(); e.barrier()
            e.seq(self.exr(TM, 0x8000)); e.seq(fin)
            self.stamp("f2done")
        keep = [dict(ev[6]), dict(ev[7])]
        ex = {}; fill = []; b1 = []
        g0, g1 = op('wq', (31, 48))
        for f in range(16): add(ex, g0 + f * (g1 - g0 + 1) // 16, *wq(f))
        self.q2_pre(ex, fill, TM, PK)
        last(ex, fill, self.xfin(1, TM, PK + 4, G_X2, b1, True))
        if self.stamps: self.dump_stamps(0)
        self.qkv2(b1)
        e.nop(4); I("s_branch L_loop")
        e.label("L_final")
        e.now, e.h, e.vmq[:], e.lgq[:], e.und, self.nst = snap; e.mf_t = None
        ev[6], ev[7] = keep; names = list(self.stnames)
        if op('wb'):
            I(f"s_lshr_b32 s{sT5}, s2, 3"); I(f"s_or_b32 s{sT5}, s{sT5}, s{sw}"); I("s_cbranch_scc1 L_nowb")
            e.begin_opt(); I("!buffer_wbl2 sc1"); e.end_opt(); e.label("L_nowb")
        ofl = op('ofl', '')
        fin = lambda mt, pk: self.exadd(RES(mt), TM, pk) + self.pack(PK + 4 * mt, RES(mt)) + [self.st(V(PK + 4 * mt, 4), vT + 5, sTA, f"s{sT6 if mt else sRow}", fl=ofl)]
        last({4: [lambda: self.srd(sTA, pOUT, 0x200000), f"s_add_u32 s{sT6}, s{sRow}, 0x8000"], 5: self.rowaddr(vT + 5, vT + 4)}, fin(0, False), fin(1, True))
        self.stnames = names
        if self.stamps: self.rt(63); self.dump_stamps(256)
        if not self.opt.get('nofw'): e.wait_vm0()
        dg = self.opt.get('diag')
        if dg:
            if dg[4]: I("s_lshr_b32 s1, s1, 4")
            I(f"s_mul_i32 s1, s1, {dg[3]}"); I("s_min_u32 s1, s1, 50000")
            I(f"s_memrealtime s[{sM}:{sM+1}]"); e.wait_lg0(force=True); I(f"s_mov_b32 s0, s{sM}")
            e.label("L_dgs")
            I(f"s_memrealtime s[{sM}:{sM+1}]"); e.wait_lg0(force=True); I(f"s_sub_u32 s3, s{sM}, s0"); I("s_cmp_lt_u32 s3, s1"); I("s_cbranch_scc1 L_dgs")
        e.label("L_end")
        I("s_endpgm")
    def dump_stamps(self, off):
        I = self.I
        I(f"s_lshl_b32 s{sT5}, s2, 2"); I(f"s_add_u32 s{sT5}, s{sT5}, s{sw}"); I(f"s_lshl_b32 s{sT5}, s{sT5}, 9"); I(f"s_add_u32 s{sT5}, s{sT5}, {hx(STAMP)}")
        I(f"v_lshlrev_b32 v{vT+2}, 2, v{vLane}")
        I(self.st("v47", vT + 2, sWS, f"s{sT5}", off, w=1))

    def build(self):
        e = self.e
        self.prologue()
        self.qkv1()
        e.label("L_loop")
        self.attention(); self.wo(); self.ffn()
        ref = open(f"cdna_kernels/{NAME}.s.ref").read()
        head = ref[:ref.index("; @launch")]
        out = head + f"; @launch grid=(256,1,1) block=(256,1,1) lds={LDS_BYTES}\n"
        out += f""".amdgcn_target "amdgcn-amd-amdhsa--gfx950"
.text
.globl {NAME}_kernel
.p2align 8
.type {NAME}_kernel,@function
{NAME}_kernel:
"""
        body = e.text()
        out += body + "L_codeend:\n    s_endpgm\n"
        out += f""".section .rodata,"a"
.p2align 6
.amdhsa_kernel {NAME}_kernel
  .amdhsa_next_free_vgpr 512
  .amdhsa_next_free_sgpr 102
  .amdhsa_accum_offset 256
  .amdhsa_group_segment_fixed_size 0
  .amdhsa_kernarg_size 104
  .amdhsa_user_sgpr_count 2
  .amdhsa_user_sgpr_kernarg_segment_ptr 1
  .amdhsa_system_sgpr_workgroup_id_x 1
.end_amdhsa_kernel
"""
        out = out.replace("CODE_SPAN", "(L_end-L_nopf-2048)")
        return out

if __name__ == "__main__":
    import argparse
    ap = argparse.ArgumentParser()
    ap.add_argument("-o", default=f"cdna_kernels/{NAME}.s")
    ap.add_argument("--stamps", action="store_true"); ap.add_argument("--fsa", action="store_true"); ap.add_argument("--fsm", action="store_true")
    ap.add_argument("--nopf", action="store_true"); ap.add_argument("--nops", action="store_true")
    ap.add_argument("--opt", default="{}")
    a = ap.parse_args()
    g = Gen(stamps=a.stamps, force_slow_attn=a.fsa, force_slow_mode=a.fsm, codepf=not a.nopf, opt=eval(a.opt))
    txt = g.build()
    if a.stamps: txt = txt.replace("; @launch", "; stamps: " + ",".join(g.stnames) + "\n; @launch", 1)
    open(a.o, "w").write(txt)
    print("written", a.o, len(txt), "bytes; nops", g.e.nops)
    if a.nops:
        for n, t in g.e.nop_log: print(n, t)
```

```python
import sys, os, math, struct, copy
sys.path.insert(0, os.path.dirname(os.path.abspath(__file__)))
from em import *

NAME = "interleave_layers__grouped_kv_mqa__dense_activation_gelu__prompt"
def f2u(x): return struct.unpack('<I', struct.pack('<f', x))[0]
def hx(x): return hex(x & 0xffffffff)

GF = 0x10000; KVB = 0x40000; W1S = 0x100000; W2S = 0x300000; WOS = 0x500000; WQS = 0x580000; STAMP = 0x600000; GRP = 0x800000
WSLIM = 0x800000
G_FL = 0; G_ST = 0x2000; G_X1 = 0x10000; G_X2 = 0x10000; G_O = 0x3c000; G_H = 0x20000; G_SZ = 0x58000; G_STR = 0x60000
BIG = 0x10000000
L_V = 0x10000; L_X = 0x10000; L_KVR = 0x20000; L_ST = 0x20000; L_CSR = 0x20800; L_CST = 0x20c00; L_ONES = 0x21000; L_WKV = 0x24000
LDS_BYTES = 0x28000
sWS, sG, sKV, sWQ, sTA, sTB = 4, 8, 12, 16, 20, 24
pX, pWQ, pWK, pWV, pWO, pW1, pB1, pW2, pB2, pOUT, pDBG, pWS = 28, 30, 32, 34, 36, 40, 42, 44, 46, 48, 50, 52
sg, sj, sw, sLayer, sMode, sMyF = 54, 55, 56, 57, 58, 59
sN = 60
sT0, sT1, sT2, sT3, sT4, sT5, sT6, sT7 = 62, 63, 64, 65, 66, 67, 68, 69
sCnt = 70; sOnes = 71
sM = 72
sP1K = 74
sW8K = 75
sW1K = 76
sFlSt = 77
sFlPo = 78
sKVFs = 79
sKVFp = 80
sQ = 81
sW1o = 85
sWOo = 87
sW2o = 89
sHs = 91
sHl = 93
sRow = 94
sKVst = 95
sWQo = 96
sWQl = 98
sSwD = 99
sAug = 100
sSwF = 101
sStS = 32; sStL = 33
F_O, F_X1, F_H, F_X2 = 0, 2, 4, 8
vL16, vL16x, vPoll, vN, vEW, vER, vIdx, vV = 1, 2, 3, 4, 6, 7, 10, 11
vFl, vP8 = 45, 46
vCSKV, vCSQ, vB2, vAUG = 12, 16, 24, 28
vT = 36
vACC = 48
def RES(mt): return vACC + 32 * mt
vF0 = 56; vF1 = 88
vWO = 112
vS = 176; vO = 208; vQ = 240
vLane = 0
vInc = vT + 2; vK2 = vT + 3; vJ = vT + 8; vMA = 65; vSA = 66; vMD = 67; vSD = 68
vSTAMP = 111 ; vSTAMP0 = 110
POLL_LIM = 1 << 17
RTL = {'attn0': 59, 'attn1': 60, 'f2done': 61}

C1 = -2.0 * math.sqrt(2.0 / math.pi) * math.log2(math.e)
C2 = 0.044715 * C1
QS = 0.25 * math.log2(math.e)


class Gen:
    def __init__(self, stamps=False, force_slow_attn=False, force_slow_mode=False, codepf=True, opt=None):
        self.opt = opt or {}
        self.e = Em(); self.stamps = stamps; self.fsa = force_slow_attn; self.fsm = force_slow_mode
        self.codepf = codepf
        self.nst = 0; self.stnames = []
    def I(self, t): return self.e.I(t)
    def srd(self, d, p, n):
        I = self.I
        I(f"s_mov_b32 s{d}, s{p}"); I(f"s_mov_b32 s{d+1}, s{p+1}")
        I(f"s_mov_b32 s{d+2}, {hx(n)}"); I(f"s_mov_b32 s{d+3}, 0x20000")
    def stamp(self, name):
        e = self.e
        dg = self.opt.get('diag')
        if dg and name in dg[:2]:
            lab = e.newlab("L_dg")
            if name != 'start': e.I(f"s_cmp_lg_u32 s{sLayer}, {dg[2][dg.index(name)]}"); e.I(f"s_cbranch_scc1 {lab}")
            e.wait_lg0()
            e.I(f"{'s_memtime' if dg[4] else 's_memrealtime'} s[{sM}:{sM+1}]"); e.wait_lg0(force=True)
            e.I(f"s_mov_b32 s0, s{sM}" if name == dg[0] else f"s_sub_u32 s1, s{sM}, s0")
            e.label(lab)
        if not self.stamps: return
        e.I(f"s_memtime s[{sM}:{sM+1}]"); e.wait_lg0(force=True)
        e.I(f"v_writelane_b32 v47, s{sM}, {self.nst}")
        self.stnames.append(name); self.nst += 1
        if name in RTL: self.rt(RTL[name])
    def rt(self, lane):
        if not self.stamps: return
        e = self.e
        e.I(f"s_memrealtime s[{sM}:{sM+1}]"); e.wait_lg0(force=True)
        e.I(f"v_writelane_b32 v47, s{sM}, {lane}")
    def ld(self, dst, voff, srd, soff, imm=0, fl="", w=4):
        mn = {4: "dwordx4", 2: "dwordx2", 1: "dword"}[w]
        return f"buffer_load_{mn} {dst}, v{voff}, s[{srd}:{srd+3}], {soff} offen" + (f" offset:{imm}" if imm else "") + (" " + fl if fl else "")
    def dma(self, voff, srd, soff, imm=0, fl=""):
        return f"buffer_load_dwordx4 v{voff}, s[{srd}:{srd+3}], {soff} offen" + (f" offset:{imm}" if imm else "") + (" " + fl if fl else "") + " lds"
    def st(self, src, voff, srd, soff, imm=0, fl="", w=4):
        mn = {4: "dwordx4", 2: "dwordx2", 1: "dword"}[w]
        return f"buffer_store_{mn} {src}, v{voff}, s[{srd}:{srd+3}], {soff} offen" + (f" offset:{imm}" if imm else "") + (" " + fl if fl else "")
    def dual(self, stores):
        e = self.e
        lab = e.newlab("L_sl"); back = e.newlab("L_bk")
        regs = []
        for s in stores: regs += regs_of(s)
        e._autowait(regs)
        e.I(f"s_cmp_lg_u32 s{sMode}, 0"); e.I(f"s_cbranch_scc1 {lab}")
        toks = [e.I(s) for s in stores]
        e.label(back)
        e.tail += [lab + ":", "    s_nop 7", "    s_nop 7"]
        e.tail += ["    " + (s + " sc1" if s.startswith("buffer_") else s) for s in stores]
        e.tail += [f"    s_branch {back}"]
        return toks
    def publish(self, slot):
        e = self.e
        e.wait_vm0()
        e.I("s_mov_b64 exec, 1")
        self.dual([self.st(V(vN, 2), vPoll, sG, f"s{sFlSt}", slot * 8, w=2)])
        e.I("s_mov_b64 exec, -1")
    def poll(self, srd, soff, imm, nl, kv=False):
        e = self.e
        lab = e.newlab("L_poll")
        if nl < 64: e.I(f"s_mov_b64 exec, {hex((1 << nl) - 1)}")
        e.I(f"s_mov_b32 s{sCnt}, 0")
        e.label(lab)
        e.I(self.ld(V(vT, 2), vPoll, srd, soff, imm, "sc1", w=2))
        e.I(f"s_add_u32 s{sCnt}, s{sCnt}, 1"); e.I(f"s_cmp_gt_u32 s{sCnt}, {POLL_LIM}"); e.I("s_cbranch_scc1 L_end")
        e.wait_vm0()
        if kv: e.I(f"v_and_b32 v{vT}, -16, v{vT}")
        e.I(f"v_cmp_ne_u64 vcc, s[{sN}:{sN+1}], {V(vT, 2)}")
        e.I(f"s_cbranch_vccnz {lab}")
        if nl < 64: e.I("s_mov_b64 exec, -1")
    def gpoll(self, slot): self.poll(sG, f"s{sFlPo}", slot * 8, 8)
    def pub(self, slot, toks):
        def f():
            self.e.wait(*toks)
            self.dual([self.st(V(vN, 2), vFl, sG, f"s{sFlSt}", slot * 8, w=2)])
        return (f, 24)
    def pissue(self, slot, r): return self.ld(V(r, 2), vP8, sG, f"s{sFlPo}", slot * 8, "sc1", w=2)
    def pcheck(self, slot, r):
        def f():
            e = self.e; lab = e.newlab("L_sp"); back = e.newlab("L_sb")
            e.I(f"v_cmp_ne_u64 vcc, s[{sN}:{sN+1}], {V(r, 2)}"); e.I(f"s_cbranch_vccnz {lab}"); e.label(back)
            e.tail += [lab + ":", f"    s_mov_b32 s{sCnt}, 0", lab + "a:", "    " + self.pissue(slot, r),
                       f"    s_add_u32 s{sCnt}, s{sCnt}, 1", f"    s_cmp_gt_u32 s{sCnt}, {POLL_LIM}", "    s_cbranch_scc1 L_end",
                       "    s_waitcnt vmcnt(0)", f"    v_cmp_ne_u64 vcc, s[{sN}:{sN+1}], {V(r, 2)}", f"    s_cbranch_vccnz {lab}a", f"    s_branch {back}"]
        return (f, 16)
    def cap(self, text, box):
        def f(): box.append(self.e.I(text))
        return (f, 10)
    def dcap(self, stores, box):
        if self.opt.get('dnt'): stores = [s + " nt" if s.startswith("buffer_store_dwordx4") else s for s in stores]
        def f(): box.extend(self.dual(stores))
        return (f, 8 + 10 * len(stores))
    def sched(self, mfmas, ev, fill=(), f0=0, f1=None, name=None):
        for g in self.opt.get('fst', {}).get(name, ()): ev.setdefault(g, []).append(self.stp(f"{name}.{g}"))
        self._sched(mfmas, ev, fill, f0, f1)
        if name and name not in self.opt.get('nost', ()): self.stamp(name)
    def _sched(self, mfmas, ev, fill, f0, f1):
        e = self.e; n = len(mfmas); fill = list(fill); f1 = n - 1 if f1 is None else f1
        evc = [sum(cost(x) for x in ev.get(i, [])) for i in range(n)]
        tot = sum(cost(x) for x in fill) + sum(evc[f0:f1 + 1]); done = 0
        e.seq(ev.get(-1, []))
        for i in range(n):
            e.I(mfmas[i]); e.seq(ev.get(i, []))
            if f0 <= i <= f1:
                done += evc[i]
                while fill and (done + cost(fill[0]) / 2 <= tot * (i - f0 + 1) / (f1 - f0 + 1) or i == f1):
                    done += cost(fill[0]); e.seq([fill.pop(0)])
    def rowstats(self, x, t, mt, box, pk=True):
        if pk:
            o = [f"v_pk_mul_f32 {V(t+2,2)}, {V(x,2)}, {V(x,2)}", f"v_pk_add_f32 {V(t,2)}, {V(x,2)}, {V(x+2,2)}"]
            for i in (2, 4, 6):
                o.append(f"v_pk_fma_f32 {V(t+2,2)}, {V(x+i,2)}, {V(x+i,2)}, {V(t+2,2)}")
                if i > 2: o.append(f"v_pk_add_f32 {V(t,2)}, {V(t,2)}, {V(x+i,2)}")
            o += [f"v_add_f32 v{t}, v{t}, v{t+1}", f"v_add_f32 v{t+2}, v{t+2}, v{t+3}"]
        else:
            o = [f"v_mul_f32 v{t+2}, v{x}, v{x}", f"v_add_f32 v{t}, v{x}, v{x+1}", f"v_fmac_f32 v{t+2}, v{x+1}, v{x+1}"]
            for i in range(2, 8): o += [f"v_add_f32 v{t}, v{t}, v{x+i}", f"v_fmac_f32 v{t+2}, v{x+i}, v{x+i}"]
        o.append(f"s_add_u32 s{sT2}, s{sStS}, {mt*0x2000}")
        o += [f"v_permlane32_swap_b32 v{t}, v{t+2}", f"v_add_f32 v{t}, v{t}, v{t+2}",
              self.dcap([self.st(V(t), vL16, sG, f"s{sT2}", w=1)], box)]
        return o
    def mf(self, d, a, b, c=None):
        return f"v_mfma_f32_32x32x16_bf16 {V(d,16)}, {a}, {b}, {V(d,16) if c is None else c}"
    def mf16(self, d, a, b, first):
        return f"v_mfma_f32_16x16x32_bf16 {V(d,4)}, {a}, {b}, {'0' if first else V(d,4)}"
    def exw(self, acc, area, ew=vEW):
        return [f"ds_write_b128 v{ew}, {V(acc+8*q+4*h,4)} offset:{area+(q-1)*2048+h*1024}" for q in (1, 2, 3) for h in (0, 1)]
    def exr(self, tmp, area, er=vER):
        return [f"ds_read_b128 {V(tmp+8*(q-1)+4*h,4)}, v{er+q-1} offset:{area+h*1024}" for q in (1, 2, 3) for h in (0, 1)]
    def exadd(self, dst, tmp, pk=True):
        if pk: return [f"v_pk_add_f32 {V(dst+i,2)}, {V(dst+i,2)}, {V(tmp+8*q+i,2)}" for q in range(3) for i in (0, 2, 4, 6)]
        return [f"v_add_f32 v{dst+i}, v{dst+i}, v{tmp+8*q+i}" for q in range(3) for i in range(8)]
    def pack(self, dst, src, n=4):
        return [f"v_cvt_pk_bf16_f32 v{dst+i}, v{src+2*i}, v{src+2*i+1}" for i in range(n)]
    def dots(self, s, q, x, n):
        out = []
        for i in range(n):
            out.append((f"v_dot2c_f32_bf16 v{s}, s{sOnes}, v{x+i}", 8))
            out.append((f"v_dot2c_f32_bf16 v{q}, v{x+i}, v{x+i}", 8))
        return out
    def stat_write(self, s, q, addr, mt):
        return [f"v_permlane32_swap_b32 v{s}, v{q}", f"v_add_f32 v{s}, v{s}, v{q}", f"ds_write_b32 v{addr}, v{s} offset:{mt*1024}"]
    def stat_fin(self, t, m, r, sd=None):
        o = [f"v_add_f32 v{t}, v{t}, v{t+1}", f"v_add_f32 v{t+2}, v{t+2}, v{t+3}", f"v_add_f32 v{t}, v{t}, v{t+2}",
             f"v_mul_f32 v{m}, {hx(f2u(1/512))}, v{t}", f"v_mul_f32 v{t}, {hx(f2u(1/512))}, v{t}",
             f"v_permlane32_swap_b32 v{m}, v{t}",
             f"v_fma_f32 v{t}, -v{m}, v{m}, v{t}", f"v_max_f32 v{t}, 0, v{t}", f"v_add_f32 v{t}, {hx(f2u(1e-5))}, v{t}",
             f"v_rsq_f32 v{r}, v{t}"]
        if sd is not None: o.append(f"v_mul_f32 v{sd}, v{t}, v{r}")
        return o

    def prologue(self):
        e = self.e; I = e.I
        if self.opt.get('diag', [0])[0] == 'first': I("s_memrealtime s[74:75]")
        I("s_cmp_ge_u32 s2, 256"); I("s_cbranch_scc1 L_end")
        I("s_load_dwordx16 s[28:43], s[0:1], 0"); I("s_load_dwordx8 s[44:51], s[0:1], 64"); I("s_load_dwordx2 s[52:53], s[0:1], 96")
        if self.stamps: I("v_mov_b32 v47, 0")
        I(f"v_lshrrev_b32 v{vT}, 6, v0"); I(f"v_and_b32 v{vLane}, 63, v0")
        I(f"v_readfirstlane_b32 s{sw}, v{vT}")
        I(f"s_and_b32 s{sg}, s2, 7"); I(f"s_lshl_b32 s{sg}, s{sg}, 2"); I(f"s_lshr_b32 s{sT0}, s2, 6"); I(f"s_add_u32 s{sg}, s{sg}, s{sT0}")
        I(f"s_lshr_b32 s{sj}, s2, 3"); I(f"s_and_b32 s{sj}, s{sj}, 7")
        I(f"s_and_b32 s{sw}, s{sw}, 3")
        I(f"v_lshlrev_b32 v{vL16}, 4, v{vLane}")
        I(f"v_lshrrev_b32 v{vT+4}, 4, v{vLane}"); I(f"v_and_b32 v{vT+5}, 15, v{vLane}")
        for qq in range(4):
            I(f"v_add_u32 v{vT+6}, {4*qq}, v{vT+4}")
            I(f"v_xor_b32 v{vT+7}, v{vT+6}, v{vT+5}")
            I(f"v_add_u32 v{vT+6}, {3*qq}, v{vT+4}")
            I(f"v_lshlrev_b32 v{vT+6}, 10, v{vT+6}")
            I(f"v_lshl_add_u32 v{vT+qq}, v{vT+7}, 4, v{vT+6}")
        if self.opt.get('diag', [0])[0] == 'first': e.wait_lg0(force=True); I("s_mov_b32 s0, s74")
        I(f"s_lshl_b32 s{sW1K}, s{sw}, 10"); I(f"s_lshl_b32 s{sW8K}, s{sw}, 13")
        I(f"s_lshl_b32 s{sT1}, s{sw}, 12")
        I(f"s_add_u32 m0, s{sT1}, {hx(L_WKV)}")
        I(f"s_lshl_b32 s{sT2}, s{sg}, 16"); I(f"s_lshl_b32 s{sT3}, s{sw}, 8"); I(f"s_add_u32 s{sT2}, s{sT2}, s{sT3}")
        I(f"s_lshl_b32 s{sT3}, s{sw}, 14")
        I(f"s_lshr_b32 s{sT4}, s{sj}, 1")
        e.wait_lg0(force=True)
        self.stamp("start"); self.rt(62)
        I(f"s_load_dwordx2 s[{sN}:{sN+1}], s[{pWS}:{pWS+1}], 0")
        I(f"s_bitcmp1_b32 s{sj}, 0"); I(f"s_cselect_b64 s[{sTB}:{sTB+1}], s[{pWV}:{pWV+1}], s[{pWK}:{pWK+1}]")
        I(f"s_mov_b32 s{sTB+2}, 16384"); I(f"s_mov_b32 s{sTB+3}, 0x20000")
        self.srd(sTA, pX, 0x200000)
        self.tk_wkv = [I(self.dma(vL16, sTB, f"s{sT1}", q * 1024)) for q in range(4)]
        self.tk_x = self.x_dma(0)
        self.srd(sWQ, pWQ, 0x80000)
        I(f"s_add_u32 s{sWQl}, s{sT3}, {hx(L_V)}")
        I(f"s_lshl_b32 s{sT5}, s{sw}, 17"); I(f"s_lshl_b32 s{sT6}, s{sj}, 7"); I(f"s_add_u32 s{sT5}, s{sT5}, s{sT6}")
        I(f"s_lshr_b32 s{sT6}, s{sw}, 1"); I(f"s_lshl_b32 s{sT6}, s{sT6}, 6")
        I(f"s_add_u32 s{sWQo}, s{sT5}, s{sT6}"); I(f"s_xor_b32 s{sT6}, s{sT6}, 64"); I(f"s_add_u32 s{sWQo+1}, s{sT5}, s{sT6}")
        if self.opt.get('wqp0', 1):
            I(f"s_lshr_b32 s{sT5}, s2, 3"); I(f"s_lshl_b32 s{sT5}, s{sT5}, 14"); I(f"s_add_u32 s{sT5}, s{sT5}, s{sT1}")
            I(f"v_lshlrev_b32 v{vT+4}, 6, v{vLane}"); I("!" + self.ld(V(vAUG + 2), vT + 4, sWQ, f"s{sT5}", 0, w=1))
        I(f"s_lshl_b32 s{sP1K}, s{sj}, 2"); I(f"s_add_u32 s{sP1K}, s{sP1K}, s{sw}")
        I(f"s_lshl_b32 s{sT5}, s{sP1K}, 5")
        I(f"s_lshl_b32 s{sRow}, s{sg}, 16"); I(f"s_add_u32 s{sRow}, s{sRow}, s{sT5}")
        if self.codepf:
            I(f"s_getpc_b64 s[{sT6}:{sT7}]")
            I(f"s_lshl_b32 s{sT5}, s{sP1K}, 11")
            I(f"s_add_u32 s{sT6}, s{sT6}, s{sT5}"); I(f"s_addc_u32 s{sT7}, s{sT7}, 0")
            I(f"v_and_b32 v{vT+8}, 15, v{vLane}"); I(f"v_lshlrev_b32 v{vT+8}, 7, v{vT+8}")
            I(f"v_mov_b32 v{vT+9}, s{sT7}"); I(f"v_add_co_u32 v{vT+8}, vcc, s{sT6}, v{vT+8}"); I(f"v_addc_co_u32 v{vT+9}, vcc, 0, v{vT+9}, vcc")
            I(f"s_cmp_ge_u32 s{sT5}, CODE_SPAN"); I("s_cbranch_scc1 L_nopf")
            e.begin_opt(); I(f"global_load_dword v{vAUG+1}, v[{vT+8}:{vT+9}], off"); e.end_opt()
            e.label("L_nopf")
        I(f"s_lshl_b32 s{sFlSt}, s{sP1K}, 7"); I(f"s_add_u32 s{sFlSt}, s{sFlSt}, {hx(G_FL)}")
        I(f"s_add_u32 s{sFlPo}, s{sW1K}, {hx(G_FL)}")
        I(f"s_lshl_b32 s{sP1K}, s{sP1K}, 10")
        self.srd(sWS, pWS, WSLIM)
        I(f"s_mul_i32 s{sT5}, s{sg}, {hx(G_STR)}"); I(f"s_add_u32 s{sT5}, s{sT5}, {hx(GRP)}")
        I(f"s_add_u32 s{sG}, s{pWS}, s{sT5}"); I(f"s_addc_u32 s{sG+1}, s{pWS+1}, 0"); I(f"s_mov_b32 s{sG+2}, {hx(G_SZ)}"); I(f"s_mov_b32 s{sG+3}, 0x20000")
        I(f"s_add_u32 s{sKV}, s{pWS}, {hx(KVB)}"); I(f"s_addc_u32 s{sKV+1}, s{pWS+1}, 0"); I(f"s_mov_b32 s{sKV+2}, 0x20000"); I(f"s_mov_b32 s{sKV+3}, 0x20000")
        I(f"s_mov_b32 s{sLayer}, 0"); I(f"s_mov_b32 s{sMode}, 1"); I(f"s_mov_b32 s{sOnes}, 0x3f803f80")
        I(f"s_lshr_b32 s{sT5}, s{sg}, 3"); I(f"s_and_b32 s{sT6}, s{sg}, 7")
        I(f"s_lshl_b32 s{sKVFs}, s{sT5}, 6"); I(f"s_lshl_b32 s{sT7}, s{sT6}, 2"); I(f"s_add_u32 s{sKVFs}, s{sKVFs}, s{sT7}")
        I(f"s_add_u32 s{sKVst}, s{sT7}, s{sT5}")
        I(f"s_lshr_b32 s{sT7}, s{sj}, 2"); I(f"s_lshl_b32 s{sT7}, s{sT7}, 5")
        I(f"s_add_u32 s{sKVFs}, s{sKVFs}, s{sT7}"); I(f"s_lshl1_add_u32 s{sKVst}, s{sT7}, s{sKVst}")
        I(f"s_and_b32 s{sT7}, s{sj}, 3"); I(f"s_add_u32 s{sKVFs}, s{sKVFs}, s{sT7}")
        I(f"s_lshl_b32 s{sKVFs}, s{sKVFs}, 7"); I(f"s_add_u32 s{sKVFs}, s{sKVFs}, {hx(GF)}")
        I(f"s_add_u32 s{sKVFp}, s{sW8K}, {hx(GF)}")
        I(f"s_lshl_b32 s{sKVst}, s{sKVst}, 10")
        I(f"s_and_b32 s{sT5}, s{sT4}, 1"); I(f"s_lshl_b32 s{sT5}, s{sT5}, 8"); I(f"s_and_b32 s{sT6}, s{sj}, 1")
        I(f"s_lshl_b32 s{sT5}, s{sT5}, s{sT6}"); I(f"s_lshl_b32 s{sT6}, s{sT6}, 15")
        I(f"s_add_u32 s{sKVst}, s{sKVst}, s{sT5}"); I(f"s_add_u32 s{sKVst}, s{sKVst}, s{sT6}")
        for q in range(4): I(f"s_xor_b32 s{sQ+q}, s{sW8K}, {q*8192}")
        I(f"s_mul_i32 s{sT5}, s{sj}, 7"); I(f"s_lshl_b32 s{sT6}, s{sw}, 1"); I(f"s_add_u32 s{sT5}, s{sT5}, s{sT6}")
        I(f"s_mul_i32 s{sW1o}, s{sT5}, {33*1024}"); I(f"s_add_u32 s{sW1o}, s{sW1o}, {hx(W1S)}")
        I(f"s_lshl_b32 s{sHs}, s{sT5}, 11"); I(f"s_add_u32 s{sHs}, s{sHs}, {hx(G_H)}")
        I(f"s_cmp_eq_u32 s{sw}, 3"); I(f"s_cselect_b32 s{sT6}, {hx(BIG)}, 0")
        I(f"s_add_u32 s{sW1o+1}, s{sW1o}, {33*1024}"); I(f"s_add_u32 s{sW1o+1}, s{sW1o+1}, s{sT6}")
        I(f"s_add_u32 s{sHs+1}, s{sHs}, 2048"); I(f"s_add_u32 s{sHs+1}, s{sHs+1}, s{sT6}")
        I(f"s_mul_i32 s{sHl}, s{sw}, {28*1024}")
        I(f"s_lshr_b32 s{sT6}, s{sw}, 1"); I(f"s_lshl_b32 s{sT5}, s{sj}, 1"); I(f"s_add_u32 s{sT5}, s{sT5}, s{sT6}")
        for n in range(2):
            if n: I(f"s_xor_b32 s{sT5}, s{sT5}, 1")
            I(f"s_lshl_b32 s{sWOo+n}, s{sT5}, 15"); I(f"s_add_u32 s{sWOo+n}, s{sWOo+n}, s{sW8K}"); I(f"s_add_u32 s{sWOo+n}, s{sWOo+n}, {hx(WOS)}")
            I(f"s_mul_i32 s{sW2o+n}, s{sT5}, {112*1024}"); I(f"s_add_u32 s{sW2o+n}, s{sW2o+n}, s{sHl}"); I(f"s_add_u32 s{sW2o+n}, s{sW2o+n}, {hx(W2S)}")
        I(f"s_add_u32 s{sHl}, s{sHl}, {hx(G_H)}")
        I(f"s_and_b32 s{sT5}, s{sw}, 1"); I(f"s_lshl_b32 s{sT5}, s{sT5}, 8"); I(f"v_xor_b32 v{vL16x}, s{sT5}, v{vL16}")
        I(f"v_lshlrev_b32 v{vPoll}, 7, v{vLane}")
        I(f"v_add_u32 v{vEW}, s{sWQl}, v{vL16}")
        for q in (1, 2, 3):
            I(f"v_xor_b32 v{vER+q-1}, {hx(q*0x4000)}, v{vEW}")
            if q > 1: I(f"v_add_u32 v{vER+q-1}, {(q-1)*2048}, v{vER+q-1}")
        I(f"v_mov_b32 v{vIdx}, 0xdddddddd")
        I(f"s_lshl_b32 s{sStS}, s{sj}, 8"); I(f"s_add_u32 s{sStS}, s{sStS}, s{sw}"); I(f"s_lshl_b32 s{sStS}, s{sStS}, 2"); I(f"s_add_u32 s{sStS}, s{sStS}, {hx(G_ST)}")
        I(f"s_lshl_b32 s{sStL}, s{sw}, 11"); I(f"s_add_u32 s{sStL}, s{sStL}, {hx(G_ST)}")

    def x_dma(self, i):
        I = self.I
        I(f"s_xor_b32 s{sT5}, s{sT4}, {i}")
        I(f"s_lshl_b32 s{sT6}, s{sT5}, 12"); I(f"s_add_u32 m0, s{sT6}, s{sT3}")
        I(f"s_lshl_b32 s{sT5}, s{sT5}, 14"); I(f"s_add_u32 s{sT5}, s{sT5}, s{sT2}")
        return [I(self.dma(vT + qq, sTA, f"s{sT5}", qq * 1024)) for qq in range(4)]
    def rowaddr(self, d, hh16):
        return [f"v_lshrrev_b32 v{hh16}, 5, v{vLane}", f"v_lshlrev_b32 v{hh16}, 4, v{hh16}", f"v_and_b32 v{d}, 31, v{vLane}",
                f"v_lshl_add_u32 v{d}, v{d}, 10, v{hh16}"]
    def wq_dma(self, va):
        o = [f"v_lshrrev_b32 v{va}, 2, v{vLane}", f"v_lshlrev_b32 v{va}, 10, v{va}", f"v_and_or_b32 v{va}, v{vL16}, 48, v{va}"]
        for ks in range(8):
            for n in range(2):
                o += [f"s_add_u32 m0, s{sWQl}, {(2*ks+n)*1024}", f"s_add_u32 s{sT7}, s{sWQo+n}, {ks*16384}", self.dma(va, sWQ, f"s{sT7}")]
        return o
    def traddr(self, d, t, swapw):
        o = [f"v_lshrrev_b32 v{d}, 5, v{vLane}", f"v_lshlrev_b32 v{d}, 9, v{d}",
             f"v_bfe_u32 v{t}, v{vLane}, 2, 2", f"v_lshl_or_b32 v{d}, v{t}, 6, v{d}",
             f"v_bfe_u32 v{t}, v{vL16x if swapw else vL16}, 8, 1", f"v_lshl_or_b32 v{d}, v{t}, 5, v{d}",
             f"v_and_b32 v{t}, 1, v{vLane}", f"v_lshl_or_b32 v{d}, v{t}, 4, v{d}",
             f"v_bfe_u32 v{t}, v{vLane}, 1, 1", f"v_lshl_or_b32 v{d}, v{t}, 3, v{d}",
             f"v_add_u32 v{d}, s{sWQl}, v{d}"]
        return o
    def wkv_reads(self, W, a=vT + 6):
        t = vT + 4
        o = [f"v_lshrrev_b32 v{a}, 4, v{vLane}", f"v_lshlrev_b32 v{a}, 8, v{a}", f"v_and_b32 v{t}, 15, v{vLane}",
             f"v_lshl_or_b32 v{a}, v{t}, 3, v{a}", f"s_lshl_b32 s{sT5}, s{sw}, 12", f"s_add_u32 s{sT5}, s{sT5}, {hx(L_WKV)}",
             f"v_add_u32 v{a}, s{sT5}, v{a}"]
        for s in range(4):
            for h in range(2): o.append(f"ds_read_b64_tr_b16 {V(W+4*s+2*h,2)}, v{a} offset:{s*1024+h*128}")
        return o
    def wq_reads(self):
        a = vT + 6
        o = self.traddr(a, vT + 7, True)
        for f in range(16):
            for h in range(2): o.append(f"ds_read_b64_tr_b16 {A(4*f+2*h,2)}, v{a} offset:{f*1024+h*256}")
        return o

    KW = 56; KA = 72; KC = 88; ONE = 104
    def branch2(self, f0, f1):
        e = self.e; I = e.I
        lv = e.newlab("L_kvv"); lj = e.newlab("L_kvj")
        I(f"s_bitcmp1_b32 s{sj}, 0"); I(f"s_cbranch_scc1 {lv}")
        e.begin_opt(); f0(); I(f"s_branch {lj}"); e.end_opt(); e.label(lv)
        e.begin_opt(); f1(); e.end_opt(); e.label(lj)
    def skip(self, conds, f):
        e = self.e; l = e.newlab("L_sk")
        for c in conds: e.I(c); e.I(f"s_cbranch_scc0 {l}")
        e.begin_opt(); f(); e.end_opt(); e.label(l)
    def kv_addr(self, base, t):
        I = self.I
        ah = self.KA; ga = ah + 2; sa = ah + 6; gs = sT6; n16 = ga + 1; q = ga + 2
        def fk():
            I(f"v_lshrrev_b32 v{ga}, 2, v{n16}"); I(f"v_lshlrev_b32 v{ga}, 8, v{ga}"); I(f"v_lshl_or_b32 v{ga}, v{n16}, 4, v{ga}")
            I(f"v_lshl_or_b32 v{ga}, v{t}, 2, v{ga}"); I(f"s_mov_b32 s{gs}, 0")
            I(f"v_lshlrev_b32 v{sa}, 9, v{sa}"); I(f"v_lshl_or_b32 v{sa}, v{n16}, 4, v{sa}")
        def fv():
            I(f"v_mul_u32_u24 v{ga}, 0x140, v{q}"); I(f"s_mov_b32 s{gs}, 20")
            I(f"v_lshlrev_b32 v{sa}, 8, v{sa}"); I(f"v_lshl_or_b32 v{sa}, v{t}, 4, v{sa}")
            I(f"v_bfe_u32 v{t}, v{n16}, 2, 1"); I(f"v_lshl_or_b32 v{sa}, v{t}, 7, v{sa}")
            I(f"v_bfe_u32 v{t}, v{n16}, 3, 1"); I(f"v_lshl_or_b32 v{sa}, v{t}, 6, v{sa}")
        def fin():
            self.branch2(fk, fv)
            I(f"v_and_b32 v{t}, 1, v{q}"); I(f"v_lshl_or_b32 v{sa}, v{t}, 3, v{sa}"); I(f"v_add_u32 v{ga}, {hx(base + 0xC00)}, v{ga}")
            for r in range(3): I(f"v_add_u32 v{ga+r+1}, s{gs}, v{ga+r}")
        return [f"v_add_u32 v{ah}, {hx(base)}, v{vL16}", f"v_lshl_add_u32 v{ah+1}, s{sw}, 12, v{ah}", f"v_and_b32 v{n16}, 15, v{vLane}",
                f"v_lshrrev_b32 v{q}, 4, v{vLane}", f"v_and_b32 v{t}, 3, v{vLane}", f"v_lshrrev_b32 v{sa}, 5, v{vLane}", (fin, 60)]
    def kv_mm(self, XK, first):
        I = self.I; acc, sm, cs, gr = (self.KC + 4 * i for i in range(4)); aw = self.KA + 1
        def f(typ):
            for s in range(4):
                x = V(XK + 4 * s, 4); w = V(self.KW + 4 * s, 4); one = V(self.ONE, 4)
                pr = (lambda a, b: (a, b)) if typ == 0 else (lambda a, b: (b, a))
                I(self.mf16(gr, x, x, s == 0)); I(self.mf16(acc, *pr(w, x), s == 0)); I(self.mf16(sm, *pr(one, x), s == 0))
                if first: I(self.mf16(cs, *pr(w, one), s == 0))
        self.e._autowait(regs_of(V(XK, 16)) + regs_of(V(self.KW, 16)))
        self.branch2(lambda: f(0), lambda: f(1))
        I(f"ds_write_b128 v{aw}, {V(gr,4)} offset:{0xC00}")
        def wr():
            I(f"ds_write_b128 v{aw}, {V(acc,4)}"); I(f"ds_write_b128 v{aw}, {V(sm,4)} offset:{0x400}")
            if first: I(f"ds_write_b128 v{aw}, {V(cs,4)} offset:{0x800}")
        self.skip([f"s_cmp_lg_u32 s{sw}, 0"], wr)
    def kv_fin(self, tg, first, box):
        e = self.e; I = e.I; acc, sm, cs = (self.KC + 4 * i for i in range(3)); ah = self.KA; ga = ah + 2; sa = ah + 6
        ts = tg + 16; ta = tg + 28; tc = tg + 40
        for w2 in range(4):
            for r in range(4): I(f"ds_read_b32 v{tg+4*w2+r}, v{ga+r} offset:{w2*0x1000}")
            if w2: I(f"ds_read_b128 {V(ts+4*(w2-1),4)}, v{ah} offset:{w2*0x1000+0x400}")
        for w2 in range(1, 4):
            I(f"ds_read_b128 {V(ta+4*(w2-1),4)}, v{ah} offset:{w2*0x1000}")
            if first: I(f"ds_read_b128 {V(tc+4*(w2-1),4)}, v{ah} offset:{w2*0x1000+0x800}")
        def padd(d, s): I(f"v_pk_add_f32 {V(d,2)}, {V(d,2)}, {V(s,2)}"); I(f"v_pk_add_f32 {V(d+2,2)}, {V(d+2,2)}, {V(s+2,2)}")
        for w2 in range(1, 4): padd(tg, tg + 4 * w2); padd(sm, ts + 4 * (w2 - 1))
        k = hx(f2u(1 / 512))
        for r in range(4): I(f"v_mul_f32 v{sm+r}, {k}, v{sm+r}")
        for r in range(4): I(f"v_mul_f32 v{tg+r}, {k}, v{tg+r}")
        for r in range(4): I(f"v_fma_f32 v{tg+r}, -v{sm+r}, v{sm+r}, v{tg+r}")
        for r in range(4): I(f"v_max_f32 v{tg+r}, 0, v{tg+r}")
        for r in range(4): I(f"v_add_f32 v{tg+r}, {hx(f2u(1e-5))}, v{tg+r}")
        for r in range(4): I(f"v_rsq_f32 v{tg+r}, v{tg+r}")
        for w2 in range(1, 4):
            padd(acc, ta + 4 * (w2 - 1))
            if first: padd(cs, tc + 4 * (w2 - 1))
        if first:
            for r in range(4): I(f"v_mov_b32 v{vCSKV+r}, v{cs+r}")
        for r in range(4): I(f"v_fma_f32 v{acc+r}, -v{sm+r}, v{vCSKV+r}, v{acc+r}")
        for r in range(4): I(f"v_mul_f32 v{acc+r}, v{acc+r}, v{tg+r}")
        e.seq(self.pack(acc, acc, 2))
        box.append(I(self.st(V(acc, 2), sa, sKV, f"s{sKVst}", 0, "sc1", w=2)))
        e.wait_lg0()
    def kv_flag(self, box, t):
        I = self.I
        I(f"v_mov_b32 v{t}, s{sMyF}"); I(f"v_mov_b32 v{t+1}, s{sN+1}")
        self.e.wait(*box)
        I("s_mov_b64 exec, 1"); I(self.st(V(t, 2), vPoll, sWS, f"s{sKVFs}", 0, "sc1", w=2)); I("s_mov_b64 exec, -1")
    def kvp_issue(self, r, off): return [f"s_add_u32 s{sT3}, s{sKVFp}, {off}", self.ld(V(r, 2), vSA, sWS, f"s{sT3}", 0, "sc1", w=2)]
    def kvp_check(self, r, off):
        def f():
            e = self.e; lab = e.newlab("L_kp"); back = e.newlab("L_kb")
            c = [f"v_and_b32 v{r}, -16, v{r}", f"v_cmp_ne_u64 vcc, s[{sN}:{sN+1}], {V(r, 2)}"]
            e.seq(c); e.I(f"s_cbranch_vccnz {lab}"); e.label(back)
            e.tail += [lab + ":", f"    s_mov_b32 s{sCnt}, 0", lab + "a:"] + ["    " + x for x in self.kvp_issue(r, off) + [
                       f"s_add_u32 s{sCnt}, s{sCnt}, 1", f"s_cmp_gt_u32 s{sCnt}, {POLL_LIM}", "s_cbranch_scc1 L_end", "s_waitcnt vmcnt(0)"] + c +
                       [f"s_cbranch_vccnz {lab}a", f"s_branch {back}"]]
        return (f, 20)
    def kvdma(self, i, v): return ([f"s_add_u32 m0, s{sW1K}, {hx((i&7)*4096 + (i>>3)*0x10000 + v*0x8000)}"], self.dma(vL16, sKV, "m0", 0, "sc1"))
    def lo_dma(self, box):
        o = []
        for i in range(2):
            for v in range(2): p, d = self.kvdma(i, v); o += p + [self.cap(d, box)]
        return o
    def qfin(self, mt, ac, m, r):
        return [f"v_mul_f32 v{r}, {hx(f2u(QS))}, v{r}"] + self.exadd(ac, ac + 8) + [f"v_fma_f32 v{ac+i}, -v{m}, v{vCSQ+i}, v{ac+i}" for i in range(8)] + \
               [f"v_mul_f32 v{ac+i}, v{ac+i}, v{r}" for i in range(8)] + self.pack(vQ + 4 * mt, ac)
    def attn_setup(self):
        t = 70
        def f():
            I = self.I
            I(f"v_and_b32 v{t}, 16, v{vLane}"); I(f"v_cmp_eq_u32 vcc, 0, v{t}")
            I(f"v_lshrrev_b32 v{t}, 5, v{vLane}"); I(f"v_lshlrev_b32 v{t}, 8, v{t}"); I(f"v_add_u32 v{t}, 0x8000, v{t}")
            I(f"v_mov_b32 v{t+1}, {hx(L_ONES)}"); I(f"v_cndmask_b32 v{vV}, v{t+1}, v{t}, vcc")
            I(f"v_mov_b32 v{t}, 0x1000"); I(f"v_cndmask_b32 v{vInc}, 0, v{t}, vcc")
        return [(f, 36), f"v_and_b32 v{t}, 0xf0, v{vL16}", f"v_or_b32 v{vV}, v{vV}, v{t}",
                f"v_and_b32 v{vMA}, 0x180, v{vPoll}", f"v_bfe_u32 v{t}, v{vLane}, 2, 1", f"v_lshl_or_b32 v{vMA}, v{t}, 12, v{vMA}",
                f"v_add_u32 v{vK2}, 0x10000, v{vL16}"] + [f"v_mov_b32 v{RES(0)+8+i}, 0" for i in range(8)]
    def zero_o(self): return [f"v_mov_b32 v{vO+i}, 0" for i in range(32)]

    def qkv1(self):
        e = self.e; I = e.I; op = self.opt.get
        XK = 240; X = 112; AQ = [208, 176]; ONE = self.ONE; SEL = 108; SM = [88, 92]; SQ = [96, 97]; CS = 56; RW = 248
        pst = (lambda n: self.stamp(n)) if op('pst') else (lambda n: None)
        for i in range(4): I(f"v_mov_b32 v{ONE+i}, s{sOnes}")
        I(f"v_lshrrev_b32 v{SEL}, 2, v{vLane}"); I(f"v_xor_b32 v{SEL}, v{SEL}, v{vLane}"); I(f"v_and_b32 v{SEL}, 4, v{SEL}")
        I(f"v_and_or_b32 v{SEL}, v{vLane}, 8, v{SEL}"); I(f"v_cmp_eq_u32 vcc, 0, v{SEL}")
        for i in range(4): I(f"v_cndmask_b32 v{SEL+i}, 0, v{ONE}, vcc")
        e.seq(self.kv_addr(L_KVR, vT + 4))
        a = self.KA + 7
        I(f"v_and_b32 v{vT+4}, 15, v{vLane}"); I(f"v_lshrrev_b32 v{vT+5}, 4, v{vLane}")
        I(f"v_xor_b32 v{vT+5}, v{vT+5}, v{vT+4}"); I(f"v_lshlrev_b32 v{vT+5}, 4, v{vT+5}")
        I(f"v_lshl_or_b32 v{a}, v{vT+4}, 8, v{vT+5}")
        I(f"s_lshl_b32 s{sT5}, s{sT4}, 12"); I(f"s_add_u32 s{sT5}, s{sT5}, s{sT3}"); I(f"v_add_u32 v{a}, s{sT5}, v{a}")
        tx = []; N1 = op('n1', 0)
        for i in range(1, 1 + N1): tx += self.x_dma(i)
        sl = self.swz_setup()
        o = self.wkv_reads(self.KW); e.seq(o[:7])
        pst('p_end')
        e.wait(*self.tk_wkv); e.seq(o[7:]); e.wait(*self.tk_x)
        for s in range(4):
            if s: I(f"v_xor_b32 v{vT+4}, {s*64}, v{a}")
            I(f"ds_read_b128 {V(XK+4*s,4)}, v{vT+4 if s else a}")
        self.stamp("kvx")
        self.kv_mm(XK, True)
        e.wait_lg0(force=True); e.barrier()
        I(f"s_add_u32 s{sN}, s{sN}, 16"); I(f"s_addc_u32 s{sN+1}, s{sN+1}, 0"); I(f"s_and_b32 s{sN}, s{sN}, -16")
        I(f"s_getreg_b32 s{sT5}, hwreg(HW_REG_XCC_ID, 0, 4)"); I(f"s_or_b32 s{sMyF}, s{sN}, s{sT5}")
        kb = []; w0 = [f"s_cmp_eq_u32 s{sw}, 0"]
        FP, KF, XW = op('kf', (0, 8, 4))
        def kvev(k):
            if k == FP: self.skip(w0, lambda: self.kv_fin(176, True, kb)); self.stamp("kvdone")
            if k == KF: self.skip(w0, lambda: self.kv_flag(kb, 98))
        assert FP >= N1 - 3 and FP <= XW
        for i in range(1 + N1, 4): kvev(i - 4); tx += self.x_dma(i)
        wd = self.wq_dma(vT + 4); e.seq(wd[:3]); tw = []
        ah = self.KA; st = ah + 1; ct = ah + 2; F = 144
        a = 228
        I(f"v_and_b32 v{a+1}, 31, v{vLane}"); I(f"v_lshrrev_b32 v{a}, 5, v{vLane}"); I(f"v_xor_b32 v{a}, v{a}, v{a+1}")
        I(f"v_and_b32 v{a}, 15, v{a}"); I(f"v_lshlrev_b32 v{a}, 4, v{a}"); I(f"v_lshl_or_b32 v{a}, v{a+1}, 8, v{a}")
        I(f"v_add_u32 v{a}, s{sT3}, v{a}")
        I(f"v_mov_b32 v{vN}, s{sN}"); I(f"v_mov_b32 v{vN+1}, s{sN+1}")
        fill = [f"v_mov_b32 v{q}, 0" for q in SQ]
        for ks in range(8):
            fill += [f"v_dot2c_f32_bf16 v{SQ[mt]}, v{X+(mt*8+ks)*4+i}, v{X+(mt*8+ks)*4+i}" for i in range(4) for mt in range(2)]
        fill += [self.mf16(SM[mt], V(SEL, 4), V(X + (mt * 8 + ks) * 4, 4), ks == 0) for ks in range(8) for mt in range(2)]
        sa, sb = self.swz_a(st, SEL, F, 100)
        o = self.wq_reads(); fill += o[:11]; o = o[11:]
        fill += [f"v_and_b32 v{vSA}, 0xf80, v{vPoll}", f"v_lshl_add_u32 v{st}, s{sw}, 2, v{ah}"]
        for mt in range(2): fill += self.stat_write(SM[mt], SQ[mt], st, mt)
        NF = op('nf', 6)
        for f in range(16):
            kvev(f)
            if f == XW:
                pst('p_w8'); e.wait(*tx)
                for ks in range(8):
                    if ks: I(f"v_xor_b32 v{a+1}, {ks*32}, v{a}")
                    for mt in range(2): I(f"ds_read_b128 {V(X+(mt*8+ks)*4,4)}, v{a+(1 if ks else 0)} offset:{mt*8192}")
            e.seq(wd[3 + 3 * f:5 + 3 * f]); tw.append(I(wd[5 + 3 * f]))
            if f > XW: e.seq(fill[:NF]); fill = fill[NF:]
        kvev(16); pst('p_wq')
        def rds(ks): return [self.wt(tw[2 * ks:2 * ks + 2])] + o[4 * ks:4 * ks + 4]
        rl = self.rowaddr(vT + 5, vT + 4) + [f"s_add_u32 s{sT6}, s{sRow}, 0x8000", self.ld(V(RW, 4), vT + 5, sTA, f"s{sRow}"), self.ld(V(RW + 4, 4), vT + 5, sTA, f"s{sT6}")]
        sl += [lambda: self.srd(sTB, pB2, 1024), f"s_lshr_b32 s{sT5}, s{sP1K}, 5", self.ld(V(vB2, 4), vT + 4, sTB, f"s{sT5}"),
               f"v_lshlrev_b32 v{vFl}, 20, v{vLane}", f"v_and_b32 v{vP8}, 0x380, v{vPoll}"]
        SP = op('sp', 2)
        e.seq(rl + (sl if SP < 0 else []) + fill + rds(0) + rds(1))
        self.stamp("wqrd")
        mm = []; ev = {}
        qm = lambda mt, ks: [self.mf(AQ[mt] + 16 * n, A((2 * ks + n) * 4, 4), V(X + (mt * 8 + ks) * 4, 4), '0' if ks == 0 else None) for n in range(2)]
        for ks in range(8):
            if ks < 6: ev[len(mm)] = rds(ks + 2)
            mm += qm(0, ks) + [self.mf16(CS + 4 * n, A((2 * ks + n) * 4, 4), V(SEL, 4), ks == 0) for n in range(2)]
        for ks in range(8): mm += qm(1, ks)
        add = lambda g, *it: ev.setdefault(g, []).extend(it)
        t0 = 88; TC = 112
        add(1, self.bar(), *[f"ds_read_b128 {V(t0+4*mt,4)}, v{ah} offset:{mt*1024}" for mt in range(2)])
        if 0 <= SP < 48: add(SP, *sl)
        fill = [f"v_bfe_u32 v{ct}, v{vLane}, 2, 1", f"v_xor_b32 v{ct+1}, s{sw}, v{ct}", f"v_lshl_or_b32 v{ct}, v{ct+1}, 2, v{ct}", f"v_lshlrev_b32 v{ct}, 6, v{ct}",
                f"v_and_or_b32 v{ct}, v{vLane}, 48, v{ct}", f"v_add_u32 v{ct}, {hx(L_CST)}, v{ct}", f"v_xor_b32 v{ct+1}, 0x280, v{ct}",
                f"v_lshrrev_b32 v{ct+2}, 5, v{vLane}", f"v_lshlrev_b32 v{ct+2}, 4, v{ct+2}", f"v_lshl_add_u32 v{ct+2}, s{sw}, 8, v{ct+2}", f"v_add_u32 v{ct+2}, {hx(L_CST)}, v{ct+2}"]
        fill += [f"v_and_b32 v{ONE+1}, 11, v{vLane}", f"v_cmp_eq_u32 vcc, 0, v{ONE+1}", f"v_add_u32 v{ct+3}, s{sW1K}, v{ah}"]
        fill += [f"v_cndmask_b32 v{ONE+i}, 0, v{ONE}, vcc" for i in (1, 2, 3, 0)] + [f"ds_write_b128 v{ct+3}, {V(ONE,4)} offset:{L_ONES-L_KVR}"]
        su = self.attn_setup(); fill += su[:7]
        for mt in range(2): fill += self.stat_fin(t0 + 4 * mt, 96 + 2 * mt, 97 + 2 * mt)
        for mt in range(2):
            for i in range(4): fill += [f"v_lshlrev_b32 v{RES(mt)+2*i}, 16, v{RW+4*mt+i}", f"v_and_b32 v{RES(mt)+2*i+1}, 0xffff0000, v{RW+4*mt+i}"]
        add(21, f"s_and_b32 s{sT5}, s{sg}, 15", f"s_lshl_b32 s{sT5}, s{sT5}, 10", f"v_add_u32 v{vT+6}, s{sT5}, v{vT+6}",
            *[f"ds_read_b64_tr_b16 {V(vAUG+4+2*h,2)}, v{vT+6} offset:{h*256}" for h in range(2)],
            f"s_lshl_b32 s{sWQo}, s{sP1K}, 4", f"s_add_u32 s{sWQo}, s{sWQo}, {hx(WQS)}", f"s_add_u32 s{sT5}, s{sT5}, s{sWQo}",
            f"s_cmp_ge_u32 s{sg}, 16", f"s_cselect_b32 s{sT4}, {hx(BIG)}, s{sT5}")
        PI, PC = op('lp1', (24, 49)); lo = []
        add(PI, *self.kvp_issue(vT, 0))
        chk = [self.kvp_check(vT, 0), self.stp("kvpoll")] + self.lo_dma(lo) + (sl if SP == 48 else [])
        self._sched(mm[:32], ev, fill, 2, 30)
        ev = {g - 32: it for g, it in ev.items() if g >= 32}
        w = self.exw(AQ[0], 0); r = self.exr(AQ[0] + 8, 0)
        add(0, *w[:2]); add(1, *w[2:4]); add(2, *w[4:])
        add(3, "s_mov_b32 exec_lo, 0x110011", "s_mov_b32 exec_hi, 0x110011", *[f"ds_write_b128 v{ct+n}, {V(CS+4*n,4)}" for n in range(2)], "s_mov_b64 exec, -1")
        c = [f"ds_read_b128 {V((TC+8*(q-1) if q else vCSQ)+4*h,4)}, v{ct+2} offset:{q*64+h*32}" for q in range(4) for h in range(2)]
        add(5, self.bar(), *c[:4]); add(6, *c[4:]); add(7, *r[:3]); add(8, *r[3:])
        if PC < 48: add(PC - 32, *chk)
        q0 = self.qfin(0, AQ[0], 96, 97)
        self._sched(mm[32:], ev, self.exadd(vCSQ, TC) + q0[:21], 9, 15)
        e.seq(q0[21:]); e.seq(self.exw(AQ[1], 0x1800))
        if PC == 48: e.seq(chk)
        z = self.zero_o(); e.seq(z[:16])
        e.seq([self.bar()])
        pst('p_bar')
        e.seq(self.exr(AQ[1] + 8, 0x1800) + z[16:] + su[7:])
        I(f"s_add_u32 s{sT5}, s{sW8K}, {hx(L_X)}"); I(f"v_add_u32 v{vEW}, s{sT5}, v{vL16}")
        for q in (1, 2, 3):
            I(f"v_xor_b32 v{vER+q-1}, {hx(q*0x2000)}, v{vEW}")
            if q > 1: I(f"v_add_u32 v{vER+q-1}, {(q-1)*2048}, v{vER+q-1}")
        e.seq(self.qfin(1, AQ[1], 98, 99))
        if PC > 48: e.seq(chk)
        self.stamp("qdone")
        e.seq(sa + sb + [self.st(V(vAUG + 4, 4), vL16, sWS, f"s{sT4}", 0, "sc1")])
        e.wait(*lo); e.wait_lg0(); e.barrier()
        self.skip(w0, lambda: e.seq(self.swz_b(100)))
    def lane0(self, off):
        I = self.I
        I("s_mov_b64 exec, 1"); I(self.st(V(vN, 2), vPoll, sWS, off, 0, "sc1", w=2)); I("s_mov_b64 exec, -1")

    def q2_pre(self, ev, fill, TM, PK):
        op = self.opt.get; add = lambda g, *it: ev.setdefault(g, []).extend(it)
        b0 = []; a = self.KA + 7
        fill += self.xfin(0, TM, PK, G_X2, b0, False)
        pb, pi, pc = op('x2p', (30, 41, 51))
        o = self.wkv_reads(self.KW, a); add(23, *o[:7]); add(24, *o[7:11]); add(25, *o[11:])
        o = self.kv_addr(0x4000, vT + 4); add(26, *o[:6]); add(27, o[6])
        add(29, f"v_lshrrev_b32 v{a}, 4, v{vLane}", f"v_lshlrev_b32 v{a}, 9, v{a}", f"v_and_b32 v{vT+4}, 0xf0, v{vL16}", f"v_or_b32 v{a}, v{a}, v{vT+4}")
        add(pb, self.pub(F_X2, b0)); add(pi, self.pissue(F_X2, vT)); add(pc, self.pcheck(F_X2, vT))
        l = self.x2loads(0)
        for k, it in enumerate(l): add(pc + k // 2, *it)
    XK2 = 208; SB = [200, 104]
    def x2loads(self, mt):
        a = self.KA + 7
        o = [[f"s_bfe_u32 s{sT5}, s{sj}, 0x10001", f"s_lshl_b32 s{sT5}, s{sT5}, 8", f"s_add_u32 s{sT0}, s{sW8K}, {hx(G_X2 + mt*0x8000)}", f"s_add_u32 s{sT5}, s{sT5}, s{sT0}",
              f"s_cmp_{'lt' if mt else 'ge'}_u32 s{sj}, 4", f"s_cselect_b32 s{sT5}, {hx(BIG)}, s{sT5}", f"s_add_u32 s{sT6}, s{sT5}, 4096"], [], [], []]
        for s in range(4): o[s].append(self.ld(V(self.XK2 + 4 * s, 4), a, sG, f"s{sT5 + (s >> 1)}", (s & 1) * 2048, "sc1"))
        o.append([f"s_add_u32 s{sT3}, s{sStL}, {mt*0x2000}", self.ld(V(self.SB[mt], 4), vL16, sG, f"s{sT3}", 0, "sc1")])
        o.append([self.ld(V(self.SB[mt] + 4, 4), vL16, sG, f"s{sT3}", 1024, "sc1")])
        for ks in range(8): o.append(([f"s_add_u32 s{sT0}, s{sT0}, 4096"] if ks == 4 else []) + [self.ld(A(8 * (8 * mt + ks), 4), vL16, sG, f"s{sT0}", (ks % 4) * 1024, "sc1")])
        return o
    def qkv2(self, b1):
        e = self.e; I = e.I; op = self.opt.get
        AQ = [224, 176]; SB = self.SB; ah = vT + 6; ONE = self.ONE = 96
        def ssum(mt):
            t = SB[mt]
            return [f"v_add_f32 v{t+i}, v{t+i}, v{t+4+i}" for i in range(4)] + [f"v_add_f32 v{t}, v{t}, v{t+1}", f"v_add_f32 v{t+2}, v{t+2}, v{t+3}",
                    f"v_add_f32 v{t}, v{t}, v{t+2}", f"ds_write_b32 v{ah+1}, v{t} offset:{mt*1024}"]
        srd_ = lambda mt: f"ds_read_b128 {V(SB[mt],4)}, v{ah} offset:{mt*1024}"
        mm = lambda mt: [self.mf(AQ[mt] + 16 * n, V(vWO + (2 * ks + n) * 4, 4), A(8 * (8 * mt + ks), 4), '0' if ks == 0 else None) for ks in range(8) for n in range(2)]
        jc = [f"s_cmp_lt_u32 s{sj}, 4", f"s_cmp_ge_u32 s{sj}, 4"]; w0 = f"s_cmp_eq_u32 s{sw}, 0"
        for i in range(4): I(f"v_mov_b32 v{ONE+i}, s{sOnes}")
        I(f"s_add_u32 s{sKV}, s{sKV}, 0x20000"); I(f"s_addc_u32 s{sKV+1}, s{sKV+1}, 0")
        I(f"s_add_u32 s{sKVFs}, s{sKVFs}, 0x8000"); I(f"s_add_u32 s{sKVFp}, s{sKVFp}, 0x8000")
        I(f"s_mov_b32 s{sLayer}, 1"); I(f"s_mov_b32 s{sWQo}, {hx(BIG)}")
        e.seq(ssum(0))
        self.stamp("x2poll")
        self.skip([jc[0]], lambda: self.kv_mm(self.XK2, False))
        e.wait_lg0(force=True); e.barrier()
        self.stamp("kvx")
        e.seq([self.pub(F_X2 + 1, b1)])
        kb = []
        self.skip([jc[0], w0], lambda: self.kv_fin(176, False, kb))
        self.stamp("kvdone")
        self.sched(mm(0), {0: [srd_(0)], op('x2q', 9): [self.pissue(F_X2 + 1, vT)]}, self.stat_fin(SB[0], SB[0] + 4, SB[0] + 5), 3, 6)
        e.seq(self.exw(AQ[0], 0)); e.seq([self.pcheck(F_X2 + 1, vT)])
        self.skip([jc[0], w0], lambda: self.kv_flag(kb, vT))
        self.stamp("x2b")
        for o in self.x2loads(1): e.seq(o)
        I(f"s_add_u32 s{sFlSt}, s{sFlSt}, 4096"); I(f"s_add_u32 s{sFlPo}, s{sFlPo}, 4096")
        e.seq([self.bar()]); e.seq(self.exr(AQ[0] + 8, 0)); e.seq(self.qfin(0, AQ[0], SB[0] + 4, SB[0] + 5))
        self.stamp("q0")
        self.skip([jc[1]], lambda: self.kv_mm(self.XK2, False))
        PI, PC = op('lp2', (8, 18)); lo = []
        chk = [self.kvp_check(vT, 0), self.stp("kvpoll")] + self.lo_dma(lo)
        ev = {0: [f"v_and_b32 v{vSA}, 0xf80, v{vPoll}"]}; ev.setdefault(PI, []).extend(self.kvp_issue(vT, 0))
        self.sched(mm(1), ev, ssum(1) + self.attn_setup() + self.zero_o(), 1, 14)
        e.seq(self.exw(AQ[1], 0x8000))
        if PC == 16: e.seq(chk)
        e.wait_lg0(force=True); e.barrier()
        self.skip([jc[1], w0], lambda: self.kv_fin(112, False, []))
        assert PC in (16, 17, 18)
        I(srd_(1)); e.seq(self.exr(AQ[1] + 8, 0x8000))
        if PC == 18: e.seq(chk)
        e.seq(self.stat_fin(SB[1], SB[1] + 4, SB[1] + 5)); e.seq(self.qfin(1, AQ[1], SB[1] + 4, SB[1] + 5))
        if PC == 17: e.seq(chk)
        self.stamp("qdone")
        e.wait(*lo); e.barrier()

    def swz_setup(self):
        e = self.e; I = e.I
        l2 = e.newlab("L_sw2"); lo = e.newlab("L_swo"); lj = e.newlab("L_swj")
        I(f"s_mov_b32 s{sAug}, {hx(BIG)}"); I(f"s_mov_b32 s{sTB+3}, 0x20000")
        I(f"s_cmp_ge_u32 s{sg}, 14"); I(f"s_cbranch_scc1 {l2}")
        I(f"s_mov_b64 s[{sTB}:{sTB+1}], s[{pW1}:{pW1+1}]"); I(f"s_mov_b32 s{sTB+2}, {512*1792*2}")
        I(f"s_mov_b32 s{sT0}, 3584"); I(f"s_and_b32 s{sT1}, s{sg}, 1")
        I(f"s_mul_i32 s{sT5}, s{sj}, 7"); I(f"s_lshr_b32 s{sT6}, s{sg}, 1")
        if not self.opt.get('nopair'):
            I(f"s_bitcmp1_b32 s{sj}, 0"); I(f"s_addc_u32 s{sT6}, s{sT6}, 0"); I(f"s_cmp_eq_u32 s{sT6}, 7"); I(f"s_cselect_b32 s{sT6}, 0, s{sT6}")
        I(f"s_add_u32 s{sT5}, s{sT5}, s{sT6}")
        I(f"s_mul_i32 s{sSwD}, s{sT5}, {33*1024}"); I(f"s_add_u32 s{sSwD}, s{sSwD}, {hx(W1S)}")
        I(f"s_lshl_b32 s{sT6}, s{sT1}, 3"); I(f"s_add_u32 s{sT6}, s{sT6}, s{sSwD}"); I(f"s_add_u32 s{sT6}, s{sT6}, {32*1024}")
        I(f"s_cmp_eq_u32 s{sw}, 0"); I(f"s_cselect_b32 s{sAug}, s{sT6}, s{sAug}")
        I(f"s_branch {lj}")
        e.label(l2)
        I(f"s_mov_b32 s{sT0}, 1024"); I(f"s_lshl_b32 s{sT5}, s{sj}, 1")
        I(f"s_cmp_ge_u32 s{sg}, 28"); I(f"s_cbranch_scc1 {lo}")
        I(f"s_mov_b64 s[{sTB}:{sTB+1}], s[{pW2}:{pW2+1}]"); I(f"s_mov_b32 s{sTB+2}, {512*1792*2}")
        if self.opt.get('nopair'):
            I(f"s_cmp_ge_u32 s{sg}, 21"); I(f"s_cselect_b32 s{sT6}, 21, 14"); I(f"s_addc_u32 s{sT5}, s{sT5}, 0"); I(f"s_sub_u32 s{sT1}, s{sg}, s{sT6}")
        else:
            I(f"s_bitcmp1_b32 s{sg}, 0"); I(f"s_addc_u32 s{sT5}, s{sT5}, 0"); I(f"s_lshr_b32 s{sT1}, s{sg}, 1"); I(f"s_sub_u32 s{sT1}, s{sT1}, 7")
        I(f"s_mul_i32 s{sSwD}, s{sT5}, {112*1024}"); I(f"s_add_u32 s{sSwD}, s{sSwD}, {hx(W2S)}")
        I(f"s_branch {lj}")
        e.label(lo)
        I(f"s_mov_b64 s[{sTB}:{sTB+1}], s[{pWO}:{pWO+1}]"); I(f"s_mov_b32 s{sTB+2}, 0x80000")
        I(f"s_and_b32 s{sT1}, s{sg}, 1"); I(f"s_bitcmp1_b32 s{sg}, 1"); I(f"s_addc_u32 s{sT5}, s{sT5}, 0")
        I(f"s_lshl_b32 s{sSwD}, s{sT5}, 15"); I(f"s_add_u32 s{sSwD}, s{sSwD}, {hx(WOS)}")
        e.label(lj)
        I(f"s_lshl_b32 s{sT1}, s{sT1}, 2"); I(f"s_add_u32 s{sT1}, s{sT1}, s{sw}")
        I(f"s_lshl_b32 s{sT6}, s{sT1}, 12"); I(f"s_add_u32 s{sSwD}, s{sSwD}, s{sT6}")
        I(f"s_lshl_b32 s{sT1}, s{sT1}, 6"); I(f"s_mul_i32 s{sT1}, s{sT1}, s{sT0}")
        I(f"s_lshl_b32 s{sT5}, s{sT5}, 6"); I(f"s_add_u32 s{sT1}, s{sT1}, s{sT5}")
        a = vT + 9
        I(f"v_lshrrev_b32 v{a}, 2, v{vLane}"); I(f"v_mul_lo_u32 v{a}, v{a}, s{sT0}"); I(f"v_and_or_b32 v{a}, v{vL16}, 48, v{a}")
        I(f"s_lshl_b32 s{sT0}, s{sT0}, 4")
        o = []
        for f in range(4): o += ([f"s_add_u32 s{sT1}, s{sT1}, s{sT0}"] if f else []) + [self.ld(A(64 + 4 * f, 4), a, sTB, f"s{sT1}")]
        b = vT + 10; t = vT + 8
        I(f"v_and_b32 v{b}, 0x13, v{vLane}"); I(f"v_bfe_u32 v{t}, v{vLane}, 2, 1"); I(f"v_lshl_or_b32 v{b}, v{t}, 3, v{b}")
        I(f"v_bfe_u32 v{t}, v{vLane}, 3, 1"); I(f"v_lshl_or_b32 v{b}, v{t}, 2, v{b}")
        I(f"v_lshrrev_b32 v{t}, 5, v{vLane}"); I(f"v_lshl_or_b32 v{b}, v{t}, 15, v{b}"); I(f"v_lshlrev_b32 v{b}, 1, v{b}")
        I(f"v_add_u32 v{b}, s{sT5}, v{b}")
        I(f"s_lshl_b32 s{sSwF}, s{sj}, 12"); I(f"s_add_u32 s{sSwF}, s{sSwF}, {hx(GF + 0x10000)}")
        return o + [lambda: self.srd(sTB, pB1, 3584), f"buffer_load_ushort v{vAUG}, v{b}, s[{sTB}:{sTB+3}], 0 offen"]
    def swz_a(self, st, SEL, F, c):
        a = vT + 6
        o = [f"v_add_u32 v{a-1}, s{sWQl}, v{vL16}"] + self.traddr(a, vT + 7, False)
        o += [f"ds_write_b128 v{a-1}, {A(64+4*f,4)} offset:{0x3000+f*1024}" for f in range(4)]
        o += [f"ds_read_b64_tr_b16 {V(F+4*f+2*h,2)}, v{a} offset:{0x3000+f*1024+h*256}" for f in range(4) for h in range(2)]
        return o, [self.mf16(c, V(SEL, 4), V(F + 4 * f, 4), f == 0) for f in range(4)] + \
               [self.st(V(F + 4 * f, 4), vL16, sWS, f"s{sSwD}", f * 1024, "sc1") for f in range(4)] + [f"ds_write_b32 v{st}, v{c} offset:{L_CSR-L_KVR}"]
    def swz_b(self, t):
        return [f"ds_read_b128 {V(t,4)}, v{self.KA} offset:{L_CSR-L_KVR}",
                f"v_add_f32 v{t}, v{t}, v{t+1}", f"v_add_f32 v{t+2}, v{t+2}, v{t+3}", f"v_add_f32 v{t}, v{t}, v{t+2}",
                f"v_cvt_pk_bf16_f32 v{t+1}, v{t}, v{t}", f"v_lshlrev_b32 v{t+2}, 16, v{t+1}", f"v_sub_f32 v{t}, v{t}, v{t+2}",
                f"v_cvt_pk_bf16_f32 v{t}, v{t+2}, v{t}", f"v_and_b32 v{t+1}, 0xffff, v{t+1}", f"v_lshl_or_b32 v{t+1}, v{vAUG}, 16, v{t+1}",
                self.st(V(t, 2), vL16, sWS, f"s{sAug}", 0, "sc1", w=2)]

    OB = [[208, 212, 216, 220, 248, 252, 40, 240], [176 + 4 * i for i in range(8)]]
    UA = [0, 2, 4, 6, 7, 9, 11, 13]; UB = [1, 3, 5, 8, 10, 12]
    def ofin(self, mt, box):
        O = vO + 16 * mt
        def chk():
            I = self.I
            I(f"v_cmp_lt_f32 vcc, s{sT6}, v{O+8}"); I(f"v_cmp_gt_f32 s[{sT2}:{sT3}], s{sT7}, v{O+8}")
            I(f"s_and_b64 vcc, vcc, s[{sT2}:{sT3}]"); I("s_andn2_b64 vcc, exec, vcc"); I(f"s_cbranch_scc1 L_slow{mt}"); self.e.label(f"L_slowb{mt}")
        return [(chk, 20), f"v_rcp_f32 v{O+8}, v{O+8}", f"s_add_u32 s{sT2}, s{sP1K}, {hx(G_O + mt*0x8000)}"] + \
               [f"v_mul_f32 v{O+i}, v{O+i}, v{O+8}" for i in range(8)] + self.pack(vQ + 4 * mt, O) + \
               [self.dcap([self.st(V(vQ + 4 * mt, 4), vL16, sG, f"s{sT2}")], box)]
    def oload(self, mt):
        return [([f"s_add_u32 s{sT1}, s{sW8K}, {hx(G_O + mt*0x8000 + ks*1024)}"] if ks % 4 == 0 else []) +
                [self.ld(V(self.OB[mt][ks], 4), vL16, sG, f"s{sT1}", (ks % 4) * 1024, "sc1")] for ks in range(8)]
    def attention(self):
        e = self.e; I = e.I; op = self.opt.get
        Kf = [vF1, vF1 + 4]; Vf = [vF1 + 8, vF1 + 16]
        S_ = [vS, vS + 16]; O_ = [vO, vO + 16]
        e.wait_lg0(); pre = Tok(); e.vmq[:] = [pre]
        kvdma = self.kvdma
        lo, hi = (2.0 ** -64, 2.0 ** 64) if not self.fsa else (2.0 ** 64, 2.0 ** -64)
        I(f"s_mov_b32 s{sT6}, {hx(f2u(lo))}"); I(f"s_mov_b32 s{sT7}, {hx(f2u(hi))}")
        SK = op('sk', 12); NP = 64 - SK
        vm = [[] for _ in range(64)]
        lst = [kvdma(i, v) for i in range(2, 8) for v in range(2)]
        for n, it in enumerate(lst): vm[n // 3].append(it)
        HF, PI, PC = op('hi', (3, 8, 10)); SI, SC = op('sw', (9, 11))
        k = self.kvp_issue(vT, 4096)
        vm[PI].append((k[:1], k[1])); vm[SI].append(([], self.ld(V(vSD, 2), vSA, sWS, f"s{sSwF}", 0, "sc1", w=2)))
        for n in range(16): vm[PC + 1 + n * op('hn', 14) // 16].append(kvdma(8 + n // 2, n & 1))
        lst = []
        pw = [([f"s_lshl_b32 s{sT1}, s{sLayer}, {op('pwl', 2)}", f"s_add_u32 s{sT1}, s{sT1}, s{sP1K}"], "!" + self.ld(V(vJ), vL16, sG, f"s{sT1}", 0, "sc1", w=1))]
        for i in (5, 6, 7, 0, 1, 2, 3, 4, 8):
            pw.append(([f"s_add_u32 s{sT0}, s{sT1}, {hx(G_X1 + i * 0x8000)}"], "!" + self.ld(V(vJ), vL16, sG, f"s{sT0}", 0, "sc1", w=1)))
        if op('nopw'): pw = []
        wfl = op('wfl', 'sc1')
        for n in range(2):
            for ks in range(8):
                pre = [f"s_add_u32 s{sT5}, s{sWOo+n}, {ks*1024}"] if ks % 4 == 0 else []
                lst.append((pre, self.ld(V(vWO + (2 * ks + n) * 4, 4), vL16x, sWS, f"s{sT5}", (ks % 4) * 1024, wfl)))
        for n in range(2):
            for i in range(32):
                pre = []
                if i % 8 == 0: pre = [f"s_add_u32 s{sT5}, s{sW1o+n}, s{sQ+i//8}"]
                elif i % 4 == 0: pre = [f"s_add_u32 s{sT5}, s{sT5}, 4096"]
                lst.append((pre, self.ld(A((2 * i + n) * 4, 4), vL16, sWS, f"s{sT5}", (i % 4) * 1024, wfl)))
            lst.append(([f"s_add_u32 s{sT5}, s{sW1o+n}, {32*1024}"], self.ld(V(vAUG + 4 * n, 4), vL16, sWS, f"s{sT5}", 0, "sc1")))
        for k, u in enumerate(self.UB[2:]):
            for n in range(2):
                for h in range(2):
                    lst.append(([f"s_lshl1_add_u32 m0, s{sW8K}, {(k*2+n)*2048}", f"s_add_u32 s{sT5}, s{sW2o+n}, {u*2048}"] if h == 0 else [],
                                self.dma(vL16x, sWS, f"s{sT5}", h * 1024, wfl)))
        if op('now'): lst = []
        for n, it in enumerate(pw): lst.insert(op('pw0', 36) + n * op('pwstep', 6), it)
        for n, p in enumerate(op('opw', ())):
            lst.insert(p, ([f"s_mov_b32 s{sTA}, s{pOUT}", f"s_mov_b32 s{sTA+1}, s{pOUT+1}", f"s_lshl_b32 s{sTA+2}, s{sLayer}, 21", f"s_mov_b32 s{sTA+3}, 0x20000",
                            f"s_lshl_b32 s{sT0}, s{sg}, 16", f"s_add_u32 s{sT0}, s{sT0}, s{sP1K}", f"s_add_u32 s{sT0}, s{sT0}, {hx(0x8000 * (1 - n))}"],
                           "!" + self.ld(V(vJ), vL16, sTA, f"s{sT0}", 0, "", w=1)))
        for n, p in enumerate(op('pf2', ())):
            lst.insert(p, ([f"s_and_b32 s{sT0}, s{sg}, 3", f"s_mul_i32 s{sT0}, s{sT0}, {7168 if n < 4 else 4096}", f"s_add_u32 s{sT0}, s{sT0}, s{sW2o + (n & 1) if n < 4 else sWQo}"],
                           "!" + self.ld(V(vJ), vSA, sWS, f"s{sT0}", (n >> 1) * 3584 if n < 4 else 0, "sc1", w=1)))
        vm[33].append(([f"s_andn2_b32 s{sT3}, s{sKVFs}, 0x1180"], self.ld(V(vMD), vMA, sWS, f"s{sT3}", 0, "sc1", w=1)))
        if self.codepf:
            def cpf():
                I(f"s_getpc_b64 s[{sT2}:{sT3}]"); e.label("L_cpf")
                I(f"s_min_u32 s{sT0}, s{sP1K}, L_end-L_post"); I(f"s_add_u32 s{sT0}, s{sT0}, L_post-L_cpf")
                I(f"s_add_u32 s{sT2}, s{sT2}, s{sT0}"); I(f"s_addc_u32 s{sT3}, s{sT3}, 0")
            lst.append(([cpf], f"!global_load_dword v{vJ}, v{vL16}, s[{sT2}:{sT3}]"))
        TL = op('tl', 16); tl = lst[len(lst) - TL:]; lst = lst[:len(lst) - TL]
        p0, p1 = op('wp', (SC + 1, NP - 1))
        free = sorted((p, k_) for p in range(p0, p1 + 1) if p not in range(PI - op('q', 2), PI) for k_ in range(len(vm[p]), 3))
        for n, it in enumerate(lst): vm[free[n * len(free) // len(lst)][0]].append(it)
        isk = lambda it: f"s[{sKV}:" in it[1]
        assert max(len(x) for x in vm) <= 3 and not any(('lds' in it[1] and not isk(it)) or f"v{vMD}," in it[1] for x in vm[:31] for it in x)
        assert not any(isk(it) for x in vm[27:] for it in x)
        kt = []
        def IV(x):
            t = I(x)
            if f"s[{sKV}:" in x: kt.append(t)
        slots = [(mt, t_) for t_ in range(NP) for mt in range(2)] + [(mt, t_) for mt in range(2) for t_ in range(NP, 64)]
        NS = len(slots)
        buf = lambda s_: (s_ >> 1) & 1 if s_ < 2 * NP else (s_ - NP) & 1
        new = lambda s_: s_ < NS and (s_ >= 2 * NP or s_ % 2 == 0)
        blk = [0]
        def rdK(s_):
            t_ = slots[s_][1]
            return I(f"ds_read_b128 {V(Kf[buf(s_)],4)}, v{vK2 if t_ >= 32 else vL16} offset:{(t_&31)*1024}")
        def rdV(s_, h):
            t_ = slots[s_][1]; b = (t_ >> 2) + (8 if t_ >= 32 else 0); d = b - blk[0]; blk[0] = b
            if d == 1: I(f"v_add_u32 v{vV}, v{vInc}, v{vV}")
            elif d: I(f"v_mad_i32_i24 v{vV}, v{vInc}, {d}, v{vV}")
            return I(f"ds_read_b128 {V(Vf[buf(s_)]+4*h,4)}, v{vV} offset:{(t_&3)*1024+h*512}")
        def smf(s_, h): I(f"v_smfmac_f32_32x32x32_bf16 {V(O_[slots[s_][0]],16)}, {V(Vf[buf(s_)]+4*h,4)}, {V(S_[s_&1]+8*h,8)}, v{vIdx}")
        def qk(s_): I(self.mf(S_[s_&1], V(Kf[buf(s_)], 4), V(vQ + 4 * slots[s_][0], 4), '0'))
        def ex(s_, a, b):
            for r in range(a, b): I(f"v_exp_f32 v{S_[s_&1]+r}, v{S_[s_&1]+r}")
        z = 2 * NP + SK; tv = {}; ob = []
        of = self.ofin(0, ob)
        tv[z + 1, 0] = of[:3]; tv[z + 1, 1] = of[3:11]; tv[z + 1, 2] = of[11:]
        pb, pi, pc = op('op', (11, 18, 25))
        for g, it in [(pb, [self.pub(F_O, ob)]), (pi, [self.pissue(F_O, vT)]), (pc, [self.pcheck(F_O, vT)])] + [(pc + k, x) for k, x in enumerate(self.oload(0))]:
            tv.setdefault((z + g // 3, g % 3), []).extend(it)
        for n, (p, x) in enumerate(tl): tv.setdefault((2 * NP + n * op('tls', 8) // TL, (n & 1) * 2), []).extend(p + [x])
        rdK(0); rdV(0, 0); rdV(0, 1)
        qk(0)
        self.stamp("attn0")
        tkK = tkV = None
        for s_ in range(NS):
            mt, t_ = slots[s_]; sk = s_ >= 2 * NP
            v_ = vm[t_] if (mt and not sk) else []
            vs = (s_ + 1 if sk else s_ + 2 if mt == 0 else NS)
            ex(s_, 0, 2)
            if s_: smf(s_ - 1, 1)
            if sk: e.wait(tkV)
            elif mt: e.wait(tkK)
            if new(s_ + 2): tkK = rdK(s_ + 2)
            if v_: IV(v_[0][1])
            if len(v_) > 2: e.seq(v_[1][0])
            e.seq(tv.get((s_, 0), []))
            ex(s_, 2, 5)
            if s_ + 1 < NS: qk(s_ + 1)
            if vs < NS: rdV(vs, 0)
            if len(v_) > 2: IV(v_[1][1])
            if len(v_) > 1: e.seq(v_[-1][0])
            e.seq(tv.get((s_, 1), []))
            ex(s_, 5, 10); smf(s_, 0)
            if not mt and not sk and vm[t_]: e.seq(vm[t_][0][0])
            if vs < NS: tkV = rdV(vs, 1)
            if mt and not sk:
                e.wait(tkV)
                if t_ in op('ast', ()): self.stamp(f"a{t_}")
                if t_ == HF: self.skip([f"s_cmp_gt_u32 s{sLayer}, s{sw}", f"s_cmp_ge_u32 s{sj}, 4"], lambda: self.kv_flag([pre], vT))
                if t_ == 6 or t_ == 30:
                    e.wait(*kt); e.barrier()
                if t_ == 6:
                    def swflag(): I(f"s_lshl_b32 s{sT2}, s{sg}, 7"); I(f"s_add_u32 s{sT2}, s{sT2}, s{sSwF}"); self.lane0(f"s{sT2}")
                    I(f"s_or_b32 s{sT2}, s{sLayer}, s{sw}"); self.skip([f"s_cmp_eq_u32 s{sT2}, 0"], swflag)
                if t_ == 30:
                    I(f"s_or_b32 s{sT2}, s{sLayer}, s{sw}"); I(f"s_or_b32 s{sT2}, s{sT2}, s2")
                    self.skip([f"s_cmp_eq_u32 s{sT2}, 0"], lambda: self.lane0("0"))
                if t_ == NP - 1:
                    I(f"v_cmp_ne_u32 vcc, s{sMyF}, v{vMD}"); I("s_cmp_lg_u64 vcc, 0")
                    I(f"s_cselect_b32 s{sMode}, 1, {1 if self.fsm else 0}")
                if t_ == PC: e.seq([self.kvp_check(vT, 4096)])
                if t_ == SC:
                    I(f"v_cmp_ne_u64 vcc, s[{sN}:{sN+1}], {V(vSD,2)}"); I("s_cbranch_vccnz L_swpoll"); e.label("L_swback")
                    e.tail += ["L_swpoll:", f"    s_mov_b32 s{sCnt}, 0", "L_swp2:", "    " + self.ld(V(vSD, 2), vSA, sWS, f"s{sSwF}", 0, "sc1", w=2),
                               f"    s_add_u32 s{sCnt}, s{sCnt}, 1", f"    s_cmp_gt_u32 s{sCnt}, {POLL_LIM}", "    s_cbranch_scc1 L_end",
                               "    s_waitcnt vmcnt(0)", f"    v_cmp_ne_u64 vcc, s[{sN}:{sN+1}], {V(vSD,2)}", "    s_cbranch_vccnz L_swp2", "    s_branch L_swback"]
            if len(v_) > 1: IV(v_[-1][1])
            e.seq(tv.get((s_, 2), []))
            ex(s_, 10, 16)
        smf(NS - 1, 1)
        self.slow_attn(0, 64, 56, 248, 60); self.slow_attn(1, vS, vF1, vF1 + 8, vF1 + 4)
        self.stamp("attn1")
        e.label("L_post")

    def slow_attn(self, mt, Sx, K, Vv, M):
        x = Em(); I = x.I; O = vO + 16 * mt; va = M + 2
        x.label(f"L_slow{mt}"); x.nop(16)
        I(f"v_and_b32 v{va}, 0x1f0, v{vV}")
        for h in range(2): I(f"ds_read_b128 {V(Vv+4*h,4)}, v{vV}")
        I(f"v_mov_b32 v{M}, 0xff800000"); x.wait_lg0()
        for ps in range(2):
            I(f"s_mov_b32 s{sCnt}, 0")
            x.label(f"L_sa{ps}_{mt}")
            I(f"s_and_b32 s{sT2}, s{sCnt}, 32"); I(f"s_add_u32 s{sT2}, s{sT2}, s{sCnt}"); I(f"s_lshl_b32 s{sT2}, s{sT2}, 10")
            I(self.ld(V(K, 4), vL16, sKV, f"s{sT2}", 0, "sc1"))
            if ps:
                I(f"s_add_u32 s{sT2}, s{sT2}, 0x8000"); I("s_mov_b32 exec_lo, 0xffff"); I("s_mov_b32 exec_hi, 0xffff")
                for h in range(2): I(self.ld(V(Vv + 4 * h, 4), va, sKV, f"s{sT2}", h * 512, "sc1"))
                I("s_mov_b64 exec, -1")
            x.wait_vm0(); x.nop(4)
            I(self.mf(Sx, V(K, 4), V(vQ + 4 * mt, 4), '0'))
            if ps == 0:
                for i in range(8): I(f"v_max3_f32 v{M}, v{Sx+2*i}, v{Sx+2*i+1}, v{M}")
            else:
                for i in range(16): I(f"v_sub_f32 v{Sx+i}, v{Sx+i}, v{M}")
                for i in range(16): I(f"v_exp_f32 v{Sx+i}, v{Sx+i}")
                for h in range(2): I(f"v_smfmac_f32_32x32x32_bf16 {V(O,16)}, {V(Vv+4*h,4)}, {V(Sx+8*h,8)}, v{vIdx}")
                x.nop(16)
            I(f"s_add_u32 s{sCnt}, s{sCnt}, 1"); I(f"s_cmp_lt_u32 s{sCnt}, 64"); I(f"s_cbranch_scc1 L_sa{ps}_{mt}")
            if ps == 0:
                I(f"v_mov_b32 v{M+1}, v{M}"); I(f"v_permlane32_swap_b32 v{M}, v{M+1}"); I(f"v_max_f32 v{M}, v{M}, v{M+1}")
                for i in range(16): I(f"v_mov_b32 v{O+i}, 0")
        if mt == 0:
            for i in range(8): I(f"v_mov_b32 v{RES(0)+8+i}, 0")
        x.nop(4)
        I(f"s_branch L_slowb{mt}")
        self.e.tail += x.lines

    def bar(self, *boxes):
        def f():
            if boxes:
                for b in boxes: self.e.wait(*b)
            else: self.e.wait_lg0()
            self.e.barrier()
        return (f, 10)
    def stp(self, name): return (lambda: self.stamp(name), 0)
    def wt(self, box): return (lambda: self.e.wait(*box), 4)
    def xfin(self, mt, TM, PK, base, box, pk, flag_stats=True):
        o = self.exadd(RES(mt), TM, pk) + self.pack(PK, RES(mt)) + [f"s_add_u32 s{sT2}, s{sP1K}, {hx(base + mt*0x8000)}"]
        o += [self.dcap([self.st(V(PK, 4), vL16, sG, f"s{sT2}")], box)]
        if flag_stats: o += self.rowstats(RES(mt), TM, mt, box, pk)
        return o
    CB = [64, 96]
    def xdma(self, mt, box):
        o = []; CB = self.CB
        for h in range(2):
            for i in range(4):
                o.append(([f"s_add_u32 m0, s{sW8K}, {hx(G_X1 + mt*0x8000 + h*4096)}"] if i == 0 else []) + [self.cap(self.dma(vL16, sG, "m0", i * 1024, "sc1"), box[h])])
        o.append([f"s_add_u32 s{sT3}, s{sStL}, {mt*0x2000}", self.ld(V(CB[mt], 4), vL16, sG, f"s{sT3}", 0, "sc1")])
        o.append([self.ld(V(CB[mt] + 4, 4), vL16, sG, f"s{sT3}", 1024, "sc1")])
        return o
    def wo(self):
        e = self.e; I = e.I; op = self.opt.get
        TM = 208; PR = vT
        def mm(mt): return [self.mf(vACC + 32 * mt + 16 * n, V(vWO + (2 * ks + n) * 4, 4), V(self.OB[mt][ks], 4), '0' if (ks == 0 and n == 1) else None)
                            for ks in range(8) for n in range(2)]
        ob = []; b0 = []; self.b1 = []; self.d0 = [[], []]
        z1 = [f"v_mov_b32 v{RES(1)+8+i}, 0" for i in range(8)]
        self.sched(mm(0), {7: [self.bar()] + z1[:2], 8: z1[2:], op('op1', 14): [self.pub(F_O + 1, ob)]}, self.ofin(1, ob), 1, 4, name='wo0')
        e.seq(self.exw(vACC, 0)); e.seq(self.ffn_setup()); e.seq([self.bar()])
        e.seq(self.exr(TM, 0)); I(self.pissue(F_O + 1, PR))
        e.seq(self.xfin(0, TM, 232, G_X1, b0, True))
        e.seq([self.pcheck(F_O + 1, PR)])
        self.stamp("opoll")
        for o in self.oload(1): e.seq(o)
        B = 236
        for i in range(4):
            I(f"v_lshlrev_b32 v{B}, 16, v{vB2+i}"); I(f"v_and_b32 v{B+1}, 0xffff0000, v{vB2+i}")
            I(f"v_pk_add_f32 {V(RES(0)+2*i,2)}, {V(RES(0)+2*i,2)}, {V(B,2)}")
        for i in range(8): I(f"v_mov_b32 v{RES(0)+8+i}, 0")
        e.seq([self.pub(F_X1, b0)])
        pi, pc = op('xp0', (6, 15))
        xd = self.xdma(0, self.d0)
        ev = {pi - 1: [self.bar()], pi: [self.pissue(F_X1, PR)], pc: [self.pcheck(F_X1, PR)]}
        for g in range(pc, 16): ev.setdefault(g, []).extend(xd.pop(0))
        self.sched(mm(1), ev, name='wo1')
        e.seq(xd.pop(0))
        e.seq(self.exw(vACC + 32, 0x8000))
        for o in xd: e.seq(o)
        e.seq([self.bar()])
        e.seq(self.exr(TM, 0x8000)); e.seq(self.xfin(1, TM, 236, G_X1, self.b1, True))
        self.stamp("wodone")

    def gelu(self, acc, k1, k2, sd, T, P, stores):
        o = []
        for b in range(4):
            a = acc + 4 * b; t = T + 4 * (b & 1)
            o += [f"v_mul_f32 v{t+i}, v{a+i}, v{a+i}" for i in range(4)]
            o += [f"v_fma_f32 v{t+i}, v{t+i}, v{k2}, v{k1}" for i in range(4)]
            o += [f"v_mul_f32 v{t+i}, v{t+i}, v{a+i}" for i in range(4)]
            o += [f"v_exp_f32 v{t+i}, v{t+i}" for i in range(4)]
            o += [f"v_fma_f32 v{t+i}, v{t+i}, v{sd}, v{sd}" for i in range(4)]
            o += [f"v_rcp_f32 v{t+i}, v{t+i}" for i in range(4)]
            o += [f"v_mul_f32 v{a+i}, v{a+i}, v{t+i}" for i in range(4)]
            o += self.pack(P + 2 * b, a, 2)
            if b & 1: o.append(stores(b >> 1, P + 4 * (b >> 1)))
        return o
    def ffn_setup(self):
        XQ = vT + 2; ah = vT + 6; o = []
        for q in range(4): o += [f"s_add_u32 s{sT5}, s{sQ+q}, {hx(L_V)}", f"v_add_u32 v{XQ+q}, s{sT5}, v{vL16}"]
        return o + [f"v_add_u32 v{ah}, {hx(L_ST)}, v{vL16}", f"s_lshl_b32 s{sT5}, s{sw}, 2", f"v_add_u32 v{ah+1}, s{sT5}, v{ah}"]
    def ffn(self):
        e = self.e; I = e.I; op = self.opt.get
        AC = [176, 192]; RG = 208; GT = 240; GP = 248
        XQ = vT + 2; ah = vT + 6; PR = vT
        CB = self.CB
        e.undef('v', 176, 80); e.undef('v', 72, 8); e.undef('v', 96, 16)
        KS = [2 * u + h for u in self.UA + self.UB for h in range(2)]
        def add(ev, g, *items): ev.setdefault(g, []).extend(items)
        def ssum(mt, box):
            t = CB[mt]
            return [f"v_add_f32 v{t+i}, v{t+i}, v{t+4+i}" for i in range(4)] + [f"v_add_f32 v{t}, v{t}, v{t+1}", f"v_add_f32 v{t+2}, v{t+2}, v{t+3}",
                    f"v_add_f32 v{t}, v{t}, v{t+2}", self.cap(f"ds_write_b32 v{ah+1}, v{t} offset:{mt*1024}", box)]
        def srd_(mt): return f"ds_read_b128 {V(CB[mt],4)}, v{ah} offset:{mt*1024}"
        def sfin(mt):
            t = CB[mt]; m = t + 8; r = t + 9; s_ = t + 10; b = t + 12
            return self.stat_fin(t, m, r, s_) + [
                f"v_cvt_pk_bf16_f32 v{b}, -v{m}, -v{m}", f"v_lshlrev_b32 v{t}, 16, v{b}", f"v_add_f32 v{t}, v{t}, v{m}",
                f"v_cvt_pk_bf16_f32 v{b+1}, -v{t}, v{s_}", f"v_and_b32 v{t+1}, 0xffff0000, v{b+1}", f"v_sub_f32 v{t+1}, v{s_}, v{t+1}",
                f"v_cvt_pk_bf16_f32 v{b+3}, -v{t}, v{t+1}", f"v_mov_b32 v{b+2}, v{b}",
                f"v_mul_f32 v{t}, v{r}, v{r}", f"v_mul_f32 v{m}, {hx(f2u(C1))}, v{r}", f"v_mul_f32 v{t}, {hx(f2u(0.044715))}, v{t}",
                f"v_mul_f32 v{r}, v{t}, v{m}"]
        rt = {}
        def rd(k):
            c, i = divmod(k, 32); rt[k] = []
            return (self.cap(f"ds_read_b128 {V(RG+4*(k%8),4)}, v{XQ+i//8} offset:{(c>>1)*0x8000+(i%8)*1024}", rt[k])[0], 5)
        def chain(c):
            n, mt = c & 1, c >> 1
            return [self.mf(AC[n], A((2 * i + n) * 4, 4), V(RG + 4 * (i % 8), 4), '0' if i == 0 else None) for i in range(32)] + \
                   [self.mf(AC[n], V(vAUG + 4 * n, 4), V(CB[mt] + 12, 4))]
        def w2r(f):
            if f < 16: return V(vWO + 4 * f, 4)
            if f < 40: return A(8 * (f - 16), 4)
            return A(8 * (f - 24) + 4, 4)
        blk = {}
        def gld(dst, voff, srd, base, sreg, extra, ks):
            o = []
            if blk.get(sreg) != (extra, ks // 4):
                blk[sreg] = (extra, ks // 4); o.append(f"s_add_u32 s{sreg}, s{base}, {hx(extra + (ks // 4) * 4096)}")
            return o + [self.ld(dst, voff, srd, f"s{sreg}", (ks % 4) * 1024, op('w2fl', 'sc1') if srd == sWS else "sc1")]
        def w2(f): return [] if op('now2') else gld(w2r(f), vL16x, sWS, sW2o + (f & 1), sT0 + (f & 1), 0, KS[f >> 1])
        HQ = [(mt, p) for mt in range(2) for p in range(28)]
        def hr(q): r = q % 24; return A(8 * (24 + r), 4) if r < 8 else A(8 * (r - 8) + 4, 4)
        def hl(q): return gld(hr(q), vL16, sG, sHl, sT4, HQ[q][0] * 0x1c000, KS[HQ[q][1]])
        hb = [[] for _ in range(4)]
        def gel(c):
            n, mt = c & 1, c >> 1
            def f(half, reg):
                def g_():
                    if mt: I(f"s_add_u32 s{sT2}, s{sHs+n}, 0x1c000")
                    hb[c].extend(self.dual([self.st(V(reg, 4), vL16, sG, f"s{sT2 if mt else sHs+n}", half * 1024, fl=op('hnt', ''))]))
                return (g_, 20)
            return self.gelu(AC[n], CB[mt] + 8, CB[mt] + 9, CB[mt] + 10, GT, GP, f)
        def spread(ev, items, g0, g1):
            for k, it in enumerate(items): add(ev, g0 + (k * (g1 - g0 + 1)) // len(items), *it)
        d0 = self.d0; d1 = [[], []]; sb = [[], []]
        for h in range(2):
            e.wait(*d0[h]); e.seq([rd(4 * h + i) for i in range(4)])
        ev = [{} for _ in range(8)]
        LEN = [33, 33, 33, 33, 32, 24, 32, 24]
        def at(c, g):
            while g >= LEN[c]: g -= LEN[c]; c += 1
            return ev[c], g
        def spr(c, items, g0, g1):
            for k, it in enumerate(items): add(*at(c, g0 + (k * (g1 - g0 + 1)) // len(items)), *it)
        B1 = 3
        s0 = ssum(0, sb[0]); add(ev[0], 0, *s0[:4]); add(ev[0], 1, *s0[4:]); add(ev[0], B1, self.bar(sb[0]), srd_(0))
        pb, pi, pc, pl, DW, B2 = op('xp1', (6, 19, 29, 42, 55, 59))
        add(*at(0, pb), self.pub(F_X1 + 1, self.b1)); add(*at(0, pi), self.pissue(F_X1 + 1, PR)); add(*at(0, pc), self.pcheck(F_X1 + 1, PR))
        spr(0, self.xdma(1, d1), pc, pl)
        s1 = ssum(1, sb[1]); add(*at(0, DW), self.wt(d1[1]), *s1[:4]); add(*at(0, DW + 1), *s1[4:]); add(*at(0, B2), self.bar(sb[1]), srd_(1))
        for (c, f0, f1, g0, g1) in op('w2', [(0, 0, 10, 7, 28), (1, 10, 16, 12, 31), (2, 16, 36, 0, 32), (3, 36, 40, 0, 5)]): spr(c, [w2(f) for f in range(f0, f1)], g0, g1)
        HP = op('hp', [(5, 36, 48, 77), (5, 34, 45, 68), (5, 26, 37, 68), (3, 26, 37, 60)])
        Q0 = [0, 16, 28, 44, 56]
        for c in range(4):
            pb, pi, pc, pl = HP[c]
            add(*at(c + 2, pb), self.pub(F_H + c, hb[c])); add(*at(c + 2, pi), self.pissue(F_H + c, PR)); add(*at(c + 2, pc), self.pcheck(F_H + c, PR))
            spr(c + 2, [hl(q) for q in range(Q0[c], Q0[c + 1])], pc, pl)
        def wq(f): return gld(V(vWO + 4 * f, 4), vL16, sWS, sWQo, sT1, 0, f)
        if op('wqp') is not None:
            add(*at(3, op('wqp', 3)), f"s_and_b32 s{sT5}, s{sg}, 3", f"s_lshl_b32 s{sT5}, s{sT5}, 12", f"s_add_u32 s{sT5}, s{sT5}, s{sWQo}",
                f"v_lshlrev_b32 v{vJ}, 6, v{vLane}", "!" + self.ld(V(vJ), vJ, sWS, f"s{sT5}", 0, "sc1", w=1))
        add(ev[4], 0, f"s_lshl_b32 s{sT5}, s{sW8K}, 1", f"v_add_u32 v{XQ}, s{sT5}, v{vL16}")
        spr(4, [[f"ds_read_b128 {w2r(f)}, v{XQ} offset:{((f-40)>>2)*4096 + (f&1)*2048 + ((f>>1)&1)*1024}"] for f in range(40, 56)], *op('w2l', (25, 36)))
        GE = op('ge', (27, 27, 27, 24))
        pos = lambda k: k + k // 32
        cnt = {}; gap = {}
        assert B2 >= pos(56)
        for k in range(8, 128):
            g = max(pos(k - 7), B1 if k < 64 else DW if k < 72 else B2)
            while cnt.get(g, 0) >= 2: g += 1
            cnt[g] = cnt.get(g, 0) + 1; gap[k] = g
            add(ev[g // 33], g % 33, rd(k))
        for k in range(8, 128, 4):
            g = pos(k) - 1
            if gap[k + 3] <= g - 2: add(ev[g // 33], g % 33, self.wt(rt[k + 3]))
        fill = sfin(0) + [f"v_mov_b32 v{RES(1)+8+i}, 0" for i in range(8)]
        for i in range(8): fill += [f"v_and_b32 v{GT}, 0xffff0000, v{vB2+i//2}" if i & 1 else f"v_lshlrev_b32 v{GT}, 16, v{vB2+i//2}", f"v_add_f32 v{RES(1)+i}, v{RES(1)+i}, v{GT}"]
        self.sched(chain(0), ev[0], fill, B1 + 3, 27, name="c0")
        sf = sfin(1); spr(0, [[x] for x in sf], B2 + 2, B2 + 7)
        self.sched(chain(1), ev[1], gel(0), 1, GE[0], name="c1")
        self.sched(chain(2), ev[2], gel(1), 1, GE[1], name="c2")
        self.sched(chain(3), ev[3], gel(2), 1, GE[2], name="c3")
        def part(c):
            return [self.mf(vACC + 32 * HQ[q][0] + 16 * n, w2r(2 * HQ[q][1] + n), hr(q), '0' if (HQ[q][1] == 0 and n == 1) else None) for q in range(Q0[c], Q0[c + 1]) for n in range(2)]
        self.sched(part(0), ev[4], gel(3), 1, GE[3], name="A0")
        self.sched(part(1), ev[5], name="B0")
        TM = 176; PK = 248
        w = self.exw(vACC, 0); r = self.exr(TM, 0); XB, F1 = op('x2b', (7, 21))
        for g, it in {1: w[:2], 2: w[2:4], 3: w[4:], XB: [self.bar()] + r[:3], XB + 1: r[3:]}.items(): add(ev[6], g, *it)
        I(f"s_cmp_lg_u32 s{sLayer}, 0"); I("s_cbranch_scc1 L_final")
        snap = (e.now, copy.deepcopy(e.h), list(e.vmq), list(e.lgq), set(e.und), self.nst)
        def last(ex, fill, fin):
            for g, it in ex.items():
                if g < 56: ev_, g_ = at(6, g); ev_[g_] = ev_.get(g_, []) + it
            self.sched(part(2), ev[6], fill, XB + 3, F1, name='A1')
            self.sched(part(3), ev[7], name='B1')
            e.seq(ex.get(56, []))
            e.seq(self.exw(vACC + 32, 0x8000))
            for g in range(57, 64): e.seq(ex.get(g, []))
            e.wait_lg0(); e.barrier()
            e.seq(self.exr(TM, 0x8000)); e.seq(fin)
            self.stamp("f2done")
        keep = [dict(ev[6]), dict(ev[7])]
        ex = {}; fill = []; b1 = []
        g0, g1 = op('wq', (31, 48))
        for f in range(16): add(ex, g0 + f * (g1 - g0 + 1) // 16, *wq(f))
        self.q2_pre(ex, fill, TM, PK)
        last(ex, fill, self.xfin(1, TM, PK + 4, G_X2, b1, True))
        if self.stamps: self.dump_stamps(0)
        self.qkv2(b1)
        e.nop(4); I("s_branch L_loop")
        e.label("L_final")
        e.now, e.h, e.vmq[:], e.lgq[:], e.und, self.nst = snap; e.mf_t = None
        ev[6], ev[7] = keep; names = list(self.stnames)
        if op('wb'):
            I(f"s_lshr_b32 s{sT5}, s2, 3"); I(f"s_or_b32 s{sT5}, s{sT5}, s{sw}"); I("s_cbranch_scc1 L_nowb")
            e.begin_opt(); I("!buffer_wbl2 sc1"); e.end_opt(); e.label("L_nowb")
        ofl = op('ofl', '')
        fin = lambda mt, pk: self.exadd(RES(mt), TM, pk) + self.pack(PK + 4 * mt, RES(mt)) + [self.st(V(PK + 4 * mt, 4), vT + 5, sTA, f"s{sT6 if mt else sRow}", fl=ofl)]
        last({4: [lambda: self.srd(sTA, pOUT, 0x200000), f"s_add_u32 s{sT6}, s{sRow}, 0x8000"], 5: self.rowaddr(vT + 5, vT + 4)}, fin(0, False), fin(1, True))
        self.stnames = names
        if self.stamps: self.rt(63); self.dump_stamps(256)
        if not self.opt.get('nofw'): e.wait_vm0()
        dg = self.opt.get('diag')
        if dg:
            if dg[4]: I("s_lshr_b32 s1, s1, 4")
            I(f"s_mul_i32 s1, s1, {dg[3]}"); I("s_min_u32 s1, s1, 50000")
            I(f"s_memrealtime s[{sM}:{sM+1}]"); e.wait_lg0(force=True); I(f"s_mov_b32 s0, s{sM}")
            e.label("L_dgs")
            I(f"s_memrealtime s[{sM}:{sM+1}]"); e.wait_lg0(force=True); I(f"s_sub_u32 s3, s{sM}, s0"); I("s_cmp_lt_u32 s3, s1"); I("s_cbranch_scc1 L_dgs")
        e.label("L_end")
        I("s_endpgm")
    def dump_stamps(self, off):
        I = self.I
        I(f"s_lshl_b32 s{sT5}, s2, 2"); I(f"s_add_u32 s{sT5}, s{sT5}, s{sw}"); I(f"s_lshl_b32 s{sT5}, s{sT5}, 9"); I(f"s_add_u32 s{sT5}, s{sT5}, {hx(STAMP)}")
        I(f"v_lshlrev_b32 v{vT+2}, 2, v{vLane}")
        I(self.st("v47", vT + 2, sWS, f"s{sT5}", off, w=1))

    def build(self):
        e = self.e
        self.prologue()
        self.qkv1()
        e.label("L_loop")
        self.attention(); self.wo(); self.ffn()
        ref = open(f"cdna_kernels/{NAME}.s.ref").read()
        head = ref[:ref.index("; @launch")]
        out = head + f"; @launch grid=(256,1,1) block=(256,1,1) lds={LDS_BYTES}\n"
        out += f""".amdgcn_target "amdgcn-amd-amdhsa--gfx950"
.text
.globl {NAME}_kernel
.p2align 8
.type {NAME}_kernel,@function
{NAME}_kernel:
"""
        body = e.text()
        out += body + "L_codeend:\n    s_endpgm\n"
        out += f""".section .rodata,"a"
.p2align 6
.amdhsa_kernel {NAME}_kernel
  .amdhsa_next_free_vgpr 512
  .amdhsa_next_free_sgpr 102
  .amdhsa_accum_offset 256
  .amdhsa_group_segment_fixed_size 0
  .amdhsa_kernarg_size 104
  .amdhsa_user_sgpr_count 2
  .amdhsa_user_sgpr_kernarg_segment_ptr 1
  .amdhsa_system_sgpr_workgroup_id_x 1
.end_amdhsa_kernel
"""
        out = out.replace("CODE_SPAN", "(L_end-L_nopf-2048)")
        return out

if __name__ == "__main__":
    import argparse
    ap = argparse.ArgumentParser()
    ap.add_argument("-o", default=f"cdna_kernels/{NAME}.s")
    ap.add_argument("--stamps", action="store_true"); ap.add_argument("--fsa", action="store_true"); ap.add_argument("--fsm", action="store_true")
    ap.add_argument("--nopf", action="store_true"); ap.add_argument("--nops", action="store_true")
    ap.add_argument("--opt", default="{}")
    a = ap.parse_args()
    g = Gen(stamps=a.stamps, force_slow_attn=a.fsa, force_slow_mode=a.fsm, codepf=not a.nopf, opt=eval(a.opt))
    txt = g.build()
    if a.stamps: txt = txt.replace("; @launch", "; stamps: " + ",".join(g.stnames) + "\n; @launch", 1)
    open(a.o, "w").write(txt)
    print("written", a.o, len(txt), "bytes; nops", g.e.nops)
    if a.nops:
        for n, t in g.e.nop_log: print(n, t)
```
